```python
import torch

def _softmax(x, axis=-1):
    return torch.softmax(x, dim=axis)
def _gelu(x):
    return torch.nn.functional.gelu(x, approximate="tanh")
def _silu(x):
    return torch.nn.functional.silu(x)
def _sigmoid(x):
    return torch.sigmoid(x)
def _layernorm(x, axis=-1, eps=1e-5):
    m = x.mean(dim=axis, keepdim=True)
    v = x.var(dim=axis, keepdim=True, unbiased=False)
    return (x - m) / torch.sqrt(v + eps)
def _scatter_add(tgt, idx, src, axis=0):
    return tgt.clone().index_add_(axis, idx, src)
def _segment_sum(src, seg, n):
    out = torch.zeros((n,) + src.shape[1:], dtype=src.dtype)
    return out.index_add_(0, seg, src)
def _pad(x, pw):
    flat = tuple(v for pair in reversed(pw) for v in pair)
    return torch.nn.functional.pad(x, flat)

kernel_name = 'recurrent_scan__ssm_conv_s5__mixer_s_mlp__prompt'

def setup_inputs():

    _w = (lambda a: (lambda t: t.to(torch.bfloat16) if t.is_floating_point() else t)(torch.as_tensor(a)))
    def _A_setup():
        B, S, D = 1, 2048, 512
        P = D
        Lambda_re = -0.5 * (lambda _x: torch.exp(torch.as_tensor(_x)))((lambda *s: torch.randn(*s, dtype=torch.bfloat16) * 0.2)(P))
        Lambda_im = (lambda *s: torch.randn(*s, dtype=torch.bfloat16) * 0.4)(P) * 1.0
        B_re = (lambda *s: torch.randn(*s, dtype=torch.bfloat16) * 0.2)(P, D) * (D ** -0.5)
        B_im = (lambda *s: torch.randn(*s, dtype=torch.bfloat16) * 0.2)(P, D) * (D ** -0.5)
        C_re = (lambda *s: torch.randn(*s, dtype=torch.bfloat16) * 0.2)(D, P) * (P ** -0.5)
        C_im = (lambda *s: torch.randn(*s, dtype=torch.bfloat16) * 0.2)(D, P) * (P ** -0.5)
        log_dt = (lambda *s: torch.randn(*s, dtype=torch.bfloat16) * 0.2)(P) * 0.3 - 2.0
        Dskip = (lambda *s: torch.randn(*s, dtype=torch.bfloat16) * 0.05)(D)
        return {
            "x": _w((lambda *s: torch.randn(*s, dtype=torch.bfloat16) * 0.05)(B, S, D)),
            "Lambda_re": _w(Lambda_re),
            "Lambda_im": _w(Lambda_im),
            "B_re": _w(B_re),
            "B_im": _w(B_im),
            "C_re": _w(C_re),
            "C_im": _w(C_im),
            "log_dt": _w(log_dt),
            "Dskip": _w(Dskip),
        }
    _A_in = _A_setup()

    def _B_setup():
        B, S, D, F = 1, 2048, 512, 1792
        return {
            "x":  _w((lambda *s: torch.randn(*s, dtype=torch.bfloat16) * 0.05)(B, S, D)),
            "w1": _w((lambda *s: torch.randn(*s, dtype=torch.bfloat16) * 3.2)(D, D) * (D ** -0.5)),
            "w2": _w((lambda *s: torch.randn(*s, dtype=torch.bfloat16) * 3.2)(D, D) * (D ** -0.5)),
            "w3": _w((lambda *s: torch.randn(*s, dtype=torch.bfloat16) * 3.2)(D, F) * (D ** -0.5)),
            "w4": _w((lambda *s: torch.randn(*s, dtype=torch.bfloat16) * 3.2)(F, D) * (F ** -0.5)),
        }
    _B_in = _B_setup()

    return {
        "A_x": _A_in["x"],
        "A_Lambda_re": _A_in["Lambda_re"],
        "A_Lambda_im": _A_in["Lambda_im"],
        "A_B_re": _A_in["B_re"],
        "A_B_im": _A_in["B_im"],
        "A_C_re": _A_in["C_re"],
        "A_C_im": _A_in["C_im"],
        "A_log_dt": _A_in["log_dt"],
        "A_Dskip": _A_in["Dskip"],
        "B_x": _B_in["x"],
        "B_w1": _B_in["w1"],
        "B_w2": _B_in["w2"],
        "B_w3": _B_in["w3"],
        "B_w4": _B_in["w4"],
    }

def reference(A_x, A_Lambda_re, A_Lambda_im, A_B_re, A_B_im, A_C_re, A_C_im, A_log_dt, A_Dskip, B_x, B_w1, B_w2, B_w3, B_w4):
    def _A_ref(x, Lambda_re, Lambda_im, B_re, B_im, C_re, C_im, log_dt, Dskip):
        Bsz, L, H = x.shape
        Lam = Lambda_re + 1j * Lambda_im
        Bmat = B_re + 1j * B_im
        Cmat = C_re + 1j * C_im
        dt = torch.exp(log_dt)
        Lam_bar = torch.exp(dt * Lam)
        B_bar = ((Lam_bar - 1.0) / Lam)[:, None] * Bmat
        Bu = torch.einsum("bld,pd->blp", x + 0j, B_bar)
        h = torch.zeros_like(Bu[:, 0, :])
        hs = []
        for t in range(L):
            h = Lam_bar[None, :] * h + Bu[:, t, :]
            hs.append(h)
        hseq = torch.stack(hs, 1)
        y = 2.0 * torch.einsum("blp,dp->bld", hseq, Cmat).real + x * Dskip[None, None, :]
        return y

    def _B_ref(x, w1, w2, w3, w4):
        B, S, D = x.shape
        h = _gelu(_layernorm(x, axis=-1) @ w1)
        c = D // 4
        g0 = _pad(h[:, :, 0*c:1*c], ((0, 0), (1, 0), (0, 0)))[:, :S, :]
        g1 = _pad(h[:, :, 1*c:2*c], ((0, 0), (0, 1), (0, 0)))[:, 1:, :]
        g2 = _pad(h[:, :, 2*c:3*c], ((0, 0), (2, 0), (0, 0)))[:, :S, :]
        g3 = _pad(h[:, :, 3*c:   ], ((0, 0), (0, 2), (0, 0)))[:, 2:, :]
        hs = torch.concatenate([g0, g1, g2, g3], axis=-1) @ w2
        x1 = x + hs
        h2 = _gelu(_layernorm(x1, axis=-1) @ w3) @ w4
        return x1 + h2

    x = A_x
    xn = _layernorm(x, axis=-1)
    s = _A_ref(xn, A_Lambda_re, A_Lambda_im, A_B_re, A_B_im, A_C_re, A_C_im, A_log_dt, A_Dskip)
    g = _silu(_B_ref(xn, B_w1, B_w2, B_w3, B_w4))
    return x + s * g
```

```python
import re

TRANS = {"v_exp_f32", "v_log_f32", "v_rcp_f32", "v_rsq_f32", "v_sqrt_f32", "v_sin_f32", "v_cos_f32"}
_reg = re.compile(r"^(v|s|a)(\d+)$")
_rng = re.compile(r"^(v|s|a)\[(\d+):(\d+)\]$")


def regs_of(op):
    op = op.strip()
    neg = op.lstrip("-").strip("|")
    if neg.startswith("abs(") or neg.startswith("neg("):
        neg = neg[4:-1]
    m = _reg.match(neg)
    if m:
        return [(m.group(1), int(m.group(2)))]
    m = _rng.match(neg)
    if m:
        return [(m.group(1), i) for i in range(int(m.group(2)), int(m.group(3)) + 1)]
    if neg == "vcc":
        return [("vcc", 0), ("vcc", 1)]
    if neg == "vcc_lo":
        return [("vcc", 0)]
    if neg == "vcc_hi":
        return [("vcc", 1)]
    if neg == "exec":
        return [("exec", 0)]
    if neg == "m0":
        return [("m0", 0)]
    return []


class Ins:
    __slots__ = ("text", "mn", "ops", "mods", "dst", "src", "cls", "tag", "region", "passes", "srcC")

    def __init__(self, text):
        self.text = text
        t = text.split(";")[0].strip()
        parts = t.split(None, 1)
        self.mn = parts[0]
        rest = parts[1] if len(parts) > 1 else ""
        ops = []
        cur = ""
        depth = 0
        for ch in rest:
            if ch == "[":
                depth += 1
            if ch == "]":
                depth -= 1
            if ch == "," and depth == 0:
                ops.append(cur.strip())
                cur = ""
            else:
                cur += ch
        if cur.strip():
            ops.append(cur.strip())
        mods = []
        if ops:
            last = ops[-1].split()
            ops[-1] = last[0]
            mods = last[1:]
        self.ops = ops
        self.mods = mods
        self.tag = None
        self.region = None
        self.passes = 0
        self.srcC = []
        self.classify()

    def classify(self):
        mn = self.mn
        ops = self.ops
        R = regs_of
        dst, src = [], []
        base = mn.replace("_e32", "").replace("_e64", "").replace("_dpp", "").replace("_sdwa", "")
        if mn.startswith("v_mfma"):
            cls = "mfma"
            dst = R(ops[0])
            src = R(ops[1]) + R(ops[2]) + R(ops[3])
            self.srcC = R(ops[3])
            self.passes = 8 if "32x32x16" in mn else (4 if "16x16x32" in mn else (2 if "4x4x4" in mn else 16))
        elif mn.startswith("v_"):
            cls = "valu"
            if base in TRANS:
                cls = "trans"
            if base.startswith("v_dot"):
                cls = "dot"
            if base.startswith("v_permlane") and "swap" in base:
                dst = R(ops[0]) + R(ops[1])
                src = list(dst)
                cls = "permlane"
            elif base == "v_nop":
                pass
            else:
                dst = R(ops[0])
                for o in ops[1:]:
                    src += R(o)
                if base.startswith("v_fmac") or base.startswith("v_dot2c") or base.startswith("v_pk_fmac") or base == "v_writelane_b32":
                    src += dst
                if base.startswith("v_cndmask") and len(ops) == 3:
                    src += [("vcc", 0), ("vcc", 1)]
                if base.startswith("v_cmp") and len(ops) == 2:
                    src = R(ops[0]) + R(ops[1])
                    dst = [("vcc", 0), ("vcc", 1)]
                if any(m.startswith("row_") or m.startswith("quad_perm") or m.startswith("wave_") or m.startswith("bank_mask") for m in self.mods):
                    cls = "dpp"
                    src += dst
                if base in ("v_readfirstlane_b32", "v_readlane_b32"):
                    cls = "readlane"
                if any(m.startswith("dst_sel") or m.startswith("op_sel") for m in self.mods):
                    src += dst
        elif mn.startswith("ds_"):
            cls = "ds"
            if mn.startswith("ds_read") or mn.startswith("ds_bpermute") or mn.startswith("ds_swizzle") or mn.startswith("ds_permute"):
                dst = R(ops[0])
                for o in ops[1:]:
                    src += R(o)
                if "d16" in mn:
                    src += dst
            else:
                for o in ops:
                    src += R(o)
        elif mn.startswith("buffer_"):
            cls = "vmem"
            if mn.startswith("buffer_load"):
                if "lds" in self.mods:
                    for o in ops:
                        src += R(o)
                    src += [("m0", 0)]
                    cls = "dma"
                else:
                    dst = R(ops[0])
                    for o in ops[1:]:
                        src += R(o)
                    if "d16" in mn:
                        src += dst
            else:
                for o in ops:
                    src += R(o)
        elif mn.startswith("s_"):
            cls = "salu"
            if mn in ("s_waitcnt", "s_nop", "s_barrier", "s_endpgm", "s_sleep", "s_setprio") or mn.startswith("s_cbranch") or mn == "s_branch":
                cls = "ctl"
            elif mn.startswith("s_cmp") or mn.startswith("s_bitcmp"):
                for o in ops:
                    src += R(o)
            else:
                dst = R(ops[0]) if ops else []
                for o in ops[1:]:
                    src += R(o)
                if "saveexec" in mn:
                    dst += [("exec", 0)]
                if mn.startswith("s_load") or mn.startswith("s_memtime") or mn.startswith("s_buffer_load"):
                    cls = "smem"
        else:
            raise ValueError("unknown instruction: " + self.text)
        self.dst, self.src, self.cls = dst, src, cls


class Prog:
    def __init__(self, name="p"):
        self.items = []
        self.name = name
        self._rid = 0
        self._lab = 0

    def __call__(self, text, tag=None):
        last = None
        for l in text.strip("\n").split("\n"):
            l = l.strip()
            if not l or l.startswith(";"):
                continue
            if l.endswith(":"):
                self.items.append(("label", l[:-1]))
            else:
                last = Ins(l)
                self.items.append(last)
        if tag is not None:
            last.tag = tag
        return last

    def label(self, hint="L"):
        self._lab += 1
        return f"{hint}_{self.name}_{self._lab}"

    def waitvm(self, tag):
        self.items.append(("waitvm", tag))

    def waitds(self, tag):
        self.items.append(("waitds", tag))

    def comment(self, s):
        self.items.append(("raw", "; " + s))

    def region_begin(self, cls=None):
        if cls is None:
            self._rid += 1
            cls = self._rid
        self.items.append(("region", cls))

    def region_end(self):
        self.items.append(("region", None))

    def finalize(self, init_vm=None, init_done=None):
        out = []
        pos = 0
        lastw = {}
        aux = {}
        srcC_read = {}
        store_data = {}
        vm = [dict(e) for e in (init_vm or [])]
        ds = []
        region = None
        tags_done = set(init_done or [])

        def emit(t, states=1):
            nonlocal pos
            out.append("  " + t)
            pos += states

        def count_after(q, i):
            r0 = q[i]["region"]
            n = 0
            for e in q[i + 1:]:
                if e["region"] is None or e["region"] == region or e["region"] == r0:
                    n += 1
            return n

        def do_wait(nv, nl):
            parts = []
            if nv is not None:
                parts.append(f"vmcnt({min(nv, 63)})")
            if nl is not None:
                parts.append(f"lgkmcnt({min(nl, 15)})")
            if parts:
                emit("s_waitcnt " + " ".join(parts))

        def retire(q, i):
            keep = []
            for e in q[:i + 1]:
                if region is not None and e["region"] != region:
                    keep.append(e)
                    continue
                if e["tag"] is not None:
                    tags_done.add(e["tag"])
            q[:i + 1] = keep

        def flush_hazards():
            need = 0
            for r, (p, c, ps) in lastw.items():
                if c == "mfma":
                    need = max(need, p + {2: 5, 4: 8, 8: 12, 16: 20}[ps] - pos)
                elif c in ("valu", "trans", "dot", "dpp", "permlane", "readlane"):
                    need = max(need, p + (5 if r[0] in ("s", "vcc") else 3) - pos)
                elif c == "salu" and r[0] == "m0":
                    need = max(need, p + 1 - pos)
            for r, (p, ps) in srcC_read.items():
                need = max(need, p + {2: 1, 4: 3, 8: 7, 16: 15}[ps] - pos)
            for r, p in store_data.items():
                need = max(need, p + 2 - pos)
            pad(need)

        def pad(n):
            while n > 0:
                m = min(n, 16)
                emit(f"s_nop {m - 1}", m)
                n -= m

        for it in self.items:
            if isinstance(it, tuple):
                kind = it[0]
                if kind == "label":
                    flush_hazards()
                    out.append(it[1] + ":")
                elif kind == "raw":
                    out.append("  " + it[1])
                elif kind == "region":
                    region = it[1]
                elif kind in ("waitvm", "waitds"):
                    q = vm if kind == "waitvm" else ds
                    idx = [i for i, e in enumerate(q) if e["tag"] == it[1]]
                    if not idx:
                        assert it[1] in tags_done, f"unknown tag {it[1]}"
                        continue
                    i = idx[-1]
                    n = count_after(q, i)
                    do_wait(n if kind == "waitvm" else None, n if kind == "waitds" else None)
                    retire(q, i)
                continue
            ins = it
            c = ins.cls
            if ins.mn == "s_waitcnt":
                m = re.search(r"vmcnt\((\d+)\)", ins.text)
                if m:
                    n = int(m.group(1))
                    if n == 0:
                        retire(vm, len(vm) - 1) if vm else None
                    else:
                        definite = [i for i, e in enumerate(vm) if e["region"] is None or e["region"] == region]
                        if len(definite) > n:
                            retire(vm, definite[len(definite) - n - 1])
                m = re.search(r"lgkmcnt\((\d+)\)", ins.text)
                if m:
                    n = int(m.group(1))
                    if n == 0:
                        retire(ds, len(ds) - 1) if ds else None
                    else:
                        definite = [i for i, e in enumerate(ds) if e["region"] is None or e["region"] == region]
                        if len(definite) > n:
                            retire(ds, definite[len(definite) - n - 1])
                emit(ins.text)
                continue
            if ins.mn == "s_nop":
                emit(ins.text, int(ins.ops[0]) + 1)
                continue
            if ins.mn.startswith("s_cbranch") or ins.mn == "s_branch":
                flush_hazards()
                emit(ins.text)
                continue
            touched = set(ins.src) | set(ins.dst)
            nv = nl = None
            for q, which in ((vm, "v"), (ds, "l")):
                hit = -1
                for i, e in enumerate(q):
                    if e["dst"] & touched:
                        hit = i
                if hit >= 0:
                    n = count_after(q, hit)
                    if which == "v":
                        nv = n
                    else:
                        nl = n
                    retire(q, hit)
            do_wait(nv, nl)
            need = 0
            isvalu = c in ("valu", "trans", "dot", "dpp", "permlane", "readlane")
            for r in ins.src:
                if r in lastw:
                    p, wc, ps = lastw[r]
                    d = 0
                    if wc == "mfma":
                        if c == "mfma" and r in ins.srcC and ins.srcC == aux.get(("D", r), None) and ps == ins.passes:
                            d = 2 if ps == 2 else 0
                        elif c == "mfma" and r in ins.srcC:
                            d = {2: 4, 4: 6, 8: 10, 16: 18}[ps]
                        else:
                            d = {2: 5, 4: 8, 8: 12, 16: 20}[ps]
                    elif wc in ("valu", "trans", "dot", "dpp", "permlane", "readlane"):
                        if r[0] == "v" or r[0] == "a":
                            if c == "mfma":
                                d = 2
                            if c in ("dpp", "permlane"):
                                d = max(d, 2)
                            if c == "readlane":
                                d = max(d, 1)
                            if wc == "trans" and isvalu:
                                d = max(d, 1)
                            if wc == "dot":
                                same = aux.get(("M", r)) == ins.mn
                                if not (same and r in ins.dst):
                                    d = max(d, 3)
                            if aux.get(("S", r)):
                                d = max(d, 1)
                        else:
                            if isvalu:
                                d = 4 if c == "readlane" else 2
                            if c in ("vmem", "dma"):
                                d = 5
                    elif wc == "salu" and r[0] == "m0" and c == "dma":
                        d = 1
                    need = max(need, p + d - pos)
            for r in ins.dst:
                if r in lastw:
                    p, wc, ps = lastw[r]
                    if wc == "mfma" and not (c == "mfma"):
                        need = max(need, p + {2: 5, 4: 8, 8: 12, 16: 20}[ps] - pos)
                    if wc == "mfma" and c == "mfma" and r not in ins.srcC:
                        need = max(need, p + {2: 5, 4: 8, 8: 12, 16: 20}[ps] - pos)
                    if wc == "dot" and not (aux.get(("M", r)) == ins.mn):
                        need = max(need, p + 3 - pos)
                if r in srcC_read and isvalu:
                    p, ps = srcC_read[r]
                    need = max(need, p + {2: 1, 4: 3, 8: 7, 16: 15}[ps] - pos)
                if r in store_data:
                    need = max(need, store_data[r] + 2 - pos)
            pad(need)
            emit(ins.text)
            for r in ins.dst:
                lastw[r] = (pos, c, ins.passes)
                aux[("M", r)] = ins.mn
                aux[("S", r)] = any(m.startswith("dst_sel") or m.startswith("op_sel") for m in ins.mods)
                if c == "mfma":
                    aux[("D", r)] = ins.dst
            if c == "mfma":
                for r in ins.srcC:
                    srcC_read[r] = (pos, ins.passes)
            if c == "vmem" and ins.mn.startswith("buffer_store") and ("x3" in ins.mn or "x4" in ins.mn):
                for r in regs_of(ins.ops[0]):
                    store_data[r] = pos
            if c in ("vmem", "dma"):
                vm.append(dict(dst=set(ins.dst), tag=ins.tag, region=region))
            if c == "ds":
                ds.append(dict(dst=set(ins.dst), tag=ins.tag, region=region))
        flush_hazards()
        self.final_vm = vm
        self.final_ds = ds
        self.final_done = tags_done
        return "\n".join(out) + "\n"
```

```python
from mk import *

LOWBUF = 0


def run_steps(c, steps, prev_free=()):
    k = c.k
    pending = None
    idx = 0
    prev = list(prev_free)
    for st in steps:
        for hi, (rd, mf) in enumerate(st["hs"]):
            if hi == 0:
                if st.get("pre"):
                    st["pre"]()
                for it in st["items"]:
                    k.waitvm(it)
                k("s_waitcnt lgkmcnt(0)")
                c.barrier(free=prev, issue=False)
                if st.get("post0"):
                    st["post0"]()
                c.sched.issue(c)
                if st.get("post"):
                    st["post"]()
                prev = list(st["items"])
            buf = idx % 2
            rd(buf)
            if pending:
                pending()
            pending = (lambda mf=mf, buf=buf: mf(buf))
            idx += 1
    pending()
    return prev


def probe_issue(c, phase):
    k, va = c.k, c.va
    t = va.get(2)
    k(f"""s_lshl_b32 s{sT}, s{sG}, 7
    s_add_u32 s{sT}, s{sT}, {WS_FL + phase * 2048}
    v_lshlrev_b32 v{t}, 2, v1
    v_add_u32 v{t}, s{sT}, v{t}
    buffer_load_dword v{t+1}, v{t}, s[{sWS}:{sWS+3}], 0 offen sc1""")
    return t


def probe_check(c, phase, t, mask):
    k, va = c.k, c.va
    loop, done = k.label("L_pl"), k.label("L_pd")
    k(f"""v_mov_b32 v{t+1}, v{t+1}
    s_mov_b32 s{sT+1}, {SPIN}
    {loop}:
    v_cmp_ne_u32 vcc, s{sNON}, v{t+1}
    s_and_b64 vcc, vcc, {mask}
    s_cbranch_scc0 {done}""")
    k.region_begin()
    k(f"""buffer_load_dword v{t+1}, v{t}, s[{sWS}:{sWS+3}], 0 offen sc1
    s_waitcnt vmcnt(0)
    s_sub_u32 s{sT+1}, s{sT+1}, 1
    s_cmp_lg_u32 s{sT+1}, 0
    s_cbranch_scc1 {loop}""")
    k.region_end()
    k(f"{done}:")
    va.put(t, 2)
    c.sched.flags.add(phase)


def mf16(k, d, a, b, z):
    k(f"v_mfma_f32_16x16x32_bf16 {vr(d,4)}, {vr(a,4)}, {vr(b,4)}, {'0' if z else vr(d,4)}")


def rest(c, g, opts, full):
    k, va, sc = c.k, c.va, c.sched
    stop = opts.get("stop", 99)
    S = g.scan
    srd(k, sWA, P_W3, 512 * 3584)
    srd(k, sWB, P_W4, 1792 * 1024)
    srd(k, sCRE, P_CRE, 512 * 1024)
    srd(k, sCIM, P_CIM, 512 * 1024)
    t, u, q, l15 = [va.get() for _ in range(4)]
    xq, dsk = va.get(4), va.get(4)
    vn8 = va.get()
    k(f"""v_and_b32 v{l15}, 15, v1
    v_lshrrev_b32 v{q}, 4, v1
    v_and_b32 v{u}, 1, v{q}
    v_lshlrev_b32 v{vn8}, 5, v{u}
    v_lshrrev_b32 v{u}, 1, v{q}
    v_lshl_add_u32 v{vn8}, v{u}, 4, v{vn8}
    v_lshl_add_u32 v{t}, v{l15}, 10, v{vn8}
    s_lshr_b32 s{sT}, s{sW}, 1
    s_lshl_b32 s{sT}, s{sT}, 14
    s_add_u32 s{sT}, s{sT}, s{sHP}
    s_and_b32 s{sT+1}, s{sW}, 1
    s_lshl_b32 s{sT+1}, s{sT+1}, 6
    s_add_u32 s{sT+1}, s{sT+1}, s{sC128}
    s_add_u32 s{sT}, s{sT}, s{sT+1}
    buffer_load_dwordx4 {vr(xq,4)}, v{t}, s[{sX}:{sX+3}], s{sT} offen""")
    vx1 = va.get()
    k(f"""s_add_u32 s{sT}, s{sT}, {WS_X1}
    v_add_u32 v{vx1}, s{sT}, v{t}""")
    srd(k, sMI, P_DSK, 1024)
    k(f"buffer_load_dwordx4 {vr(dsk,4)}, v{vn8}, s[{sMI}:{sMI+3}], s{sT+1} offen")
    eg = va.get(32)
    veb = va.get()

    def e_loads():
        k(f"""s_add_u32 s{sMI}, s{P_WS}, {WS_E}
        s_addc_u32 s{sMI+1}, s{P_WS+1}, 0
        s_mov_b32 s{sMI+2}, 131072
        s_mov_b32 s{sMI+3}, 0x00020000""")
        tt = va.get()
        for ii in range(8):
            k(f"""v_subrev_u32 v{tt}, {8192*ii}, v{veb}
            buffer_load_dwordx4 {vr(eg+4*ii,4)}, v{tt}, s[{sMI}:{sMI+3}], 0 offen sc1""")
        va.put(tt)
    if stop >= 3:
        lab = k.label("L_e")
        k(f"s_cmp_ge_u32 s{sW}, 4\ns_cbranch_scc1 {lab}")
        k.region_begin("A")
        k(f"""s_sub_u32 s{sT}, s{sG}, 1
        s_lshl_b32 s{sT}, s{sT}, 13
        s_lshl_b32 s{sT+1}, s{sJ}, 9
        s_add_u32 s{sT}, s{sT}, s{sT+1}
        v_lshlrev_b32 v{veb}, 4, v{S['i32']}
        v_add_u32 v{veb}, s{sT}, v{veb}
        v_lshlrev_b32 v{u}, 16, v{S['hf']}
        v_sub_u32 v{veb}, v{veb}, v{u}""")
        e_loads()
        k.region_end()
        k(f"{lab}:")
    aW = [va.get(), va.get()]
    kn_addr(c, aW[0], aW[1], (t, u, q))
    aR0 = va.get()
    aB = [va.get(), va.get()]
    aC = [va.get(), va.get()]
    vR2k, vR35, vK35 = va.get(), va.get(), va.get()
    k(f"""v_lshrrev_b32 v{u}, 1, v{l15}
    v_xor_b32 v{u}, v{u}, v{q}
    v_lshlrev_b32 v{u}, 4, v{u}
    v_lshl_add_u32 v{aR0}, v{l15}, 7, v{u}
    s_lshr_b32 s{sT}, s{sW}, 1
    s_lshl_b32 s{sT}, s{sT}, 11
    v_add_u32 v{aB[0]}, s{sT}, v{aR0}
    v_xor_b32 v{aB[1]}, 64, v{aB[0]}
    s_and_b32 s{sT}, s{sW}, 1
    s_lshl_b32 s{sT}, s{sT}, 12
    v_add_u32 v{aC[0]}, s{sT}, v{aR0}
    v_xor_b32 v{aC[1]}, 64, v{aC[0]}
    v_lshrrev_b32 v{t}, 10, v{g.vR1k}
    v_and_b32 v{u}, 0x3ff, v{g.vR1k}
    v_lshl_add_u32 v{vR2k}, v{t}, 11, v{u}
    v_mul_u32_u24 v{t}, 3584, v{t}
    v_add_u32 v{vR35}, v{t}, v{u}
    v_and_b32 v{u}, 0x3ff, v{g.vK1k}
    v_add_u32 v{vK35}, v{t}, v{u}""")
    for a in aW + aB:
        c.pre_hi(a)
    for i in range(4):
        def em(c, base, name, i=i):
            for p in range(2):
                c.dma(g.vR1k, sWS, f"s{sHP}", base + 8192 * p, inst=(2 * i + p) * 128, sc1=True, tag=name if p else None)
        sc.add(f"hp_{i}", 0, em)
    if full and stop >= 4:
        for s in range(8):
            def em(c, base, name, s=s):
                for p in range(2):
                    c.dma(vK35, sWA, None, base + 8192 * p, sadd=(sJ256, s * 64 * 3584 + 128 * p), tag=name if p else None)
            sc.add(f"w3_{s}", None, em)
            def em(c, base, name, s=s):
                for p in range(2):
                    c.dma(g.vR1k, sWS, f"s{sX1b if p else sX1a}", base + 8192 * p, inst=s * 128, sc1=True, tag=name if p else None)
            sc.add(f"x1_{s}", 1, em)
    if stop >= 5:
        for i in range(8):
            def em(c, base, name, i=i):
                for p in range(2):
                    c.dma(g.vR1k, sCIM if p else sCRE, f"s{sCrow}", base + 8192 * p, inst=i * 128, tag=name if p else None)
            sc.add(f"C_{i}", None, em)
            def em(c, base, name, i=i):
                for p in range(2):
                    c.dma(vR2k, sWS, f"s{sH}", base + 8192 * p, inst=(2 * i + p) * 128, sc1=True, tag=name if p else None)
            sc.add(f"H_{i}", 2, em)
        for i in range(14):
            def em(c, base, name, i=i):
                for p in range(2):
                    c.dma(g.vK1k, sWB, None, base + 8192 * p, sadd=(sC128, (2 * i + p) * 65536), tag=name if p else None)
            sc.add(f"w4_{i}", None, em)
            def em(c, base, name, i=i):
                for p in range(2):
                    c.dma(vR35, sWS, f"s{sU}", base + 8192 * p, inst=(2 * i + p) * 128, sc1=True, tag=name if p else None)
            sc.add(f"u_{i}", 3, em)
    fbuf = [va.get(24), va.get(24)]

    def kn_steps(wn, an, n, acc):
        steps = []
        for i in range(n):
            hs = []
            for p in range(2):
                def rd(buf, i=i, p=p):
                    f = fbuf[buf]
                    wb, ab = sc.base(f"{wn}_{i}") + 8192 * p, sc.base(f"{an}_{i}") + 8192 * p
                    for ks in range(2):
                        c.dsr("ds_read_b128", f + 16 + 4 * ks, 4, aB[ks], ab)
                        for a in range(2):
                            for uu in range(2):
                                c.dsr("ds_read_b64_tr_b16", f + 8 * ks + 4 * a + 2 * uu, 2, aW[a], wb + (32 * ks + 4 * uu) * 128)
                def mf(buf, i=i, p=p):
                    f = fbuf[buf]
                    for ks in range(2):
                        for a in range(2):
                            mf16(k, acc[a], f + 8 * ks + 4 * a, f + 16 + 4 * ks, i == 0 and p == 0 and ks == 0)
                hs.append((rd, mf))
            steps.append(dict(items=[f"{wn}_{i}", f"{an}_{i}"], hs=hs))
        return steps

    sc.reserve = 4
    sc.issue(c)
    c.stamp(3)
    flag_wait(c, 0, "half")
    c.stamp(4)
    sc.reserve = opts.get("res1", 3)
    ma = va.get(2)
    k(f"""s_lshl_b32 s{sT}, s{sRH}, 6
    s_lshr_b32 s{sT+1}, s{sW}, 1
    s_lshl_b32 s{sT+1}, s{sT+1}, 4
    s_add_u32 s{sT}, s{sT}, s{sT+1}
    s_add_u32 s{sT}, s{sT}, s{sOFF5}
    v_add_u32 v{t}, s{sT}, v{l15}
    v_lshlrev_b32 v{t}, 3, v{t}""")
    c.dsr("ds_read_b64", ma, 2, t, ST_C)
    xn = va.get(4)
    lo, hi = va.get(), va.get()
    for i in range(4):
        k(f"""v_lshlrev_b32 v{lo}, 16, v{xq+i}
        v_and_b32 v{hi}, 0xffff0000, v{xq+i}
        v_sub_f32 v{lo}, v{lo}, v{ma}
        v_sub_f32 v{hi}, v{hi}, v{ma}
        v_cvt_pk_bf16_f32 v{xn+i}, v{lo}, v{hi}
        v_lshlrev_b32 v{lo}, 16, v{xn+i}
        v_and_b32 v{hi}, 0xffff0000, v{xn+i}
        v_mul_f32 v{lo}, v{lo}, v{ma+1}
        v_mul_f32 v{hi}, v{hi}, v{ma+1}
        v_cvt_pk_bf16_f32 v{xn+i}, v{lo}, v{hi}""")
    va.put(ma, 2)
    c.free_base(t)
    t = va.get()
    acc2 = [va.get(4), va.get(4)]
    last = run_steps(c, kn_steps("w2", "hp", 4, acc2))
    c.stamp(5)
    x1 = va.get(4)
    for r in range(4):
        k(f"v_permlane16_swap_b32 v{acc2[0]+r}, v{acc2[1]+r}")
    for i in range(4):
        a = acc2[i >> 1] + 2 * (i & 1)
        k(f"""v_lshlrev_b32 v{lo}, 16, v{xn+i}
        v_and_b32 v{hi}, 0xffff0000, v{xn+i}
        v_add_f32 v{lo}, v{lo}, v{a}
        v_add_f32 v{hi}, v{hi}, v{a+1}
        v_cvt_pk_bf16_f32 v{x1+i}, v{lo}, v{hi}""")
    k(f"buffer_store_dwordx4 {vr(x1,4)}, v{vx1}, s[{sWS}:{sWS+3}], 0 offen sc1")
    va.put(acc2[0], 4); va.put(acc2[1], 4); va.put(vx1)
    s12 = va.get(2)
    S1, S2 = s12, s12 + 1
    k(f"v_mov_b32 v{S1}, 0\nv_mov_b32 v{S2}, 0")
    for i in range(4):
        k(f"v_dot2c_f32_bf16 v{S1}, s{sONE}, v{x1+i}\nv_dot2c_f32_bf16 v{S2}, v{x1+i}, v{x1+i}")
    k(f"""v_permlane32_swap_b32 v{S1}, v{S2}
    v_add_f32 v{S1}, v{S1}, v{S2}
    v_mov_b32 v{S2}, v{S1}
    v_permlane16_swap_b32 v{S1}, v{S2}
    v_add_f32 v{S1}, v{S1}, v{S2}
    v_mov_b32 v{S2}, v{S1}
    v_permlane32_swap_b32 v{S1}, v{S2}
    s_lshl_b32 s{sT}, s{sC}, 1
    s_and_b32 s{sT+1}, s{sW}, 1
    s_add_u32 s{sT}, s{sT}, s{sT+1}
    s_lshl_b32 s{sT}, s{sT}, 14                 ; slice*16384
    s_lshr_b32 s{sT+1}, s{sHP}, 7               ; row0*8
    s_add_u32 s{sT}, s{sT}, s{sT+1}
    s_lshr_b32 s{sT+1}, s{sW}, 1
    s_lshl_b32 s{sT+1}, s{sT+1}, 7
    s_add_u32 s{sT}, s{sT}, s{sT+1}
    s_add_u32 s{sT}, s{sT}, {WS_PS}
    v_lshlrev_b32 v{t}, 3, v{l15}
    s_mov_b64 exec, 0xffff""")
    k(f"buffer_store_dwordx2 {vr(s12,2)}, v{t}, s[{sWS}:{sWS+3}], s{sT} offen sc1", tag="x1st")
    k("s_mov_b64 exec, -1")
    va.put(s12, 2)
    cin = va.get(2)
    if stop >= 3:
        lab = k.label("L_s1")
        k(f"s_cmp_ge_u32 s{sW}, 4\ns_cbranch_scc1 {lab}")
        k.region_begin("A")
        loop, done = k.label("L_el"), k.label("L_ed")
        bad, e_, x_, y_, vn = [va.get() for _ in range(5)]
        k(f"""v_mov_b32 v{bad}, v{eg+31}
        v_mov_b32 v{vn}, s{sNON}
        s_mov_b32 s{sT+1}, {SPIN}
        {loop}:
        v_mov_b32 v{bad}, 0""")
        for ii in range(8):
            k(f"""v_cmp_le_i32 vcc, {8192*ii}, v{veb}
            v_cndmask_b32 v{e_}, 0, v{vn}, vcc
            v_xor_b32 v{x_}, v{e_}, v{eg+4*ii+1}
            v_xor_b32 v{y_}, v{e_}, v{eg+4*ii+3}
            v_or3_b32 v{bad}, v{bad}, v{x_}, v{y_}""")
        k(f"""v_cmp_ne_u32 vcc, 0, v{bad}
        s_cbranch_vccz {done}""")
        k.region_begin("A2")
        e_loads()
        k(f"""s_waitcnt vmcnt(0)
        s_sub_u32 s{sT+1}, s{sT+1}, 1
        s_cmp_lg_u32 s{sT+1}, 0
        s_cbranch_scc1 {loop}""")
        k.region_begin("A")
        k(f"{done}:")
        h = [va.get(2), va.get(2)]
        cur = (eg + 28, eg + 30)
        for n_, ii in enumerate(range(6, -1, -1)):
            d = h[n_ & 1]
            cmad(k, d, d + 1, S["l128r"], S["l128i"], cur[0], cur[1], eg + 4 * ii, eg + 4 * ii + 2)
            cur = (d, d + 1)
        for _ in range(3):
            csq(k, S["l128r"], S["l128i"], x_)
        d = h[1]
        assert cur[0] == h[0]
        k(f"""v_mul_f32 v{d}, v{S['l128r']}, v{cur[0]}
        v_mul_f32 v{d+1}, v{S['l128r']}, v{cur[1]}
        v_fma_f32 v{d}, -v{S['l128i']}, v{cur[1]}, v{d}
        v_fma_f32 v{d+1}, v{S['l128i']}, v{cur[0]}, v{d+1}
        s_mov_b64 vcc, -1
        s_mov_b32 vcc_lo, 0
        v_cndmask_b32 v{cin}, v{cur[0]}, v{d}, vcc
        v_cndmask_b32 v{cin+1}, v{cur[1]}, v{d+1}, vcc
        v_mov_b32 v{d}, v{cin}
        v_mov_b32 v{d+1}, v{cin+1}
        v_permlane32_swap_b32 v{cin}, v{d}
        v_permlane32_swap_b32 v{cin+1}, v{d+1}
        v_add_f32 v{cin}, v{cin}, v{d}
        v_add_f32 v{cin+1}, v{cin+1}, v{d+1}
        s_lshl_b32 s{sT}, s{sW}, 1
        v_add_u32 v{x_}, s{sT}, v{S['hf']}""")
        for s in range(7):
            cmad(k, d, d + 1, S["l16r"], S["l16i"], cin, cin + 1, S["eseg"] + 2 * s, S["eseg"] + 2 * s + 1)
            k(f"""v_cmp_lt_u32 vcc, {s}, v{x_}
            v_cndmask_b32 v{cin}, v{cin}, v{d}, vcc
            v_cndmask_b32 v{cin+1}, v{cin+1}, v{d+1}, vcc""")
        for r in (bad, e_, x_, y_, vn):
            va.put(r)
        va.put(h[0], 2); va.put(h[1], 2)
        k.region_end()
        k(f"{lab}:")
    va.put(eg, 32); va.put(veb)
    k.waitvm("x1st")
    c.barrier(free=last)
    flag_store(c, 1)
    c.stamp(6)
    if stop >= 3:
        lab = k.label("L_s2")
        k(f"s_cmp_ge_u32 s{sW}, 4\ns_cbranch_scc1 {lab}")
        k.region_begin("A")
        wr, wi, rdA, vho, t1, t2, pk = [va.get() for _ in range(7)]
        o4 = [va.get(4), va.get(4)]
        k(f"""v_lshlrev_b32 v{wr}, 1, v{S['i32']}
        v_lshlrev_b32 v{t1}, 6, v{S['hf']}
        v_xor_b32 v{wr}, v{wr}, v{t1}
        v_lshl_add_u32 v{wr}, v{S['hf']}, 9, v{wr}
        v_add_u32 v{wr}, s{sW1K}, v{wr}
        v_xor_b32 v{wi}, 64, v{wr}
        v_lshlrev_b32 v{rdA}, 4, v1
        v_add_u32 v{rdA}, s{sW1K}, v{rdA}
        v_bfe_u32 v{t1}, v1, 3, 2
        v_lshl_add_u32 v{t1}, v{S['hf']}, 4, v{t1}     ; row = 16*(b>>2) + (b&3)
        v_lshlrev_b32 v{vho}, 11, v{t1}
        v_and_b32 v{t1}, 7, v1
        v_lshlrev_b32 v{t2}, 2, v{S['hf']}
        v_xor_b32 v{t1}, v{t1}, v{t2}
        v_lshl_add_u32 v{vho}, v{t1}, 4, v{vho}
        s_lshl_b32 s{sT}, s{sW}, 5
        s_add_u32 s{sT}, s{sT}, s{sT0}
        s_lshl_b32 s{sT}, s{sT}, 11
        s_lshl_b32 s{sT+1}, s{sJ}, 7
        s_add_u32 s{sT}, s{sT}, s{sT+1}
        s_add_u32 s{sT+2}, s{sT}, {WS_H}""")
        cur = (cin, cin + 1)
        for r in range(16):
            hr, hi_ = S["accr"] + r, S["acci"] + r
            cmad(k, hr, hi_, S["lr"], S["li"], cur[0], cur[1], hr, hi_)
            cur = (hr, hi_)
            k(f"""v_mul_f32 v{t1}, v{S['kr']}, v{hr}
            v_mul_f32 v{t2}, -v{S['kr']}, v{hi_}
            v_fma_f32 v{t1}, -v{S['ki']}, v{hi_}, v{t1}
            v_fma_f32 v{t2}, -v{S['ki']}, v{hr}, v{t2}
            v_cvt_pk_bf16_f32 v{pk}, v{t1}, v{t2}
            ds_write_b16 v{wr}, v{pk} offset:{LOWBUF + (r & 3) * 128}
            ds_write_b16_d16_hi v{wi}, v{pk} offset:{LOWBUF + (r & 3) * 128}""")
            if r & 3 == 3:
                uu = r >> 2
                k(f"ds_read_b128 {vr(o4[uu & 1],4)}, v{rdA} offset:{LOWBUF}")
                if uu >= 1:
                    k(f"""s_add_u32 s{sT}, s{sT+2}, {(uu-1)*8192}
                    buffer_store_dwordx4 {vr(o4[(uu-1) & 1],4)}, v{vho}, s[{sWS}:{sWS+3}], s{sT} offen sc1""")
        k(f"""s_add_u32 s{sT}, s{sT+2}, {3*8192}
        buffer_store_dwordx4 {vr(o4[1],4)}, v{vho}, s[{sWS}:{sWS+3}], s{sT} offen sc1
        s_waitcnt vmcnt(0)""")
        for r in (wr, wi, rdA, vho, t1, t2, pk):
            va.put(r)
        va.put(o4[0], 4); va.put(o4[1], 4)
        k.region_end()
        k(f"{lab}:")
        c.barrier()
        flag_store(c, 2)
    va.put(cin, 2)
    va.put(S["accr"], 16); va.put(S["acci"], 16); va.put(S["eseg"], 16)
    for n_ in ("lr", "li", "kr", "ki", "l16r", "l16i", "l128r", "l128i", "i32", "hf"):
        va.put(S[n_])
    c.stamp(7)
    if stop < 4:
        return
    last = []
    if full:
        aW3 = [va.get(), va.get()]
        aB3 = [va.get(), va.get()]
        vps, vrho, vu = va.get(), va.get(), va.get()
        k(f"""s_bfe_u32 s{sT}, s{sW}, 0x10001
        s_lshl_b32 s{sT}, s{sT}, 13
        v_add_u32 v{aW3[0]}, s{sT}, v{aW[0]}
        v_add_u32 v{aW3[1]}, s{sT}, v{aW[1]}
        s_lshr_b32 s{sT}, s{sW}, 2
        s_lshl_b32 s{sT}, s{sT}, 13
        v_add_u32 v{aB3[0]}, s{sT}, v{aR0}
        v_xor_b32 v{aB3[1]}, 64, v{aB3[0]}
        v_lshrrev_b32 v{vrho}, 2, v0
        v_lshlrev_b32 v{vrho}, 3, v{vrho}
        v_and_b32 v{t}, 3, v0
        v_lshl_add_u32 v{vps}, v{t}, 16, v{vrho}
        v_mul_u32_u24 v{vu}, 3584, v{l15}
        v_add_u32 v{vu}, v{vu}, v{vn8}""")
        for a in aW3 + aB3:
            c.pre_hi(a)
        c.pre_hi(vrho, (2,))
        ones = va.get(4)
        for i in range(4):
            k(f"v_mov_b32 v{ones+i}, s{sONE}")
        ps = va.get(8)
        flag_poll_only(c, 1, "all")
        c.stamp(8)

        def ps_load():
            sc.flags.add(1)
            for m in range(4):
                k(f"""s_lshl_b32 s{sT}, s{sT0}, 3
                s_add_u32 s{sT}, s{sT}, {WS_PS + m * 16384}
                buffer_load_dwordx2 {vr(ps+2*m,2)}, v{vps}, s[{sWS}:{sWS+3}], s{sT} offen sc1""")
        k("s_waitcnt lgkmcnt(0)")
        c.barrier(issue=False)
        ps_load()
        sc.reserve = opts.get("res2", 0)
        sc.issue(c)
        acc3 = [[va.get(4) for tt in range(4)] for a in range(2)]
        cs3 = [va.get(4), va.get(4)]

        def ps_fin():
            x = va.get(4)
            k(f"""v_add_f32 v{ps}, v{ps}, v{ps+2}
            v_add_f32 v{ps+1}, v{ps+1}, v{ps+3}
            v_add_f32 v{ps+4}, v{ps+4}, v{ps+6}
            v_add_f32 v{ps+5}, v{ps+5}, v{ps+7}
            v_add_f32 v{ps}, v{ps}, v{ps+4}
            v_add_f32 v{ps+1}, v{ps+1}, v{ps+5}""")
            for m in ("quad_perm:[1,0,3,2]", "quad_perm:[2,3,0,1]"):
                for s_ in (ps, ps + 1):
                    k(f"v_add_f32_dpp v{s_}, v{s_}, v{s_} {m} row_mask:0xf bank_mask:0xf")
            k(f"""v_mul_f32 v{x}, {fhex(1/512)}, v{ps}
            v_mul_f32 v{x+1}, v{x}, v{x}
            v_fma_f32 v{x+1}, v{ps+1}, s{sI512}, -v{x+1}
            v_max_f32 v{x+1}, 0, v{x+1}""")
            c.bf16r(x, x)
            c.bf16r(x + 1, x + 1)
            k(f"v_add_f32 v{x+1}, {fhex(EPS)}, v{x+1}")
            c.bf16r(x + 1, x + 1)
            k(f"v_sqrt_f32 v{x+1}, v{x+1}")
            c.bf16r(x + 1, x + 1)
            k(f"""v_rcp_f32 v{x+2}, v{x+1}
            v_mul_f32 v{x+3}, v{x}, v{x+2}""")
            c.dsw("ds_write_b64", vrho, ST3, x + 2, 2)
            va.put(x, 4)
        steps = []
        pr = {}
        for s in range(8):
            hs = []
            for ks in range(2):
                def rd(buf, s=s, ks=ks):
                    f = fbuf[buf]
                    wb, ab = sc.base(f"w3_{s}"), sc.base(f"x1_{s}")
                    for a in range(2):
                        for uu in range(2):
                            c.dsr("ds_read_b64_tr_b16", f + 4 * a + 2 * uu, 2, aW3[a], wb + (32 * ks + 4 * uu) * 128)
                    for tt in range(4):
                        c.dsr("ds_read_b128", f + 8 + 4 * tt, 4, aB3[ks], ab + tt * 2048)
                def mf(buf, s=s, ks=ks):
                    f = fbuf[buf]
                    z = s == 0 and ks == 0
                    for tt in range(4):
                        for a in range(2):
                            mf16(k, acc3[a][tt], f + 4 * a, f + 8 + 4 * tt, z)
                    for a in range(2):
                        mf16(k, cs3[a], f + 4 * a, ones, z)
                hs.append((rd, mf))
            st = dict(items=[f"w3_{s}", f"x1_{s}"], hs=hs)
            if s == 1:
                st["post"] = ps_fin
            if stop >= 5:
                if s == opts.get("p2i", 2):
                    st["post0"] = lambda: pr.__setitem__(2, probe_issue(c, 2))
                if s == opts.get("p2c", 5):
                    st["post0"] = lambda: probe_check(c, 2, pr[2], "0xffff")
            steps.append(st)
        last = run_steps(c, steps)
        c.stamp(9)
        va.put(ps, 8); va.put(vps); c.free_base(vrho); va.put(ones, 4)
        for a in aW3 + aB3:
            c.free_base(a)
        k("s_waitcnt lgkmcnt(0)")
        c.barrier(free=last)
        last = []
        ab = va.get(8)
        k(f"""s_lshr_b32 s{sT}, s{sW}, 2
        s_lshl_b32 s{sT}, s{sT}, 6
        v_add_u32 v{t}, s{sT}, v{l15}
        v_lshlrev_b32 v{t}, 3, v{t}
        s_add_u32 s{sT}, s{sT}, s{sT0}
        s_mul_i32 s{sT}, s{sT}, 3584
        s_add_u32 s{sT}, s{sT}, s{sJ256}
        s_and_b32 s{sT+1}, s{sW}, 3
        s_lshl_b32 s{sT+1}, s{sT+1}, 6
        s_add_u32 s{sT}, s{sT}, s{sT+1}
        s_add_u32 s{sT+2}, s{sT}, {WS_U}""")
        for tt in range(4):
            c.dsr("ds_read_b64", ab + 2 * tt, 2, t, ST3 + 128 * tt)
        c.free_base(t)
        t = va.get()
        for tt in range(4):
            for a in range(2):
                for r in range(4):
                    k(f"""v_mul_f32 v{t}, v{ab+2*tt+1}, v{cs3[a]+r}
                    v_fma_f32 v{acc3[a][tt]+r}, v{ab+2*tt}, v{acc3[a][tt]+r}, -v{t}""")
            gelu_many(c, [acc3[a][tt] + r for a in range(2) for r in range(4)])
            P = va.get(4)
            for a in range(2):
                for i in range(2):
                    k(f"v_cvt_pk_bf16_f32 v{P+2*a+i}, v{acc3[a][tt]+2*i}, v{acc3[a][tt]+2*i+1}")
            for i in range(2):
                k(f"v_permlane16_swap_b32 v{P+i}, v{P+2+i}")
            k(f"s_add_u32 s{sT}, s{sT+2}, {tt*16*3584}")
            k(f"buffer_store_dwordx4 {vr(P,4)}, v{vu}, s[{sWS}:{sWS+3}], s{sT} offen sc1", tag=f"ust{tt}")
            va.put(P, 4)
        va.put(ab, 8); va.put(vu)
        for a in range(2):
            va.put(cs3[a], 4)
            for tt in range(4):
                va.put(acc3[a][tt], 4)
        c.stamp(10)
        if stop < 5:
            return
    else:
        if stop < 5:
            return
        sc.reserve = 4
        sc.issue(c)
        flag_wait(c, 2, "all")
    for a in aC:
        c.pre_hi(a)
    acc6 = [va.get(4), va.get(4)]
    acc4 = [va.get(4), va.get(4)]
    sc.reserve = opts.get("res3", 0)
    steps = []
    pr = {}
    for i in range(8):
        hs = []
        for p in range(2):
            def rd(buf, i=i, p=p):
                f = fbuf[buf]
                cb, hb = sc.base(f"C_{i}"), sc.base(f"H_{i}") + 8192 * p
                for ri in range(2):
                    c.dsr("ds_read_b128", f + 16 + 4 * ri, 4, aB[ri], hb)
                    for a in range(2):
                        c.dsr("ds_read_b128", f + 8 * ri + 4 * a, 4, aC[p], cb + 8192 * ri + 2048 * a)
            def mf(buf, i=i, p=p):
                f = fbuf[buf]
                for ri in range(2):
                    for a in range(2):
                        mf16(k, acc6[a], f + 8 * ri + 4 * a, f + 16 + 4 * ri, i == 0 and p == 0 and ri == 0)
            hs.append((rd, mf))
        st = dict(items=[f"C_{i}", f"H_{i}"], hs=hs)
        if full and i == opts.get("f3s", 1):
            st["pre"] = lambda: k.waitvm("ust3")
            st["post0"] = lambda: flag_store(c, 3)
        if full:
            if i == opts.get("p3i", 3):
                st["post0"] = lambda: pr.__setitem__(3, probe_issue(c, 3))
            if i == opts.get("p3c", 6):
                st["post0"] = lambda: probe_check(c, 3, pr[3], "0x7f7f")
        steps.append(st)
    last = run_steps(c, steps, prev_free=last)
    c.stamp(11)
    if not full:
        sc.reserve = 4
        flag_wait(c, 3, "g3", free=last)
        last = []
    last = run_steps(c, kn_steps("w4", "u", 14, acc4), prev_free=last)
    c.stamp(12)
    for acc in (acc4, acc6):
        for r in range(4):
            k(f"v_permlane16_swap_b32 v{acc[0]+r}, v{acc[1]+r}")
    z = [acc4[i >> 2] + (i & 3) for i in range(8)]
    s_ = [acc6[i >> 2] + (i & 3) for i in range(8)]
    e = va.get(8)
    d2 = va.get(2)
    for i in range(4):
        k(f"""v_lshlrev_b32 v{lo}, 16, v{x1+i}
        v_and_b32 v{hi}, 0xffff0000, v{x1+i}
        v_add_f32 v{z[2*i]}, v{z[2*i]}, v{lo}
        v_add_f32 v{z[2*i+1]}, v{z[2*i+1]}, v{hi}
        v_mul_f32 v{e+2*i}, {fhex(-LOG2E)}, v{z[2*i]}
        v_mul_f32 v{e+2*i+1}, {fhex(-LOG2E)}, v{z[2*i+1]}
        v_exp_f32 v{e+2*i}, v{e+2*i}
        v_exp_f32 v{e+2*i+1}, v{e+2*i+1}""")
    for i in range(4):
        k(f"""v_lshlrev_b32 v{lo}, 16, v{xn+i}
        v_and_b32 v{hi}, 0xffff0000, v{xn+i}
        v_lshlrev_b32 v{d2}, 16, v{dsk+i}
        v_and_b32 v{d2+1}, 0xffff0000, v{dsk+i}
        v_mul_f32 v{lo}, v{lo}, v{d2}
        v_mul_f32 v{hi}, v{hi}, v{d2+1}
        v_cvt_pk_bf16_f32 v{d2}, v{lo}, v{hi}
        v_lshlrev_b32 v{lo}, 16, v{d2}
        v_and_b32 v{hi}, 0xffff0000, v{d2}
        v_add_f32 v{s_[2*i]}, v{s_[2*i]}, v{lo}
        v_add_f32 v{s_[2*i+1]}, v{s_[2*i+1]}, v{hi}
        v_add_f32 v{e+2*i}, 1.0, v{e+2*i}
        v_add_f32 v{e+2*i+1}, 1.0, v{e+2*i+1}
        v_rcp_f32 v{e+2*i}, v{e+2*i}
        v_rcp_f32 v{e+2*i+1}, v{e+2*i+1}""")
    srd(k, sMI, P_OUT, 2048 * 2048)
    k(f"""v_lshlrev_b32 v{t}, 11, v{l15}
    v_lshl_add_u32 v{t}, v{vn8}, 1, v{t}
    s_lshr_b32 s{sT}, s{sW}, 1
    s_lshl_b32 s{sT}, s{sT}, 14
    s_add_u32 s{sT}, s{sT}, s{sHP}
    s_and_b32 s{sT+1}, s{sW}, 1
    s_lshl_b32 s{sT+1}, s{sT+1}, 6
    s_add_u32 s{sT+1}, s{sT+1}, s{sC128}
    s_add_u32 s{sT}, s{sT}, s{sT+1}
    s_lshl_b32 s{sT}, s{sT}, 1""")
    for i in range(4):
        k(f"""v_lshlrev_b32 v{lo}, 16, v{xq+i}
        v_and_b32 v{hi}, 0xffff0000, v{xq+i}
        v_mul_f32 v{z[2*i]}, v{z[2*i]}, v{e+2*i}
        v_mul_f32 v{z[2*i+1]}, v{z[2*i+1]}, v{e+2*i+1}
        v_fma_f32 v{e+2*i}, v{s_[2*i]}, v{z[2*i]}, v{lo}
        v_fma_f32 v{e+2*i+1}, v{s_[2*i+1]}, v{z[2*i+1]}, v{hi}""")
        if i & 1:
            k(f"buffer_store_dwordx4 {vr(e+4*(i>>1),4)}, v{t}, s[{sMI}:{sMI+3}], s{sT} offen offset:{16*(i>>1)}")
    if full:
        lab = k.label("L_nn")
        k(f"""s_cmp_lg_u32 s2, 135
        s_cbranch_scc1 {lab}
        s_cmp_lg_u32 s{sW}, 0
        s_cbranch_scc1 {lab}""")
        k.region_begin()
        k(f"""v_mov_b32 v{lo}, 0
        v_mov_b32 v{hi}, s{sNON}
        s_mov_b32 s{sT}, {WS_NONCE}
        s_mov_b64 exec, 1
        buffer_store_dword v{hi}, v{lo}, s[{sWS}:{sWS+3}], s{sT} offen sc1""")
        k.region_end()
        k(f"{lab}:")
    c.stamp(13)


def flag_poll_only(c, phase, mask_kind):
    k, va = c.k, c.va
    t = va.get(2)
    lab = k.label("L_fw")
    loop = k.label("L_fl")
    done = k.label("L_fd")
    k(f"""s_cmp_lg_u32 s{sW}, 0
    s_cbranch_scc1 {lab}""")
    k.region_begin("W0")
    k(f"""s_lshl_b32 s{sT}, s{sG}, 7
    s_add_u32 s{sT}, s{sT}, {WS_FL + phase * 2048}
    v_lshlrev_b32 v{t}, 2, v1
    v_add_u32 v{t}, s{sT}, v{t}
    s_mov_b32 s{sT+1}, {SPIN}
    s_mov_b64 exec, 0xffff
    {loop}:
    buffer_load_dword v{t+1}, v{t}, s[{sWS}:{sWS+3}], 0 offen sc1
    s_waitcnt vmcnt(0)
    v_cmp_ne_u32 vcc, s{sNON}, v{t+1}
    s_cbranch_vccz {done}
    s_sub_u32 s{sT+1}, s{sT+1}, 1
    s_cmp_lg_u32 s{sT+1}, 0
    s_cbranch_scc1 {loop}
    {done}:
    s_mov_b64 exec, -1""")
    k.region_end()
    k(f"{lab}:")
    va.put(t, 2)
```

```python
import sys, struct
sys.path.insert(0, "dev")
from ag import Prog

NAME = "recurrent_scan__ssm_conv_s5__mixer_s_mlp__prompt"
WS_HP = 0x000000
WS_X1 = 0x200000
WS_H = 0x400000
WS_U = 0x800000
WS_E = 0x1000000
WS_PS = 0x1040000
WS_RS = 0x10C0000
WS_FL = 0x1100000
WS_NONCE = 0x1200000
WS_STAMP = 0x1300000
LDS_BYTES = 163840
MISC = 155648
ST_A = MISC
ST_B = MISC + 1088
ST_C = MISC + 2176
CSB = MISC + 3264
SEG = MISC + 4352
ST3 = MISC + 6400
SLOT = 33024
RING0 = 7168
XW1 = 16640
XB = 24832
UNIT0 = 8192
UNIT = 16384
NUNIT = 9
K1 = 2.0 * 0.7978845608028654 * 1.4426950408889634
K3 = K1 * 0.044715
EPS = 1e-5
SPIN = 100000
LOG2E = 1.4426950408889634

P_X, P_LRE, P_LIM, P_BRE, P_BIM, P_CRE, P_CIM, P_LDT = 4, 6, 8, 10, 12, 14, 16, 18
P_DSK, P_W1, P_W2, P_W3, P_W4, P_OUT, P_DBG, P_WS = 20, 24, 26, 28, 30, 32, 34, 36
sX, sWS, sWA, sWB, sW2, sMI, sCRE, sCIM = 40, 44, 48, 52, 56, 60, 64, 68
(sG, sJ, sW, sT0, sNON, sRH, sC, sOFF5, sOFF1, sW1K, sI512, sK3, sONE,
 sHP, sX1a, sX1b, sH, sU, sC128, sCrow, sJ256) = range(72, 93)
sT = 93


def fhex(x):
    return "0x%08x" % struct.unpack("<I", struct.pack("<f", x))[0]


def srd(k, s, p, nbytes):
    k(f"""s_mov_b32 s{s}, s{p}
    s_mov_b32 s{s+1}, s{p+1}
    s_mov_b32 s{s+2}, {nbytes}
    s_mov_b32 s{s+3}, 0x00020000""")


class VA:
    def __init__(self, lo=2, hi=256):
        self.free = list(range(lo, hi))
    def clone(self):
        v = VA(0, 0)
        v.free = list(self.free)
        return v
    def get(self, n=1, align=1):
        if n > 1 and align == 1:
            align = 4 if n >= 4 else 2
        fs = set(self.free)
        for b in self.free:
            if b % align == 0 and all((b + i) in fs for i in range(n)):
                for i in range(n):
                    self.free.remove(b + i)
                return b
        raise RuntimeError("out of VGPRs")
    def put(self, b, n=1):
        for i in range(n):
            assert (b + i) not in self.free, b + i
            self.free.append(b + i)
        self.free.sort()


def vr(b, n):
    return f"v[{b}:{b+n-1}]" if n > 1 else f"v{b}"


class Sched:
    def __init__(self):
        self.owner = [None] * NUNIT
        self.items = []
        self.unit_of = {}
        self.flags = set()
        self.reserve = 4
        self.log = []
    def clone(self):
        s = Sched()
        s.owner = list(self.owner); s.items = list(self.items); s.unit_of = dict(self.unit_of)
        s.flags = set(self.flags); s.reserve = self.reserve
        return s
    def add(self, name, flag, emit):
        self.items.append(dict(name=name, flag=flag, emit=emit))
    def free(self, name):
        self.owner[self.unit_of[name]] = None
    def base(self, name):
        return UNIT0 + UNIT * self.unit_of[name]
    def issue(self, c, maxn=99):
        n = 0
        blocked = 0
        for it in self.items:
            if it["name"] in self.unit_of:
                continue
            fr = [u for u in range(NUNIT) if self.owner[u] is None]
            if it["flag"] is not None and it["flag"] not in self.flags:
                blocked = min(blocked + 1, self.reserve)
                continue
            if len(fr) - blocked <= 0 or n >= maxn:
                break
            u = fr[0]
            self.owner[u] = it["name"]
            self.unit_of[it["name"]] = u
            it["emit"](c, UNIT0 + UNIT * u, it["name"])
            c.k.comment(f"issued {it['name']} -> unit {u}")
            n += 1


class Ctx:
    def __init__(self, role, opts, va, sched):
        self.k = Prog(role)
        self.role = role
        self.va = va
        self.hi = {}
        self.opts = opts
        self.sched = sched

    def ds(self, base, absoff):
        h = absoff >> 16
        imm = absoff & 0xFFFF
        if h == 0:
            r = base
        else:
            if (base, h) not in self.hi:
                r = self.va.get()
                self.k(f"v_add_u32 v{r}, {h << 16}, v{base}")
                self.hi[(base, h)] = r
            r = self.hi[(base, h)]
        return f"v{r}", (f" offset:{imm}" if imm else "")

    def pre_hi(self, base, hs=(1, 2)):
        for h in hs:
            self.ds(base, h << 16)

    def free_base(self, base):
        for key in [x for x in self.hi if x[0] == base]:
            self.va.put(self.hi.pop(key))
        self.va.put(base)

    def dsr(self, mn, dst, n, base, absoff, tag=None):
        r, o = self.ds(base, absoff)
        return self.k(f"{mn} {vr(dst, n)}, {r}{o}", tag=tag)

    def dsw(self, mn, base, absoff, src, n):
        r, o = self.ds(base, absoff)
        return self.k(f"{mn} {r}, {vr(src, n)}{o}")

    def dma(self, voff, srd_, soff, lds, inst=0, sc1=False, tag=None, sadd=None, wave=True):
        k = self.k
        imm = lds - inst
        assert imm >= 0
        if wave:
            k(f"s_add_u32 m0, s{sW1K}, {imm}")
        else:
            k(f"s_mov_b32 m0, {imm}")
        if sadd is not None:
            k(f"s_add_u32 s{sT+8}, s{sadd[0]}, {sadd[1]}")
            soff = f"s{sT+8}"
        o = f" offset:{inst}" if inst else ""
        k(f"buffer_load_dwordx4 v{voff}, s[{srd_}:{srd_+3}], {soff} offen{o}{' sc1' if sc1 else ''} lds", tag=tag)

    def bf16r(self, d, s):
        self.k(f"v_cvt_pk_bf16_f32 v{d}, v{s}, v{s}\nv_and_b32 v{d}, 0xffff0000, v{d}")

    def barrier(self, free=(), issue=True):
        self.k("s_barrier")
        for f in free:
            self.sched.free(f)
        if issue:
            self.sched.issue(self)

    def stamp(self, idx):
        if not self.opts.get("stamps"):
            return
        k = self.k
        t = self.va.get(2)
        k(f"""s_memtime s[{sT+5}:{sT+6}]
        s_waitcnt lgkmcnt(0)
        v_mov_b32 v{t}, s{sT+5}
        s_lshl_b32 s{sT+5}, s2, 8
        s_lshl_b32 s{sT+6}, s{sW}, 5
        s_add_u32 s{sT+5}, s{sT+5}, s{sT+6}
        s_lshl_b32 s{sT+5}, s{sT+5}, 2
        s_add_u32 s{sT+5}, s{sT+5}, {WS_STAMP + idx*4}
        v_mov_b32 v{t+1}, s{sT+5}
        s_mov_b64 exec, 1
        buffer_store_dword v{t}, v{t+1}, s[{sWS}:{sWS+3}], 0 offen
        s_mov_b64 exec, -1""")
        self.va.put(t, 2)


class G:
    pass


def prologue(c, g):
    k, va = c.k, c.va
    k(f"""
    s_cmp_ge_u32 s2, 256
    s_cbranch_scc1 L_exit
    s_load_dwordx16 s[4:19], s[0:1], 0
    s_load_dwordx16 s[20:35], s[0:1], 64
    s_load_dwordx2 s[36:37], s[0:1], 128
    v_lshrrev_b32 v2, 6, v0
    v_and_b32 v1, 63, v0
    v_readfirstlane_b32 s{sW}, v2
    s_and_b32 s{sG}, s2, 7
    s_lshl_b32 s{sG}, s{sG}, 1
    s_lshr_b32 s{sT}, s2, 7
    s_add_u32 s{sG}, s{sG}, s{sT}
    s_lshr_b32 s{sJ}, s2, 3
    s_and_b32 s{sJ}, s{sJ}, 15
    s_lshl_b32 s{sT0}, s{sG}, 7
    s_and_b32 s{sRH}, s{sJ}, 1
    s_lshr_b32 s{sC}, s{sJ}, 1
    s_lshr_b32 s{sT}, s{sC}, 1
    s_and_b32 s{sT+1}, s{sT}, 1
    s_lshl_b32 s{sT+1}, s{sT+1}, 1
    s_sub_u32 s{sOFF5}, 2, s{sT+1}
    s_cmp_lt_u32 s{sT}, 2
    s_cselect_b32 s{sOFF1}, 1, s{sT+1}
    s_lshl_b32 s{sW1K}, s{sW}, 10
    s_mov_b32 s{sI512}, {fhex(1/512)}
    s_mov_b32 s{sK3}, {fhex(-K3)}
    s_mov_b32 s{sONE}, 0x3f803f80
    s_lshl_b32 s{sC128}, s{sC}, 7
    s_lshl_b32 s{sCrow}, s{sC}, 16
    s_lshl_b32 s{sJ256}, s{sJ}, 8
    s_lshl_b32 s{sT}, s{sRH}, 6
    s_add_u32 s{sT}, s{sT}, s{sT0}
    s_lshl_b32 s{sHP}, s{sT}, 10
    s_lshl_b32 s{sH}, s{sT}, 11
    s_add_u32 s{sH}, s{sH}, {WS_H}
    s_mul_i32 s{sU}, s{sT}, 3584
    s_add_u32 s{sU}, s{sU}, {WS_U}
    s_lshl_b32 s{sX1a}, s{sT0}, 10
    s_add_u32 s{sX1a}, s{sX1a}, {WS_X1}
    s_add_u32 s{sX1b}, s{sX1a}, 65536
    """)
    assert WS_HP == 0
    g.vR1k, g.vK1k = va.get(), va.get()
    g.vX0, g.vX1, g.vB = va.get(), va.get(), va.get()
    g.vnon = va.get()
    g.srow = va.get(4)
    r8, pos, t, u, f = [va.get() for _ in range(5)]
    k(f"""v_lshrrev_b32 v{r8}, 3, v1
    v_and_b32 v{pos}, 7, v1
    s_and_b32 s{sT}, s{sW}, 1
    s_lshl_b32 s{sT+1}, s{sT}, 2
    v_lshrrev_b32 v{u}, 1, v{r8}
    v_or_b32 v{f}, s{sT+1}, v{u}
    v_xor_b32 v{f}, v{f}, v{pos}
    v_lshlrev_b32 v{f}, 4, v{f}
    s_lshl_b32 s{sT+2}, s{sW}, 3
    v_add_u32 v{t}, s{sT+2}, v{r8}              ; 8w+r8
    v_lshl_add_u32 v{g.vR1k}, v{t}, 10, v{f}
    s_sub_u32 s{sT+3}, s{sT0}, s{sOFF5}
    s_lshl_b32 s{sT+3}, s{sT+3}, 10
    v_add_u32 v{g.vX0}, s{sT+3}, v{g.vR1k}
    v_add_u32 v{g.vX1}, 0x10000, v{g.vX0}
    v_and_b32 v{u}, 1, v{u}
    s_lshl_b32 s{sT+1}, s{sT}, 1
    v_or_b32 v{u}, s{sT+1}, v{u}
    v_lshlrev_b32 v{u}, 1, v{u}
    v_xor_b32 v{u}, v{u}, v{pos}
    v_lshlrev_b32 v{u}, 4, v{u}
    v_lshl_add_u32 v{g.vK1k}, v{t}, 10, v{u}
    v_and_b32 v{g.vB}, 0x7fff, v{g.vR1k}
    s_lshl_b32 s{sT}, s{sJ}, 15
    v_add_u32 v{g.vB}, s{sT}, v{g.vB}
    s_lshl_b32 s{sT}, s{sJ}, 3
    s_add_u32 s{sT}, s{sT}, s{sT0}
    s_add_u32 s{sT}, s{sT}, s{sW}
    s_lshl_b32 s{sT}, s{sT}, 10
    v_lshlrev_b32 v{t}, 4, v1
    v_mov_b32 v{g.vnon}, 0
    s_mov_b32 s{sT+1}, {WS_NONCE}
    s_waitcnt lgkmcnt(0)
    """)
    srd(k, sX, P_X, 2048 * 1024)
    srd(k, sWS, P_WS, 0x10000000)
    k(f"""buffer_load_dword v{g.vnon}, v{g.vnon}, s[{sWS}:{sWS+3}], s{sT+1} offen sc1
    buffer_load_dwordx4 {vr(g.srow,4)}, v{t}, s[{sX}:{sX+3}], s{sT} offen""")
    srd(k, sWA, P_W1, 512 * 1024)
    srd(k, sW2, P_W2, 512 * 1024)
    for r in (r8, pos, t, u, f):
        va.put(r)
    k(f"""
    s_cmp_ge_u32 s{sW}, 4
    s_cbranch_scc1 L_roleB
    """)


def wave_sum(c, S, x):
    k = c.k
    for m in ("quad_perm:[1,0,3,2]", "quad_perm:[2,3,0,1]", "row_half_mirror", "row_mirror"):
        for s in S:
            k(f"v_add_f32_dpp v{s}, v{s}, v{s} {m} row_mask:0xf bank_mask:0xf")
    for sw in ("v_permlane16_swap_b32", "v_permlane32_swap_b32"):
        for s, xx in zip(S, x):
            k(f"v_mov_b32 v{xx}, v{s}")
        for s, xx in zip(S, x):
            k(f"{sw} v{s}, v{xx}")
        for s, xx in zip(S, x):
            k(f"v_add_f32 v{s}, v{s}, v{xx}")


def stat_publish(c, g):
    k, va = c.k, c.va
    S1, S2 = va.get(), va.get()
    t = va.get(8)
    mean, var, m1, d1, a1, m2, d2, x = range(t, t + 8)
    o = va.get(4)
    k(f"v_mov_b32 v{S1}, 0\nv_mov_b32 v{S2}, 0")
    for i in range(4):
        k(f"v_dot2c_f32_bf16 v{S1}, s{sONE}, v{g.srow+i}\nv_dot2c_f32_bf16 v{S2}, v{g.srow+i}, v{g.srow+i}")
    wave_sum(c, [S1, S2], [mean, var])
    k(f"""v_mul_f32 v{mean}, {fhex(1/512)}, v{S1}
    v_mul_f32 v{x}, v{mean}, v{mean}
    v_fma_f32 v{var}, v{S2}, s{sI512}, -v{x}
    v_max_f32 v{var}, 0, v{var}""")
    c.bf16r(m1, mean)
    c.bf16r(x, var)
    k(f"v_add_f32 v{x}, {fhex(EPS)}, v{x}")
    c.bf16r(x, x)
    k(f"v_sqrt_f32 v{x}, v{x}")
    c.bf16r(d1, x)
    k(f"""v_rcp_f32 v{a1}, v{d1}
    v_sub_f32 v{x}, v{mean}, v{m1}
    v_mul_f32 v{m2}, v{x}, v{a1}
    v_mul_f32 v{x}, v{var}, v{a1}
    v_mul_f32 v{x}, v{x}, v{a1}""")
    c.bf16r(x, x)
    k(f"v_add_f32 v{x}, {fhex(EPS)}, v{x}")
    c.bf16r(x, x)
    k(f"""v_sqrt_f32 v{d2}, v{x}
    v_cvt_pk_bf16_f32 v{o}, v{m1}, v{d1}
    v_cvt_pk_bf16_f32 v{o+2}, v{m2}, v{d2}
    v_readfirstlane_b32 s{sNON}, v{g.vnon}
    s_add_u32 s{sNON}, s{sNON}, 1
    v_mov_b32 v{o+1}, s{sNON}
    v_mov_b32 v{o+3}, s{sNON}
    s_lshl_b32 s{sT}, s{sJ}, 3
    s_add_u32 s{sT}, s{sT}, s{sT0}
    s_add_u32 s{sT}, s{sT}, s{sW}
    s_lshl_b32 s{sT}, s{sT}, 4
    s_add_u32 s{sT}, s{sT}, {WS_RS}
    v_mov_b32 v{x}, 0
    s_mov_b64 exec, 1
    buffer_store_dwordx4 {vr(o,4)}, v{x}, s[{sWS}:{sWS+3}], s{sT} offen sc1
    s_mov_b64 exec, -1""")
    va.put(S1); va.put(S2); va.put(t, 8); va.put(o, 4)
    va.put(g.srow, 4); va.put(g.vnon)


def gelu_many(c, xs):
    k, va = c.k, c.va
    ts = [va.get() for _ in xs]
    kk = va.get()
    k(f"v_mov_b32 v{kk}, {fhex(-K1)}")
    for x, t in zip(xs, ts):
        k(f"v_mul_f32 v{t}, v{x}, v{x}")
    for x, t in zip(xs, ts):
        k(f"v_fma_f32 v{t}, v{t}, s{sK3}, v{kk}")
    for x, t in zip(xs, ts):
        k(f"v_mul_f32 v{t}, v{t}, v{x}")
    for x, t in zip(xs, ts):
        k(f"v_exp_f32 v{t}, v{t}")
    for x, t in zip(xs, ts):
        k(f"v_add_f32 v{t}, 1.0, v{t}")
    for x, t in zip(xs, ts):
        k(f"v_rcp_f32 v{t}, v{t}")
    for x, t in zip(xs, ts):
        k(f"v_mul_f32 v{x}, v{x}, v{t}")
    for t in ts:
        va.put(t)
    va.put(kk)


def p1_issue(c, g, s):
    k = c.k
    sl = RING0 + (s % 4) * SLOT
    c.dma(g.vX0, sX, 0, sl, inst=s * 128)
    c.dma(g.vX1, sX, 0, sl + 8192, inst=s * 128)
    if c.role == "B":
        k("s_mov_b64 exec, 0xffff")
        c.dma(c.vXh, sX, 0, sl + 16384, inst=s * 128, wave=False)
        k("s_mov_b64 exec, -1")
    c.dma(g.vK1k, sWA, None, sl + XW1, sadd=(sC128, s * 65536))
    c.dma(g.vB, sWB, 0, sl + XB, inst=s * 128, tag=f"p1s{s}")


def p1_step_sync(c, g, s):
    k = c.k
    k.waitvm(f"p1s{s}")
    k("s_barrier")
    if 1 <= s and s + 3 < 8:
        p1_issue(c, g, s + 3)
    sc = c.sched
    rel = {4: [8], 5: [0], 6: [1, 2], 7: [3, 4]}.get(s, [])
    for u in rel:
        sc.owner[u] = None
    if s >= 4:
        sc.issue(c)


def flag_store(c, phase):
    k, va = c.k, c.va
    t = va.get(2)
    lab = k.label("L_fs")
    k(f"""s_cmp_lg_u32 s{sW}, 0
    s_cbranch_scc1 {lab}""")
    k.region_begin("W0")
    k(f"""s_lshl_b32 s{sT}, s{sG}, 7
    s_lshl_b32 s{sT+1}, s{sRH}, 5
    s_add_u32 s{sT}, s{sT}, s{sT+1}
    s_lshl_b32 s{sT+1}, s{sC}, 2
    s_add_u32 s{sT}, s{sT}, s{sT+1}
    s_add_u32 s{sT}, s{sT}, {WS_FL + phase * 2048}
    v_mov_b32 v{t}, s{sT}
    v_mov_b32 v{t+1}, s{sNON}
    s_mov_b64 exec, 1
    buffer_store_dword v{t+1}, v{t}, s[{sWS}:{sWS+3}], 0 offen sc1
    s_mov_b64 exec, -1""")
    k.region_end()
    k(f"{lab}:")
    va.put(t, 2)


def flag_wait(c, phase, mask_kind, free=()):
    k, va = c.k, c.va
    t = va.get(2)
    lab = k.label("L_fw")
    loop = k.label("L_fl")
    done = k.label("L_fd")
    k(f"""s_cmp_lg_u32 s{sW}, 0
    s_cbranch_scc1 {lab}""")
    k.region_begin("W0")
    k(f"""s_lshl_b32 s{sT}, s{sG}, 7
    s_add_u32 s{sT}, s{sT}, {WS_FL + phase * 2048}
    v_lshlrev_b32 v{t}, 2, v1
    v_add_u32 v{t}, s{sT}, v{t}
    s_mov_b32 s{sT+1}, {SPIN}""")
    if mask_kind == "half":
        k(f"""s_lshl_b32 s{sT+2}, s{sRH}, 3
        s_lshl_b64 exec, 0xff, s{sT+2}""")
    elif mask_kind == "all":
        k("s_mov_b64 exec, 0xffff")
    else:
        k("s_mov_b64 exec, 0x7f7f")
    k(f"""{loop}:
    buffer_load_dword v{t+1}, v{t}, s[{sWS}:{sWS+3}], 0 offen sc1
    s_waitcnt vmcnt(0)
    v_cmp_ne_u32 vcc, s{sNON}, v{t+1}
    s_cbranch_vccz {done}
    s_sub_u32 s{sT+1}, s{sT+1}, 1
    s_cmp_lg_u32 s{sT+1}, 0
    s_cbranch_scc1 {loop}
    {done}:
    s_mov_b64 exec, -1""")
    k.region_end()
    k(f"{lab}:")
    va.put(t, 2)
    c.sched.flags.add(phase)
    k("s_waitcnt lgkmcnt(0)")
    c.barrier(free=free)


def cmad(k, dr, di, ar, ai, br, bi, cr, ci):
    assert dr not in (br, bi) and di not in (br, bi)
    k(f"""v_fma_f32 v{dr}, v{ar}, v{br}, v{cr}
    v_fma_f32 v{di}, v{ar}, v{bi}, v{ci}
    v_fma_f32 v{dr}, -v{ai}, v{bi}, v{dr}
    v_fma_f32 v{di}, v{ai}, v{br}, v{di}""")


def csq(k, r, i, t):
    k(f"""v_mul_f32 v{t}, v{i}, v{i}
    v_fma_f32 v{t}, v{r}, v{r}, -v{t}
    v_mul_f32 v{i}, v{r}, v{i}
    v_add_f32 v{i}, v{i}, v{i}
    v_mov_b32 v{r}, v{t}""")


def p1_roleA(c, g):
    k, va = c.k, c.va
    srd(k, sWB, P_BRE, 512 * 1024)
    i32, hf, t, u = va.get(), va.get(), va.get(), va.get()
    lre, lim, ldt = va.get(), va.get(), va.get()
    k(f"""v_and_b32 v{i32}, 31, v1
    v_lshrrev_b32 v{hf}, 5, v1
    s_lshl_b32 s{sT}, s{sJ}, 6
    v_lshlrev_b32 v{t}, 1, v{i32}""")
    for p, d in ((P_LRE, lre), (P_LIM, lim), (P_LDT, ldt)):
        srd(k, sMI, p, 1024)
        k(f"buffer_load_ushort v{d}, v{t}, s[{sMI}:{sMI+3}], s{sT} offen")
    for s in range(4):
        p1_issue(c, g, s)
    c.stamp(0)
    aA = [va.get() for _ in range(4)]
    aB = [va.get() for _ in range(4)]
    k(f"""v_lshrrev_b32 v{t}, 2, v{i32}
    v_and_b32 v{t}, 1, v{t}
    v_lshlrev_b32 v{t}, 4, v{t}              ; 16*((i>>2)&1)
    v_lshrrev_b32 v{u}, 3, v{i32}
    v_lshl_add_u32 v{t}, v{u}, 2, v{t}       ; +4*(i>>3)
    v_and_b32 v{u}, 3, v{i32}
    v_add_u32 v{t}, v{t}, v{u}               ; tau
    s_lshl_b32 s{sT}, s{sW}, 5
    s_add_u32 s{sT}, s{sT}, s{sOFF5}
    v_add_u32 v{t}, s{sT}, v{t}              ; rho
    v_bfe_u32 v{u}, v{t}, 1, 3
    v_xor_b32 v{u}, v{u}, v{hf}
    v_lshlrev_b32 v{u}, 4, v{u}
    v_lshl_add_u32 v{aA[0]}, v{t}, 7, v{u}
    v_bfe_u32 v{u}, v{i32}, 1, 3
    v_xor_b32 v{u}, v{u}, v{hf}
    v_lshlrev_b32 v{u}, 4, v{u}
    v_lshl_add_u32 v{aB[0]}, v{i32}, 7, v{u}
    s_lshl_b32 s{sT}, s{sW}, 5
    v_xor_b32 v{aA[0]}, s{sT}, v{aA[0]}
    v_xor_b32 v{aB[0]}, s{sT}, v{aB[0]}""")
    for i in range(1, 4):
        k(f"v_xor_b32 v{aA[i]}, {i*32}, v{aA[0]}\nv_xor_b32 v{aB[i]}, {i*32}, v{aB[0]}")
    for a in aA + aB:
        c.pre_hi(a, (1,))
    stat_publish(c, g)
    accr, acci = va.get(16), va.get(16)
    csr, csi = va.get(), va.get()
    k(f"v_mov_b32 v{csr}, 0\nv_mov_b32 v{csi}, 0")
    fa = [va.get(4) for _ in range(4)]
    fr = [va.get(4) for _ in range(4)]
    fi = [va.get(4) for _ in range(4)]
    lr, li, kr, ki, l16r, l16i, l128r, l128i = [va.get() for _ in range(8)]
    dt, e, x2 = va.get(), va.get(), va.get()
    k(f"""v_lshlrev_b32 v{lre}, 16, v{lre}
    v_lshlrev_b32 v{lim}, 16, v{lim}
    v_lshlrev_b32 v{ldt}, 16, v{ldt}
    v_mul_f32 v{dt}, {fhex(LOG2E)}, v{ldt}
    v_exp_f32 v{dt}, v{dt}""")
    c.bf16r(dt, dt)
    k(f"""v_mul_f32 v{e}, v{dt}, v{lre}
    v_mul_f32 v{e}, {fhex(LOG2E)}, v{e}
    v_exp_f32 v{e}, v{e}
    v_mul_f32 v{x2}, v{dt}, v{lim}
    v_mul_f32 v{x2}, {fhex(0.15915494309189535)}, v{x2}
    v_cos_f32 v{lr}, v{x2}
    v_sin_f32 v{li}, v{x2}
    v_mul_f32 v{lr}, v{lr}, v{e}
    v_mul_f32 v{li}, v{li}, v{e}
    v_mul_f32 v{e}, v{lre}, v{lre}
    v_fma_f32 v{e}, v{lim}, v{lim}, v{e}
    v_rcp_f32 v{e}, v{e}
    v_add_f32 v{x2}, -1.0, v{lr}             ; (lam-1).re
    v_mul_f32 v{kr}, v{x2}, v{lre}
    v_fma_f32 v{kr}, v{li}, v{lim}, v{kr}    ; re((lam-1)*conj(L))
    v_mul_f32 v{ki}, v{li}, v{lre}
    v_fma_f32 v{ki}, -v{x2}, v{lim}, v{ki}   ; im
    v_add_f32 v{e}, v{e}, v{e}
    v_mul_f32 v{kr}, v{kr}, v{e}             ; 2*coef
    v_mul_f32 v{ki}, v{ki}, v{e}
    v_mov_b32 v{l16r}, v{lr}
    v_mov_b32 v{l16i}, v{li}""")
    for _ in range(4):
        csq(k, l16r, l16i, x2)
    k(f"v_mov_b32 v{l128r}, v{l16r}\nv_mov_b32 v{l128i}, v{l16i}")
    for _ in range(3):
        csq(k, l128r, l128i, x2)
    for r in (lre, lim, ldt, dt, e, x2):
        va.put(r)
    for s in range(8):
        p1_step_sync(c, g, s)
        sl = RING0 + (s % 4) * SLOT
        for i in range(4):
            c.dsr("ds_read_b128", fa[i], 4, aA[i], sl)
            c.dsr("ds_read_b128", fr[i], 4, aB[i], sl + XB)
            c.dsr("ds_read_b128", fi[i], 4, aB[i], sl + XB + 4096)
        for i in range(4):
            z = (s == 0 and i == 0)
            k(f"v_mfma_f32_32x32x16_bf16 {vr(accr,16)}, {vr(fa[i],4)}, {vr(fr[i],4)}, {'0' if z else vr(accr,16)}")
            k(f"v_mfma_f32_32x32x16_bf16 {vr(acci,16)}, {vr(fa[i],4)}, {vr(fi[i],4)}, {'0' if z else vr(acci,16)}")
            if i == 0:
                for r in range(4):
                    k(f"v_dot2c_f32_bf16 v{csr}, s{sONE}, v{fr[0]+r}\nv_dot2c_f32_bf16 v{csi}, s{sONE}, v{fi[0]+r}")
    for a in aA + aB:
        c.free_base(a)
    for f in fa + fr + fi:
        va.put(f, 4)
    k(f"""v_permlane32_swap_b32 v{csr}, v{csi}
    v_add_f32 v{csr}, v{csr}, v{csi}
    v_lshlrev_b32 v{t}, 5, v{i32}
    v_lshl_add_u32 v{u}, v{hf}, 2, v{t}
    s_lshl_b32 s{sT}, s{sW}, 3
    v_add_u32 v{u}, s{sT}, v{u}""")
    c.dsw("ds_write_b32", u, CSB, csr, 1)
    k("s_waitcnt lgkmcnt(0)\ns_barrier")
    for uu in (5, 6, 7):
        c.sched.owner[uu] = None
    c.sched.issue(c)
    c.stamp(1)
    cs = va.get(8)
    c.dsr("ds_read_b128", cs, 4, t, CSB)
    c.dsr("ds_read_b128", cs + 4, 4, t, CSB + 16)
    c.free_base(t); c.free_base(u)
    st = va.get(32)
    t = va.get()
    k(f"""s_lshl_b32 s{sT}, s{sW}, 5
    s_add_u32 s{sT}, s{sT}, s{sOFF5}
    v_lshl_add_u32 v{t}, v{hf}, 4, s{sT}
    v_lshlrev_b32 v{t}, 3, v{t}""")
    for i in range(8):
        c.dsr("ds_read_b128", st + 4 * i, 4, t, ST_A + 16 * i)
    c.free_base(t)
    k(f"""v_add_f32 v{csr}, v{cs}, v{cs+2}
    v_add_f32 v{csi}, v{cs+1}, v{cs+3}
    v_add_f32 v{cs+4}, v{cs+4}, v{cs+6}
    v_add_f32 v{cs+5}, v{cs+5}, v{cs+7}
    v_add_f32 v{csr}, v{csr}, v{cs+4}
    v_add_f32 v{csi}, v{csi}, v{cs+5}""")
    va.put(cs, 8)
    t1, t2 = va.get(), va.get()
    for r in range(16):
        a, b = st + 2 * r, st + 2 * r + 1
        k(f"""v_mul_f32 v{t1}, v{b}, v{csr}
        v_mul_f32 v{t2}, v{b}, v{csi}
        v_fma_f32 v{accr+r}, v{a}, v{accr+r}, -v{t1}
        v_fma_f32 v{acci+r}, v{a}, v{acci+r}, -v{t2}""")
    va.put(st, 32); va.put(csr); va.put(csi); va.put(t1); va.put(t2)
    h = [va.get(2), va.get(2)]
    cur = (accr, acci)
    for r in range(1, 16):
        d = h[r & 1]
        cmad(k, d, d + 1, lr, li, cur[0], cur[1], accr + r, acci + r)
        cur = (d, d + 1)
    sega = va.get()
    k(f"""s_lshl_b32 s{sT}, s{sW}, 9
    v_lshlrev_b32 v{sega}, 3, v1
    v_add_u32 v{sega}, s{sT}, v{sega}""")
    c.dsw("ds_write_b64", sega, SEG, cur[0], 2)
    c.free_base(sega)
    k("s_waitcnt lgkmcnt(0)\ns_barrier")
    flag_store(c, 0)
    c.stamp(2)
    eseg = va.get(16)
    sega = va.get()
    k(f"v_lshlrev_b32 v{sega}, 3, v{i32}")
    for s in range(8):
        c.dsr("ds_read_b64", eseg + 2 * s, 2, sega, SEG + 256 * s)
    c.free_base(sega)
    cur = (eseg, eseg + 1)
    for s in range(1, 8):
        d = h[s & 1]
        cmad(k, d, d + 1, l16r, l16i, cur[0], cur[1], eseg + 2 * s, eseg + 2 * s + 1)
        cur = (d, d + 1)
    g4 = va.get(4)
    t = va.get()
    k(f"""v_mov_b32 v{g4}, v{cur[0]}
    v_mov_b32 v{g4+1}, s{sNON}
    v_mov_b32 v{g4+2}, v{cur[1]}
    v_mov_b32 v{g4+3}, s{sNON}
    s_lshl_b32 s{sT}, s{sG}, 13
    s_lshl_b32 s{sT+1}, s{sJ}, 9
    s_add_u32 s{sT}, s{sT}, s{sT+1}
    s_add_u32 s{sT}, s{sT}, {WS_E}
    v_lshlrev_b32 v{t}, 4, v{i32}
    s_mov_b64 exec, 0xffffffff
    buffer_store_dwordx4 {vr(g4,4)}, v{t}, s[{sWS}:{sWS+3}], s{sT} offen sc1
    s_mov_b64 exec, -1""")
    va.put(g4, 4); va.put(t); va.put(h[0], 2); va.put(h[1], 2)
    g.scan = dict(accr=accr, acci=acci, lr=lr, li=li, kr=kr, ki=ki, l16r=l16r, l16i=l16i, l128r=l128r, l128i=l128i,
                  eseg=eseg, i32=i32, hf=hf)


def kn_addr(c, aW0, aW1, tmp):
    t, u, q = tmp
    c.k(f"""v_lshrrev_b32 v{q}, 4, v1                   ; gq
    v_bfe_u32 v{t}, v1, 2, 2                    ; r'
    v_lshl_add_u32 v{u}, v{q}, 3, v{t}          ; 8gq+r'
    v_lshlrev_b32 v{aW0}, 7, v{u}
    v_lshrrev_b32 v{t}, 1, v{t}
    v_and_b32 v{u}, 1, v{q}
    v_lshl_add_u32 v{t}, v{u}, 1, v{t}          ; s
    v_lshlrev_b32 v{t}, 1, v{t}                 ; s<<1
    v_bfe_u32 v{u}, v1, 1, 1                    ; c4>>1
    s_and_b32 s{sT}, s{sW}, 1
    s_lshl_b32 s{sT}, s{sT}, 2
    v_add_u32 v{u}, s{sT}, v{u}
    v_xor_b32 v{u}, v{u}, v{t}
    v_lshl_add_u32 v{aW0}, v{u}, 4, v{aW0}
    v_and_b32 v{u}, 1, v1
    v_lshl_add_u32 v{aW0}, v{u}, 3, v{aW0}
    v_xor_b32 v{aW1}, 32, v{aW0}""")


def p1_roleB(c, g):
    k, va = c.k, c.va
    srd(k, sWB, P_BIM, 512 * 1024)
    t, u, w_, q = va.get(), va.get(), va.get(), va.get()
    c.vXh = va.get()
    k(f"""s_add_u32 s{sT}, s{sT0}, 128
    s_sub_u32 s{sT}, s{sT}, s{sOFF5}
    s_lshl_b32 s{sT}, s{sT}, 10
    v_lshrrev_b32 v{t}, 3, v1
    v_lshlrev_b32 v{t}, 10, v{t}
    v_and_b32 v{u}, 7, v1
    v_lshl_add_u32 v{t}, v{u}, 4, v{t}
    v_add_u32 v{c.vXh}, s{sT}, v{t}""")
    for s in range(4):
        p1_issue(c, g, s)
    c.stamp(0)
    aW = [va.get(), va.get()]
    aXr = [va.get(), va.get()]
    kn_addr(c, aW[0], aW[1], (t, u, q))
    k(f"""s_and_b32 s{sT+3}, s{sW}, 1            ; nh
    s_bfe_u32 s{sT+4}, s{sW}, 0x10001           ; th
    s_lshl_b32 s{sT}, s{sRH}, 6
    s_lshl_b32 s{sT+1}, s{sT+4}, 5
    s_add_u32 s{sT}, s{sT}, s{sT+1}
    s_add_u32 s{sT+2}, s{sT}, s{sOFF1}
    v_and_b32 v{w_}, 15, v1
    v_add_u32 v{t}, s{sT+2}, v{w_}              ; rho
    v_bfe_u32 v{u}, v{t}, 1, 3
    v_xor_b32 v{u}, v{u}, v{q}
    v_lshlrev_b32 v{u}, 4, v{u}
    v_lshl_add_u32 v{aXr[0]}, v{t}, 7, v{u}
    v_xor_b32 v{aXr[1]}, 64, v{aXr[0]}""")
    vst = va.get()
    vo = va.get()
    k(f"""v_lshlrev_b32 v{vst}, 3, v{t}
    s_add_u32 s{sT}, s{sT}, s{sT0}
    v_add_u32 v{t}, s{sT}, v{w_}
    v_lshlrev_b32 v{vo}, 10, v{t}
    v_and_b32 v{u}, 1, v{q}
    v_lshl_add_u32 v{vo}, v{u}, 5, v{vo}
    v_lshrrev_b32 v{u}, 1, v{q}
    v_lshl_add_u32 v{vo}, v{u}, 4, v{vo}
    s_lshl_b32 s{sT+1}, s{sT+3}, 6
    s_add_u32 s{sT}, s{sC128}, s{sT+1}
    v_add_u32 v{vo}, s{sT}, v{vo}""")
    vrho, vrs, vok = va.get(), va.get(), va.get()
    k(f"""s_and_b32 s{sT}, s{sW}, 3
    s_lshl_b32 s{sT+1}, s{sT}, 6
    v_add_u32 v{vrho}, s{sT+1}, v1
    v_and_b32 v{u}, 1, v1
    v_add_u32 v{u}, 128, v{u}
    s_cmp_lt_u32 s{sT}, 2
    s_cselect_b64 vcc, -1, 0
    v_cndmask_b32 v{vrho}, v{u}, v{vrho}, vcc
    s_sub_u32 s{sT}, s{sT0}, s{sOFF5}
    v_add_u32 v{u}, s{sT}, v{vrho}
    v_max_i32 v{t}, 0, v{u}
    v_min_i32 v{t}, 2047, v{t}
    v_cmp_eq_u32 vcc, v{t}, v{u}
    v_cndmask_b32 v{vok}, 0, 1.0, vcc
    v_lshlrev_b32 v{vrs}, 4, v{t}
    v_lshlrev_b32 v{vrho}, 3, v{vrho}""")
    for r in (t, u, w_, q):
        va.put(r)
    for a in aW + aXr:
        c.pre_hi(a, (1,))
    for a in (vrho, vst):
        c.pre_hi(a, (2,))
    stat_publish(c, g)
    acc = [[va.get(4) for tt in range(2)] for a in range(2)]
    cs = [va.get(4) for a in range(2)]
    ones = va.get(4)
    for i in range(4):
        k(f"v_mov_b32 v{ones+i}, s{sONE}")
    fA = [[va.get(4) for a in range(2)] for ks in range(2)]
    fB = [[va.get(4) for tt in range(2)] for ks in range(2)]
    rs = va.get(4)
    for s in range(8):
        p1_step_sync(c, g, s)
        if s == 4:
            k(f"s_mov_b32 s{sT}, {WS_RS}")
            k(f"buffer_load_dwordx4 {vr(rs,4)}, v{vrs}, s[{sWS}:{sWS+3}], s{sT} offen sc1")
        sl = RING0 + (s % 4) * SLOT
        for ks in range(2):
            for a in range(2):
                for uu in range(2):
                    c.dsr("ds_read_b64_tr_b16", fA[ks][a] + 2 * uu, 2, aW[a], sl + XW1 + (32 * ks + 4 * uu) * 128)
            for tt in range(2):
                c.dsr("ds_read_b128", fB[ks][tt], 4, aXr[ks], sl + tt * 2048)
        if s == 7:
            stat_consume(c, rs, vrs, vrho, vok)
        for ks in range(2):
            z = (s == 0 and ks == 0)
            for a in range(2):
                for tt in range(2):
                    k(f"v_mfma_f32_16x16x32_bf16 {vr(acc[a][tt],4)}, {vr(fA[ks][a],4)}, {vr(fB[ks][tt],4)}, {'0' if z else vr(acc[a][tt],4)}")
                k(f"v_mfma_f32_16x16x32_bf16 {vr(cs[a],4)}, {vr(fA[ks][a],4)}, {vr(ones,4)}, {'0' if z else vr(cs[a],4)}")
    for a in aW + aXr:
        c.free_base(a)
    for f in fA[0] + fA[1] + fB[0] + fB[1] + [ones, rs]:
        va.put(f, 4)
    va.put(c.vXh); va.put(vrs); va.put(vok); c.free_base(vrho)
    k("s_waitcnt lgkmcnt(0)\ns_barrier")
    for uu in (5, 6, 7):
        c.sched.owner[uu] = None
    c.sched.issue(c)
    c.stamp(1)
    ab = [va.get(2), va.get(2)]
    for tt in range(2):
        c.dsr("ds_read_b64", ab[tt], 2, vst, ST_B + tt * 128)
    c.free_base(vst)
    t = va.get()
    for tt in range(2):
        for a in range(2):
            for r in range(4):
                k(f"""v_mul_f32 v{t}, v{ab[tt]+1}, v{cs[a]+r}
                v_fma_f32 v{acc[a][tt]+r}, v{ab[tt]}, v{acc[a][tt]+r}, -v{t}""")
    va.put(t)
    for tt in range(2):
        gelu_many(c, [acc[a][tt] + r for a in range(2) for r in range(4)])
        P = va.get(4)
        for a in range(2):
            for i in range(2):
                k(f"v_cvt_pk_bf16_f32 v{P+2*a+i}, v{acc[a][tt]+2*i}, v{acc[a][tt]+2*i+1}")
        for i in range(2):
            k(f"v_permlane16_swap_b32 v{P+i}, v{P+2+i}")
        k(f"s_mov_b32 s{sT}, {WS_HP + tt*16*1024}")
        k(f"buffer_store_dwordx4 {vr(P,4)}, v{vo}, s[{sWS}:{sWS+3}], s{sT} offen sc1", tag=f"hp{tt}")
        va.put(P, 4)
    for a in range(2):
        va.put(cs[a], 4); va.put(ab[a], 2)
        for tt in range(2):
            va.put(acc[a][tt], 4)
    va.put(vo)
    k.waitvm("hp1")
    k("s_barrier")
    c.stamp(2)


def stat_consume(c, rs, vrs, vrho, vok):
    k, va = c.k, c.va
    loop, done = k.label("L_sl"), k.label("L_sd")
    t = va.get(8)
    m1, d1, m2, d2, a1, a2, x, y = range(t, t + 8)
    k(f"""v_mov_b32 v{x}, v{rs+1}
    s_mov_b32 s{sT+1}, {SPIN}
    s_mov_b32 s{sT}, {WS_RS}
    {loop}:
    v_xor_b32 v{x}, s{sNON}, v{rs+1}
    v_xor_b32 v{y}, s{sNON}, v{rs+3}
    v_or_b32 v{x}, v{x}, v{y}
    v_cmp_ne_u32 vcc, 0, v{x}
    s_cbranch_vccz {done}""")
    k.region_begin()
    k(f"""buffer_load_dwordx4 {vr(rs,4)}, v{vrs}, s[{sWS}:{sWS+3}], s{sT} offen sc1
    s_waitcnt vmcnt(0)
    s_sub_u32 s{sT+1}, s{sT+1}, 1
    s_cmp_lg_u32 s{sT+1}, 0
    s_cbranch_scc1 {loop}""")
    k.region_end()
    o = [va.get(2) for _ in range(3)]
    k(f"""{done}:
    v_lshlrev_b32 v{m1}, 16, v{rs}
    v_and_b32 v{d1}, 0xffff0000, v{rs}
    v_lshlrev_b32 v{m2}, 16, v{rs+2}
    v_and_b32 v{d2}, 0xffff0000, v{rs+2}
    v_rcp_f32 v{a1}, v{d1}
    v_rcp_f32 v{a2}, v{d2}
    v_mul_f32 v{m1}, v{m1}, v{vok}
    v_mul_f32 v{m2}, v{m2}, v{vok}
    v_mov_b32 v{o[0]}, v{a1}
    v_mul_f32 v{o[0]+1}, v{m1}, v{a1}
    v_mul_f32 v{o[1]}, v{a1}, v{a2}
    v_fma_f32 v{x}, v{m2}, v{d1}, v{m1}
    v_mul_f32 v{o[1]+1}, v{x}, v{o[1]}
    v_mov_b32 v{o[2]}, v{m1}
    v_mov_b32 v{o[2]+1}, v{a1}""")
    for oo, st in zip(o, (ST_A, ST_B, ST_C)):
        c.dsw("ds_write_b64", vrho, st, oo, 2)
        va.put(oo, 2)
    va.put(t, 8)


def add_w2_items(sc, g):
    for i in range(4):
        def em(c, base, name, i=i):
            for p in range(2):
                c.dma(g.vK1k, sW2, None, base + 8192 * p, sadd=(sC128, (2 * i + p) * 65536), tag=name if p else None)
        sc.add(f"w2_{i}", None, em)


def merge_vm(a, b):
    out = []
    seen = set()
    for q in (a, b):
        for e in q:
            if e["tag"] is not None and e["tag"] not in seen:
                seen.add(e["tag"])
    for q in (a, b):
        assert not any(e["dst"] for e in q), "register loads pending at join"
    order = [e["tag"] for e in a if e["tag"] is not None]
    for e in b:
        if e["tag"] is not None and e["tag"] not in order:
            order.append(e["tag"])
    return [dict(dst=set(), tag=t, region=None) for t in order]


def build(opts):
    g = G()
    sc = Sched()
    sc.owner = ["P1"] * NUNIT
    add_w2_items(sc, g)
    P = Ctx("pro", opts, VA(), sc)
    prologue(P, g)
    A = Ctx("A", opts, P.va.clone(), sc.clone())
    B = Ctx("B", opts, P.va.clone(), sc.clone())
    p1_roleA(A, g)
    p1_roleB(B, g)
    assert A.sched.unit_of == B.sched.unit_of
    stop = opts.get("stop", 99)
    B.k("s_branch L_common")
    tp = P.k.finalize()
    ta = A.k.finalize(init_vm=P.k.final_vm)
    tb = B.k.finalize(init_vm=P.k.final_vm)
    assert not A.k.final_ds and not B.k.final_ds
    vm0 = merge_vm(A.k.final_vm, B.k.final_vm)
    done0 = A.k.final_done | B.k.final_done
    body = tp + ta + "L_common:\n"
    if stop > 1:
        import mk2
        va = VA(0, 0)
        va.free = sorted(set(A.va.free) & set(B.va.free))
        for r in (g.vX0, g.vX1, g.vB):
            va.put(r)
        body += f"  s_cmp_ge_u32 s{sJ}, 14\n  s_cbranch_scc1 L_nog3\n"
        for var, lab in ((True, None), (False, "L_nog3")):
            C = Ctx("C" if var else "D", opts, va.clone(), A.sched.clone())
            mk2.rest(C, g, opts, var)
            C.k("s_waitcnt vmcnt(0) lgkmcnt(0)\ns_endpgm")
            if lab:
                body += lab + ":\n"
            body += C.k.finalize(init_vm=vm0, init_done=done0)
    else:
        body += "  s_waitcnt vmcnt(0) lgkmcnt(0)\n  s_endpgm\n"
    body += "L_roleB:\n" + tb + "L_exit:\n  s_endpgm\n"
    n = NAME + "_kernel"
    hdr = f"""; fused S5-SSM + shift-MLP kernel (generated by dev/mk.py)
; @launch grid=(256,1,1) block=(512,1,1) lds={LDS_BYTES}
.amdgcn_target "amdgcn-amd-amdhsa--gfx950"
.text
.globl {n}
.p2align 8
.type {n},@function
{n}:
"""
    tail = f""".section .rodata,"a"
.p2align 6
.amdhsa_kernel {n}
  .amdhsa_next_free_vgpr 256
  .amdhsa_next_free_sgpr 102
  .amdhsa_accum_offset 256
  .amdhsa_group_segment_fixed_size 0
  .amdhsa_kernarg_size 136
  .amdhsa_user_sgpr_count 2
  .amdhsa_user_sgpr_kernarg_segment_ptr 1
  .amdhsa_system_sgpr_workgroup_id_x 1
.end_amdhsa_kernel
"""
    return hdr + body + tail


if __name__ == "__main__":
    import argparse
    ap = argparse.ArgumentParser()
    ap.add_argument("-o", default="k.s")
    ap.add_argument("--stop", type=int, default=99)
    ap.add_argument("--stamps", action="store_true")
    ap.add_argument("--opt", action="append", default=[])
    a = ap.parse_args()
    opts = dict(stop=a.stop, stamps=a.stamps)
    for o in a.opt:
        kk, _, vv = o.partition("=")
        opts[kk] = int(vv) if vv else 1
    txt = build(opts)
    open(a.o, "w").write(txt)
    print("wrote", a.o, len(txt), "bytes", txt.count("\n"), "lines")
```

```python
from mk import *

LOWBUF = 0


def run_steps(c, steps, prev_free=(), ph=None):
    k = c.k
    pending = None
    idx = 0
    prev = list(prev_free)
    sp = ph is not None and c.opts.get("sp") == ph
    for si, st in enumerate(steps):
        for hi, (rd, mf) in enumerate(st["hs"]):
            if hi == 0:
                if sp:
                    c.stamp(16 + 3 * si)
                if st.get("pre"):
                    st["pre"]()
                for it in st["items"]:
                    k.waitvm(it)
                k("s_waitcnt lgkmcnt(0)")
                if sp:
                    c.stamp(17 + 3 * si)
                c.barrier(free=prev, issue=False)
                if sp:
                    c.stamp(18 + 3 * si)
                if st.get("post0"):
                    st["post0"]()
                c.sched.issue(c)
                if st.get("post"):
                    st["post"]()
                prev = list(st["items"])
            buf = idx % 2
            rd(buf)
            if pending:
                pending()
            pending = (lambda mf=mf, buf=buf: mf(buf))
            idx += 1
    pending()
    return prev


def probe_issue(c, phase):
    k, va = c.k, c.va
    t = va.get(2)
    k(f"""s_lshl_b32 s{sT}, s{sG}, 7
    s_add_u32 s{sT}, s{sT}, {WS_FL + phase * 2048}
    v_lshlrev_b32 v{t}, 2, v1
    v_add_u32 v{t}, s{sT}, v{t}
    buffer_load_dword v{t+1}, v{t}, s[{sWS}:{sWS+3}], 0 offen sc1""")
    return t


def probe_check(c, phase, t, mask):
    k, va = c.k, c.va
    loop, done = k.label("L_pl"), k.label("L_pd")
    k(f"""v_mov_b32 v{t+1}, v{t+1}
    s_mov_b32 s{sT+1}, {SPIN}
    {loop}:
    v_cmp_ne_u32 vcc, s{sNON}, v{t+1}
    s_and_b64 vcc, vcc, {mask}
    s_cbranch_scc0 {done}""")
    k.region_begin()
    k(f"""buffer_load_dword v{t+1}, v{t}, s[{sWS}:{sWS+3}], 0 offen sc1
    s_waitcnt vmcnt(0)
    s_sub_u32 s{sT+1}, s{sT+1}, 1
    s_cmp_lg_u32 s{sT+1}, 0
    s_cbranch_scc1 {loop}""")
    k.region_end()
    k(f"{done}:")
    va.put(t, 2)
    c.sched.flags.add(phase)


def mf16(k, d, a, b, z):
    k(f"v_mfma_f32_16x16x32_bf16 {vr(d,4)}, {vr(a,4)}, {vr(b,4)}, {'0' if z else vr(d,4)}")


def rest(c, g, opts, full):
    k, va, sc = c.k, c.va, c.sched
    stop = opts.get("stop", 99)
    S = g.scan
    srd(k, sWA, P_W3, 512 * 3584)
    srd(k, sWB, P_W4, 1792 * 1024)
    srd(k, sCRE, P_CRE, 512 * 1024)
    srd(k, sCIM, P_CIM, 512 * 1024)
    t, u, q, l15 = [va.get() for _ in range(4)]
    xq, dsk = va.get(4), va.get(4)
    vn8 = va.get()
    k(f"""v_and_b32 v{l15}, 15, v1
    v_lshrrev_b32 v{q}, 4, v1
    v_and_b32 v{u}, 1, v{q}
    v_lshlrev_b32 v{vn8}, 5, v{u}
    v_lshrrev_b32 v{u}, 1, v{q}
    v_lshl_add_u32 v{vn8}, v{u}, 4, v{vn8}
    v_lshl_add_u32 v{t}, v{l15}, 10, v{vn8}
    s_lshr_b32 s{sT}, s{sW}, 1
    s_lshl_b32 s{sT}, s{sT}, 14
    s_add_u32 s{sT}, s{sT}, s{sHP}
    s_and_b32 s{sT+1}, s{sW}, 1
    s_lshl_b32 s{sT+1}, s{sT+1}, 6
    s_add_u32 s{sT+1}, s{sT+1}, s{sC128}
    s_add_u32 s{sT}, s{sT}, s{sT+1}
    buffer_load_dwordx4 {vr(xq,4)}, v{t}, s[{sX}:{sX+3}], s{sT} offen""")
    vx1 = va.get()
    k(f"""s_add_u32 s{sT}, s{sT}, {WS_X1}
    v_add_u32 v{vx1}, s{sT}, v{t}""")
    srd(k, sMI, P_DSK, 1024)
    k(f"buffer_load_dwordx4 {vr(dsk,4)}, v{vn8}, s[{sMI}:{sMI+3}], s{sT+1} offen")
    eg = va.get(32)
    veb = va.get()

    def e_loads():
        k(f"""s_add_u32 s{sMI}, s{P_WS}, {WS_E}
        s_addc_u32 s{sMI+1}, s{P_WS+1}, 0
        s_mov_b32 s{sMI+2}, 131072
        s_mov_b32 s{sMI+3}, 0x00020000""")
        tt = va.get()
        for ii in range(8):
            k(f"""v_subrev_u32 v{tt}, {8192*ii}, v{veb}
            buffer_load_dwordx4 {vr(eg+4*ii,4)}, v{tt}, s[{sMI}:{sMI+3}], 0 offen sc1""")
        va.put(tt)
    if stop >= 3:
        lab = k.label("L_e")
        k(f"s_cmp_ge_u32 s{sW}, 4\ns_cbranch_scc1 {lab}")
        k.region_begin("A")
        k(f"""s_sub_u32 s{sT}, s{sG}, 1
        s_lshl_b32 s{sT}, s{sT}, 13
        s_lshl_b32 s{sT+1}, s{sJ}, 9
        s_add_u32 s{sT}, s{sT}, s{sT+1}
        v_lshlrev_b32 v{veb}, 4, v{S['i32']}
        v_add_u32 v{veb}, s{sT}, v{veb}
        v_lshlrev_b32 v{u}, 16, v{S['hf']}
        v_sub_u32 v{veb}, v{veb}, v{u}""")
        e_loads()
        k.region_end()
        k(f"{lab}:")
    aW = [va.get(), va.get()]
    kn_addr(c, aW[0], aW[1], (t, u, q))
    aR0 = va.get()
    aB = [va.get(), va.get()]
    aC = [va.get(), va.get()]
    vR2k, vR35, vK35 = va.get(), va.get(), va.get()
    k(f"""v_lshrrev_b32 v{u}, 1, v{l15}
    v_xor_b32 v{u}, v{u}, v{q}
    v_lshlrev_b32 v{u}, 4, v{u}
    v_lshl_add_u32 v{aR0}, v{l15}, 7, v{u}
    s_lshr_b32 s{sT}, s{sW}, 1
    s_lshl_b32 s{sT}, s{sT}, 11
    v_add_u32 v{aB[0]}, s{sT}, v{aR0}
    v_xor_b32 v{aB[1]}, 64, v{aB[0]}
    s_and_b32 s{sT}, s{sW}, 1
    s_lshl_b32 s{sT}, s{sT}, 12
    v_add_u32 v{aC[0]}, s{sT}, v{aR0}
    v_xor_b32 v{aC[1]}, 64, v{aC[0]}
    v_lshrrev_b32 v{t}, 10, v{g.vR1k}
    v_and_b32 v{u}, 0x3ff, v{g.vR1k}
    v_lshl_add_u32 v{vR2k}, v{t}, 11, v{u}
    v_mul_u32_u24 v{t}, 3584, v{t}
    v_add_u32 v{vR35}, v{t}, v{u}
    v_and_b32 v{u}, 0x3ff, v{g.vK1k}
    v_add_u32 v{vK35}, v{t}, v{u}""")
    for a in aW + aB:
        c.pre_hi(a)
    for i in range(4):
        def em(c, base, name, i=i):
            for p in range(2):
                c.dma(g.vR1k, sWS, f"s{sHP}", base + 8192 * p, inst=(2 * i + p) * 128, sc1=True, tag=name if p else None)
        sc.add(f"hp_{i}", 0, em)
    if full and stop >= 4:
        for s in range(8):
            def em(c, base, name, s=s):
                for p in range(2):
                    c.dma(vK35, sWA, None, base + 8192 * p, sadd=(sJ256, s * 64 * 3584 + 128 * p), tag=name if p else None)
            sc.add(f"w3_{s}", None, em)
            def em(c, base, name, s=s):
                for p in range(2):
                    c.dma(g.vR1k, sWS, f"s{sX1b if p else sX1a}", base + 8192 * p, inst=s * 128, sc1=True, tag=name if p else None)
            sc.add(f"x1_{s}", 1, em)
    if stop >= 5:
        for i in range(8):
            def em(c, base, name, i=i):
                for p in range(2):
                    c.dma(g.vR1k, sCIM if p else sCRE, f"s{sCrow}", base + 8192 * p, inst=i * 128, tag=name if p else None)
            sc.add(f"C_{i}", None, em)
            def em(c, base, name, i=i):
                for p in range(2):
                    c.dma(vR2k, sWS, f"s{sH}", base + 8192 * p, inst=(2 * i + p) * 128, sc1=True, tag=name if p else None)
            sc.add(f"H_{i}", 2, em)
        for i in range(14):
            def em(c, base, name, i=i):
                for p in range(2):
                    c.dma(g.vK1k, sWB, None, base + 8192 * p, sadd=(sC128, (2 * i + p) * 65536), tag=name if p else None)
            sc.add(f"w4_{i}", None, em)
            def em(c, base, name, i=i):
                for p in range(2):
                    c.dma(vR35, sWS, f"s{sU}", base + 8192 * p, inst=(2 * i + p) * 128, sc1=True, tag=name if p else None)
            sc.add(f"u_{i}", 3, em)
    fbuf = [va.get(24), va.get(24)]

    def kn_steps(wn, an, n, acc):
        steps = []
        for i in range(n):
            hs = []
            for p in range(2):
                def rd(buf, i=i, p=p):
                    f = fbuf[buf]
                    wb, ab = sc.base(f"{wn}_{i}") + 8192 * p, sc.base(f"{an}_{i}") + 8192 * p
                    for ks in range(2):
                        c.dsr("ds_read_b128", f + 16 + 4 * ks, 4, aB[ks], ab)
                        for a in range(2):
                            for uu in range(2):
                                c.dsr("ds_read_b64_tr_b16", f + 8 * ks + 4 * a + 2 * uu, 2, aW[a], wb + (32 * ks + 4 * uu) * 128)
                def mf(buf, i=i, p=p):
                    f = fbuf[buf]
                    for ks in range(2):
                        for a in range(2):
                            mf16(k, acc[a], f + 8 * ks + 4 * a, f + 16 + 4 * ks, i == 0 and p == 0 and ks == 0)
                hs.append((rd, mf))
            steps.append(dict(items=[f"{wn}_{i}", f"{an}_{i}"], hs=hs))
        return steps

    sc.reserve = 4
    sc.issue(c)
    c.stamp(3)
    flag_wait(c, 0, "half")
    c.stamp(4)
    sc.reserve = opts.get("res1", 3)
    ma = va.get(2)
    k(f"""s_lshl_b32 s{sT}, s{sRH}, 6
    s_lshr_b32 s{sT+1}, s{sW}, 1
    s_lshl_b32 s{sT+1}, s{sT+1}, 4
    s_add_u32 s{sT}, s{sT}, s{sT+1}
    s_add_u32 s{sT}, s{sT}, s{sOFF5}
    v_add_u32 v{t}, s{sT}, v{l15}
    v_lshlrev_b32 v{t}, 3, v{t}""")
    c.dsr("ds_read_b64", ma, 2, t, ST_C)
    xn = va.get(4)
    lo, hi = va.get(), va.get()
    for i in range(4):
        k(f"""v_lshlrev_b32 v{lo}, 16, v{xq+i}
        v_and_b32 v{hi}, 0xffff0000, v{xq+i}
        v_sub_f32 v{lo}, v{lo}, v{ma}
        v_sub_f32 v{hi}, v{hi}, v{ma}
        v_cvt_pk_bf16_f32 v{xn+i}, v{lo}, v{hi}
        v_lshlrev_b32 v{lo}, 16, v{xn+i}
        v_and_b32 v{hi}, 0xffff0000, v{xn+i}
        v_mul_f32 v{lo}, v{lo}, v{ma+1}
        v_mul_f32 v{hi}, v{hi}, v{ma+1}
        v_cvt_pk_bf16_f32 v{xn+i}, v{lo}, v{hi}""")
    va.put(ma, 2)
    c.free_base(t)
    t = va.get()
    acc2 = [va.get(4), va.get(4)]
    last = run_steps(c, kn_steps("w2", "hp", 4, acc2), ph=2)
    c.stamp(5)
    x1 = va.get(4)
    for r in range(4):
        k(f"v_permlane16_swap_b32 v{acc2[0]+r}, v{acc2[1]+r}")
    for i in range(4):
        a = acc2[i >> 1] + 2 * (i & 1)
        k(f"""v_lshlrev_b32 v{lo}, 16, v{xn+i}
        v_and_b32 v{hi}, 0xffff0000, v{xn+i}
        v_add_f32 v{lo}, v{lo}, v{a}
        v_add_f32 v{hi}, v{hi}, v{a+1}
        v_cvt_pk_bf16_f32 v{x1+i}, v{lo}, v{hi}""")
    k(f"buffer_store_dwordx4 {vr(x1,4)}, v{vx1}, s[{sWS}:{sWS+3}], 0 offen sc1")
    va.put(acc2[0], 4); va.put(acc2[1], 4); va.put(vx1)
    s12 = va.get(2)
    S1, S2 = s12, s12 + 1
    k(f"v_mov_b32 v{S1}, 0\nv_mov_b32 v{S2}, 0")
    for i in range(4):
        k(f"v_dot2c_f32_bf16 v{S1}, s{sONE}, v{x1+i}\nv_dot2c_f32_bf16 v{S2}, v{x1+i}, v{x1+i}")
    k(f"""v_permlane32_swap_b32 v{S1}, v{S2}
    v_add_f32 v{S1}, v{S1}, v{S2}
    v_mov_b32 v{S2}, v{S1}
    v_permlane16_swap_b32 v{S1}, v{S2}
    v_add_f32 v{S1}, v{S1}, v{S2}
    v_mov_b32 v{S2}, v{S1}
    v_permlane32_swap_b32 v{S1}, v{S2}
    s_lshl_b32 s{sT}, s{sC}, 1
    s_and_b32 s{sT+1}, s{sW}, 1
    s_add_u32 s{sT}, s{sT}, s{sT+1}
    s_lshl_b32 s{sT}, s{sT}, 14                 ; slice*16384
    s_lshr_b32 s{sT+1}, s{sHP}, 7               ; row0*8
    s_add_u32 s{sT}, s{sT}, s{sT+1}
    s_lshr_b32 s{sT+1}, s{sW}, 1
    s_lshl_b32 s{sT+1}, s{sT+1}, 7
    s_add_u32 s{sT}, s{sT}, s{sT+1}
    s_add_u32 s{sT}, s{sT}, {WS_PS}
    v_lshlrev_b32 v{t}, 3, v{l15}
    s_mov_b64 exec, 0xffff""")
    k(f"buffer_store_dwordx2 {vr(s12,2)}, v{t}, s[{sWS}:{sWS+3}], s{sT} offen sc1", tag="x1st")
    k("s_mov_b64 exec, -1")
    va.put(s12, 2)
    cin = va.get(2)
    if stop >= 3:
        lab = k.label("L_s1")
        k(f"s_cmp_ge_u32 s{sW}, 4\ns_cbranch_scc1 {lab}")
        k.region_begin("A")
        loop, done = k.label("L_el"), k.label("L_ed")
        bad, e_, x_, y_, vn = [va.get() for _ in range(5)]
        k(f"""v_mov_b32 v{bad}, v{eg+31}
        v_mov_b32 v{vn}, s{sNON}
        s_mov_b32 s{sT+1}, {SPIN}
        {loop}:
        v_mov_b32 v{bad}, 0""")
        for ii in range(8):
            k(f"""v_cmp_le_i32 vcc, {8192*ii}, v{veb}
            v_cndmask_b32 v{e_}, 0, v{vn}, vcc
            v_xor_b32 v{x_}, v{e_}, v{eg+4*ii+1}
            v_xor_b32 v{y_}, v{e_}, v{eg+4*ii+3}
            v_or3_b32 v{bad}, v{bad}, v{x_}, v{y_}""")
        k(f"""v_cmp_ne_u32 vcc, 0, v{bad}
        s_cbranch_vccz {done}""")
        k.region_begin("A2")
        e_loads()
        k(f"""s_waitcnt vmcnt(0)
        s_sub_u32 s{sT+1}, s{sT+1}, 1
        s_cmp_lg_u32 s{sT+1}, 0
        s_cbranch_scc1 {loop}""")
        k.region_begin("A")
        k(f"{done}:")
        h = [va.get(2), va.get(2)]
        cur = (eg + 28, eg + 30)
        for n_, ii in enumerate(range(6, -1, -1)):
            d = h[n_ & 1]
            cmad(k, d, d + 1, S["l128r"], S["l128i"], cur[0], cur[1], eg + 4 * ii, eg + 4 * ii + 2)
            cur = (d, d + 1)
        for _ in range(3):
            csq(k, S["l128r"], S["l128i"], x_)
        d = h[1]
        assert cur[0] == h[0]
        k(f"""v_mul_f32 v{d}, v{S['l128r']}, v{cur[0]}
        v_mul_f32 v{d+1}, v{S['l128r']}, v{cur[1]}
        v_fma_f32 v{d}, -v{S['l128i']}, v{cur[1]}, v{d}
        v_fma_f32 v{d+1}, v{S['l128i']}, v{cur[0]}, v{d+1}
        s_mov_b64 vcc, -1
        s_mov_b32 vcc_lo, 0
        v_cndmask_b32 v{cin}, v{cur[0]}, v{d}, vcc
        v_cndmask_b32 v{cin+1}, v{cur[1]}, v{d+1}, vcc
        v_mov_b32 v{d}, v{cin}
        v_mov_b32 v{d+1}, v{cin+1}
        v_permlane32_swap_b32 v{cin}, v{d}
        v_permlane32_swap_b32 v{cin+1}, v{d+1}
        v_add_f32 v{cin}, v{cin}, v{d}
        v_add_f32 v{cin+1}, v{cin+1}, v{d+1}
        s_lshl_b32 s{sT}, s{sW}, 1
        v_add_u32 v{x_}, s{sT}, v{S['hf']}""")
        for s in range(7):
            cmad(k, d, d + 1, S["l16r"], S["l16i"], cin, cin + 1, S["eseg"] + 2 * s, S["eseg"] + 2 * s + 1)
            k(f"""v_cmp_lt_u32 vcc, {s}, v{x_}
            v_cndmask_b32 v{cin}, v{cin}, v{d}, vcc
            v_cndmask_b32 v{cin+1}, v{cin+1}, v{d+1}, vcc""")
        for r in (bad, e_, x_, y_, vn):
            va.put(r)
        va.put(h[0], 2); va.put(h[1], 2)
        k.region_end()
        k(f"{lab}:")
    va.put(eg, 32); va.put(veb)
    k.waitvm("x1st")
    c.barrier(free=last)
    flag_store(c, 1)
    c.stamp(6)
    if stop >= 3:
        lab = k.label("L_s2")
        k(f"s_cmp_ge_u32 s{sW}, 4\ns_cbranch_scc1 {lab}")
        k.region_begin("A")
        wr, wi, rdA, vho, t1, t2, pk = [va.get() for _ in range(7)]
        o4 = [va.get(4), va.get(4)]
        k(f"""v_lshlrev_b32 v{wr}, 1, v{S['i32']}
        v_lshlrev_b32 v{t1}, 6, v{S['hf']}
        v_xor_b32 v{wr}, v{wr}, v{t1}
        v_lshl_add_u32 v{wr}, v{S['hf']}, 9, v{wr}
        v_add_u32 v{wr}, s{sW1K}, v{wr}
        v_xor_b32 v{wi}, 64, v{wr}
        v_lshlrev_b32 v{rdA}, 4, v1
        v_add_u32 v{rdA}, s{sW1K}, v{rdA}
        v_bfe_u32 v{t1}, v1, 3, 2
        v_lshl_add_u32 v{t1}, v{S['hf']}, 4, v{t1}     ; row = 16*(b>>2) + (b&3)
        v_lshlrev_b32 v{vho}, 11, v{t1}
        v_and_b32 v{t1}, 7, v1
        v_lshlrev_b32 v{t2}, 2, v{S['hf']}
        v_xor_b32 v{t1}, v{t1}, v{t2}
        v_lshl_add_u32 v{vho}, v{t1}, 4, v{vho}
        s_lshl_b32 s{sT}, s{sW}, 5
        s_add_u32 s{sT}, s{sT}, s{sT0}
        s_lshl_b32 s{sT}, s{sT}, 11
        s_lshl_b32 s{sT+1}, s{sJ}, 7
        s_add_u32 s{sT}, s{sT}, s{sT+1}
        s_add_u32 s{sT+2}, s{sT}, {WS_H}""")
        cur = (cin, cin + 1)
        for r in range(16):
            hr, hi_ = S["accr"] + r, S["acci"] + r
            cmad(k, hr, hi_, S["lr"], S["li"], cur[0], cur[1], hr, hi_)
            cur = (hr, hi_)
            k(f"""v_mul_f32 v{t1}, v{S['kr']}, v{hr}
            v_mul_f32 v{t2}, -v{S['kr']}, v{hi_}
            v_fma_f32 v{t1}, -v{S['ki']}, v{hi_}, v{t1}
            v_fma_f32 v{t2}, -v{S['ki']}, v{hr}, v{t2}
            v_cvt_pk_bf16_f32 v{pk}, v{t1}, v{t2}
            ds_write_b16 v{wr}, v{pk} offset:{LOWBUF + (r & 3) * 128}
            ds_write_b16_d16_hi v{wi}, v{pk} offset:{LOWBUF + (r & 3) * 128}""")
            if r & 3 == 3:
                uu = r >> 2
                k(f"ds_read_b128 {vr(o4[uu & 1],4)}, v{rdA} offset:{LOWBUF}")
                if uu >= 1:
                    k(f"""s_add_u32 s{sT}, s{sT+2}, {(uu-1)*8192}
                    buffer_store_dwordx4 {vr(o4[(uu-1) & 1],4)}, v{vho}, s[{sWS}:{sWS+3}], s{sT} offen sc1""")
        k(f"""s_add_u32 s{sT}, s{sT+2}, {3*8192}
        buffer_store_dwordx4 {vr(o4[1],4)}, v{vho}, s[{sWS}:{sWS+3}], s{sT} offen sc1
        s_waitcnt vmcnt(0)""")
        for r in (wr, wi, rdA, vho, t1, t2, pk):
            va.put(r)
        va.put(o4[0], 4); va.put(o4[1], 4)
        k.region_end()
        k(f"{lab}:")
        c.barrier()
        flag_store(c, 2)
    va.put(cin, 2)
    va.put(S["accr"], 16); va.put(S["acci"], 16); va.put(S["eseg"], 16)
    for n_ in ("lr", "li", "kr", "ki", "l16r", "l16i", "l128r", "l128i", "i32", "hf"):
        va.put(S[n_])
    c.stamp(7)
    if stop < 4:
        return
    last = []
    if full:
        aW3 = [va.get(), va.get()]
        aB3 = [va.get(), va.get()]
        vps, vrho, vu = va.get(), va.get(), va.get()
        k(f"""s_bfe_u32 s{sT}, s{sW}, 0x10001
        s_lshl_b32 s{sT}, s{sT}, 13
        v_add_u32 v{aW3[0]}, s{sT}, v{aW[0]}
        v_add_u32 v{aW3[1]}, s{sT}, v{aW[1]}
        s_lshr_b32 s{sT}, s{sW}, 2
        s_lshl_b32 s{sT}, s{sT}, 13
        v_add_u32 v{aB3[0]}, s{sT}, v{aR0}
        v_xor_b32 v{aB3[1]}, 64, v{aB3[0]}
        v_lshrrev_b32 v{vrho}, 2, v0
        v_lshlrev_b32 v{vrho}, 3, v{vrho}
        v_and_b32 v{t}, 3, v0
        v_lshl_add_u32 v{vps}, v{t}, 16, v{vrho}
        v_mul_u32_u24 v{vu}, 3584, v{l15}
        v_add_u32 v{vu}, v{vu}, v{vn8}""")
        for a in aW3 + aB3:
            c.pre_hi(a)
        c.pre_hi(vrho, (2,))
        ones = va.get(4)
        for i in range(4):
            k(f"v_mov_b32 v{ones+i}, s{sONE}")
        ps = va.get(8)
        flag_poll_only(c, 1, "all")
        c.stamp(8)

        def ps_load():
            sc.flags.add(1)
            for m in range(4):
                k(f"""s_lshl_b32 s{sT}, s{sT0}, 3
                s_add_u32 s{sT}, s{sT}, {WS_PS + m * 16384}
                buffer_load_dwordx2 {vr(ps+2*m,2)}, v{vps}, s[{sWS}:{sWS+3}], s{sT} offen sc1""")
        k("s_waitcnt lgkmcnt(0)")
        c.barrier(issue=False)
        ps_load()
        sc.reserve = opts.get("res2", 0)
        sc.issue(c)
        acc3 = [[va.get(4) for tt in range(4)] for a in range(2)]
        cs3 = [va.get(4), va.get(4)]

        def ps_fin():
            x = va.get(4)
            k(f"""v_add_f32 v{ps}, v{ps}, v{ps+2}
            v_add_f32 v{ps+1}, v{ps+1}, v{ps+3}
            v_add_f32 v{ps+4}, v{ps+4}, v{ps+6}
            v_add_f32 v{ps+5}, v{ps+5}, v{ps+7}
            v_add_f32 v{ps}, v{ps}, v{ps+4}
            v_add_f32 v{ps+1}, v{ps+1}, v{ps+5}""")
            for m in ("quad_perm:[1,0,3,2]", "quad_perm:[2,3,0,1]"):
                for s_ in (ps, ps + 1):
                    k(f"v_add_f32_dpp v{s_}, v{s_}, v{s_} {m} row_mask:0xf bank_mask:0xf")
            k(f"""v_mul_f32 v{x}, {fhex(1/512)}, v{ps}
            v_mul_f32 v{x+1}, v{x}, v{x}
            v_fma_f32 v{x+1}, v{ps+1}, s{sI512}, -v{x+1}
            v_max_f32 v{x+1}, 0, v{x+1}""")
            c.bf16r(x, x)
            c.bf16r(x + 1, x + 1)
            k(f"v_add_f32 v{x+1}, {fhex(EPS)}, v{x+1}")
            c.bf16r(x + 1, x + 1)
            k(f"v_sqrt_f32 v{x+1}, v{x+1}")
            c.bf16r(x + 1, x + 1)
            k(f"""v_rcp_f32 v{x+2}, v{x+1}
            v_mul_f32 v{x+3}, v{x}, v{x+2}""")
            c.dsw("ds_write_b64", vrho, ST3, x + 2, 2)
            va.put(x, 4)
        steps = []
        pr = {}
        for s in range(8):
            hs = []
            for ks in range(2):
                def rd(buf, s=s, ks=ks):
                    f = fbuf[buf]
                    wb, ab = sc.base(f"w3_{s}"), sc.base(f"x1_{s}")
                    for a in range(2):
                        for uu in range(2):
                            c.dsr("ds_read_b64_tr_b16", f + 4 * a + 2 * uu, 2, aW3[a], wb + (32 * ks + 4 * uu) * 128)
                    for tt in range(4):
                        c.dsr("ds_read_b128", f + 8 + 4 * tt, 4, aB3[ks], ab + tt * 2048)
                def mf(buf, s=s, ks=ks):
                    f = fbuf[buf]
                    z = s == 0 and ks == 0
                    for tt in range(4):
                        for a in range(2):
                            mf16(k, acc3[a][tt], f + 4 * a, f + 8 + 4 * tt, z)
                    for a in range(2):
                        mf16(k, cs3[a], f + 4 * a, ones, z)
                hs.append((rd, mf))
            st = dict(items=[f"w3_{s}", f"x1_{s}"], hs=hs)
            if s == 1:
                st["post"] = ps_fin
            if stop >= 5:
                if s == opts.get("p2i", 2):
                    st["post0"] = lambda: pr.__setitem__(2, probe_issue(c, 2))
                if s == opts.get("p2c", 5):
                    st["post0"] = lambda: probe_check(c, 2, pr[2], "0xffff")
            steps.append(st)
        last = run_steps(c, steps, ph=3)
        c.stamp(9)
        va.put(ps, 8); va.put(vps); c.free_base(vrho); va.put(ones, 4)
        for a in aW3 + aB3:
            c.free_base(a)
        k("s_waitcnt lgkmcnt(0)")
        c.barrier(free=last)
        last = []
        ab = va.get(8)
        k(f"""s_lshr_b32 s{sT}, s{sW}, 2
        s_lshl_b32 s{sT}, s{sT}, 6
        v_add_u32 v{t}, s{sT}, v{l15}
        v_lshlrev_b32 v{t}, 3, v{t}
        s_add_u32 s{sT}, s{sT}, s{sT0}
        s_mul_i32 s{sT}, s{sT}, 3584
        s_add_u32 s{sT}, s{sT}, s{sJ256}
        s_and_b32 s{sT+1}, s{sW}, 3
        s_lshl_b32 s{sT+1}, s{sT+1}, 6
        s_add_u32 s{sT}, s{sT}, s{sT+1}
        s_add_u32 s{sT+2}, s{sT}, {WS_U}""")
        for tt in range(4):
            c.dsr("ds_read_b64", ab + 2 * tt, 2, t, ST3 + 128 * tt)
        c.free_base(t)
        t = va.get()
        for tt in range(4):
            for a in range(2):
                for r in range(4):
                    k(f"""v_mul_f32 v{t}, v{ab+2*tt+1}, v{cs3[a]+r}
                    v_fma_f32 v{acc3[a][tt]+r}, v{ab+2*tt}, v{acc3[a][tt]+r}, -v{t}""")
            gelu_many(c, [acc3[a][tt] + r for a in range(2) for r in range(4)])
            P = va.get(4)
            for a in range(2):
                for i in range(2):
                    k(f"v_cvt_pk_bf16_f32 v{P+2*a+i}, v{acc3[a][tt]+2*i}, v{acc3[a][tt]+2*i+1}")
            for i in range(2):
                k(f"v_permlane16_swap_b32 v{P+i}, v{P+2+i}")
            k(f"s_add_u32 s{sT}, s{sT+2}, {tt*16*3584}")
            k(f"buffer_store_dwordx4 {vr(P,4)}, v{vu}, s[{sWS}:{sWS+3}], s{sT} offen sc1", tag=f"ust{tt}")
            va.put(P, 4)
        va.put(ab, 8); va.put(vu)
        for a in range(2):
            va.put(cs3[a], 4)
            for tt in range(4):
                va.put(acc3[a][tt], 4)
        c.stamp(10)
        if stop < 5:
            return
    else:
        if stop < 5:
            return
        sc.reserve = 4
        sc.issue(c)
        flag_wait(c, 2, "all")
    for a in aC:
        c.pre_hi(a)
    acc6 = [va.get(4), va.get(4)]
    acc4 = [va.get(4), va.get(4)]
    sc.reserve = opts.get("res3", 0)
    steps = []
    pr = {}
    for i in range(8):
        hs = []
        for p in range(2):
            def rd(buf, i=i, p=p):
                f = fbuf[buf]
                cb, hb = sc.base(f"C_{i}"), sc.base(f"H_{i}") + 8192 * p
                for ri in range(2):
                    c.dsr("ds_read_b128", f + 16 + 4 * ri, 4, aB[ri], hb)
                    for a in range(2):
                        c.dsr("ds_read_b128", f + 8 * ri + 4 * a, 4, aC[p], cb + 8192 * ri + 2048 * a)
            def mf(buf, i=i, p=p):
                f = fbuf[buf]
                for ri in range(2):
                    for a in range(2):
                        mf16(k, acc6[a], f + 8 * ri + 4 * a, f + 16 + 4 * ri, i == 0 and p == 0 and ri == 0)
            hs.append((rd, mf))
        st = dict(items=[f"C_{i}", f"H_{i}"], hs=hs)
        if full and i == opts.get("f3s", 1):
            st["pre"] = lambda: k.waitvm("ust3")
            st["post0"] = lambda: flag_store(c, 3)
        if full:
            if i == opts.get("p3i", 3):
                st["post0"] = lambda: pr.__setitem__(3, probe_issue(c, 3))
            if i == opts.get("p3c", 6):
                st["post0"] = lambda: probe_check(c, 3, pr[3], "0x7f7f")
        steps.append(st)
    last = run_steps(c, steps, prev_free=last, ph=6)
    c.stamp(11)
    if not full:
        sc.reserve = 4
        flag_wait(c, 3, "g3", free=last)
        last = []
    last = run_steps(c, kn_steps("w4", "u", 14, acc4), prev_free=last, ph=4)
    c.stamp(12)
    for acc in (acc4, acc6):
        for r in range(4):
            k(f"v_permlane16_swap_b32 v{acc[0]+r}, v{acc[1]+r}")
    z = [acc4[i >> 2] + (i & 3) for i in range(8)]
    s_ = [acc6[i >> 2] + (i & 3) for i in range(8)]
    e = va.get(8)
    d2 = va.get(2)
    for i in range(4):
        k(f"""v_lshlrev_b32 v{lo}, 16, v{x1+i}
        v_and_b32 v{hi}, 0xffff0000, v{x1+i}
        v_add_f32 v{z[2*i]}, v{z[2*i]}, v{lo}
        v_add_f32 v{z[2*i+1]}, v{z[2*i+1]}, v{hi}
        v_mul_f32 v{e+2*i}, {fhex(-LOG2E)}, v{z[2*i]}
        v_mul_f32 v{e+2*i+1}, {fhex(-LOG2E)}, v{z[2*i+1]}
        v_exp_f32 v{e+2*i}, v{e+2*i}
        v_exp_f32 v{e+2*i+1}, v{e+2*i+1}""")
    for i in range(4):
        k(f"""v_lshlrev_b32 v{lo}, 16, v{xn+i}
        v_and_b32 v{hi}, 0xffff0000, v{xn+i}
        v_lshlrev_b32 v{d2}, 16, v{dsk+i}
        v_and_b32 v{d2+1}, 0xffff0000, v{dsk+i}
        v_mul_f32 v{lo}, v{lo}, v{d2}
        v_mul_f32 v{hi}, v{hi}, v{d2+1}
        v_cvt_pk_bf16_f32 v{d2}, v{lo}, v{hi}
        v_lshlrev_b32 v{lo}, 16, v{d2}
        v_and_b32 v{hi}, 0xffff0000, v{d2}
        v_add_f32 v{s_[2*i]}, v{s_[2*i]}, v{lo}
        v_add_f32 v{s_[2*i+1]}, v{s_[2*i+1]}, v{hi}
        v_add_f32 v{e+2*i}, 1.0, v{e+2*i}
        v_add_f32 v{e+2*i+1}, 1.0, v{e+2*i+1}
        v_rcp_f32 v{e+2*i}, v{e+2*i}
        v_rcp_f32 v{e+2*i+1}, v{e+2*i+1}""")
    srd(k, sMI, P_OUT, 2048 * 2048)
    k(f"""v_lshlrev_b32 v{t}, 11, v{l15}
    v_lshl_add_u32 v{t}, v{vn8}, 1, v{t}
    s_lshr_b32 s{sT}, s{sW}, 1
    s_lshl_b32 s{sT}, s{sT}, 14
    s_add_u32 s{sT}, s{sT}, s{sHP}
    s_and_b32 s{sT+1}, s{sW}, 1
    s_lshl_b32 s{sT+1}, s{sT+1}, 6
    s_add_u32 s{sT+1}, s{sT+1}, s{sC128}
    s_add_u32 s{sT}, s{sT}, s{sT+1}
    s_lshl_b32 s{sT}, s{sT}, 1""")
    for i in range(4):
        k(f"""v_lshlrev_b32 v{lo}, 16, v{xq+i}
        v_and_b32 v{hi}, 0xffff0000, v{xq+i}
        v_mul_f32 v{z[2*i]}, v{z[2*i]}, v{e+2*i}
        v_mul_f32 v{z[2*i+1]}, v{z[2*i+1]}, v{e+2*i+1}
        v_fma_f32 v{e+2*i}, v{s_[2*i]}, v{z[2*i]}, v{lo}
        v_fma_f32 v{e+2*i+1}, v{s_[2*i+1]}, v{z[2*i+1]}, v{hi}""")
        if i & 1:
            k(f"buffer_store_dwordx4 {vr(e+4*(i>>1),4)}, v{t}, s[{sMI}:{sMI+3}], s{sT} offen offset:{16*(i>>1)}")
    if full:
        lab = k.label("L_nn")
        k(f"""s_cmp_lg_u32 s2, 135
        s_cbranch_scc1 {lab}
        s_cmp_lg_u32 s{sW}, 0
        s_cbranch_scc1 {lab}""")
        k.region_begin()
        k(f"""v_mov_b32 v{lo}, 0
        v_mov_b32 v{hi}, s{sNON}
        s_mov_b32 s{sT}, {WS_NONCE}
        s_mov_b64 exec, 1
        buffer_store_dword v{hi}, v{lo}, s[{sWS}:{sWS+3}], s{sT} offen sc1""")
        k.region_end()
        k(f"{lab}:")
    c.stamp(13)


def flag_poll_only(c, phase, mask_kind):
    k, va = c.k, c.va
    t = va.get(2)
    lab = k.label("L_fw")
    loop = k.label("L_fl")
    done = k.label("L_fd")
    k(f"""s_cmp_lg_u32 s{sW}, 0
    s_cbranch_scc1 {lab}""")
    k.region_begin("W0")
    k(f"""s_lshl_b32 s{sT}, s{sG}, 7
    s_add_u32 s{sT}, s{sT}, {WS_FL + phase * 2048}
    v_lshlrev_b32 v{t}, 2, v1
    v_add_u32 v{t}, s{sT}, v{t}
    s_mov_b32 s{sT+1}, {SPIN}
    s_mov_b64 exec, 0xffff
    {loop}:
    buffer_load_dword v{t+1}, v{t}, s[{sWS}:{sWS+3}], 0 offen sc1
    s_waitcnt vmcnt(0)
    v_cmp_ne_u32 vcc, s{sNON}, v{t+1}
    s_cbranch_vccz {done}
    s_sub_u32 s{sT+1}, s{sT+1}, 1
    s_cmp_lg_u32 s{sT+1}, 0
    s_cbranch_scc1 {loop}
    {done}:
    s_mov_b64 exec, -1""")
    k.region_end()
    k(f"{lab}:")
    va.put(t, 2)
```

```python
import sys, struct
sys.path.insert(0, "dev")
from ag import Prog

NAME = "recurrent_scan__ssm_conv_s5__mixer_s_mlp__prompt"
WS_HP = 0x000000
WS_X1 = 0x200000
WS_H = 0x400000
WS_U = 0x800000
WS_E = 0x1000000
WS_PS = 0x1040000
WS_RS = 0x10C0000
WS_FL = 0x1100000
WS_NONCE = 0x1200000
WS_STAMP = 0x1300000
LDS_BYTES = 163840
MISC = 155648
ST_A = MISC
ST_B = MISC + 1088
ST_C = MISC + 2176
CSB = MISC + 3264
SEG = MISC + 4352
ST3 = MISC + 6400
SLOT = 33024
RING0 = 7168
XW1 = 16640
XB = 24832
UNIT0 = 8192
UNIT = 16384
NUNIT = 9
K1 = 2.0 * 0.7978845608028654 * 1.4426950408889634
K3 = K1 * 0.044715
EPS = 1e-5
SPIN = 100000
LOG2E = 1.4426950408889634

P_X, P_LRE, P_LIM, P_BRE, P_BIM, P_CRE, P_CIM, P_LDT = 4, 6, 8, 10, 12, 14, 16, 18
P_DSK, P_W1, P_W2, P_W3, P_W4, P_OUT, P_DBG, P_WS = 20, 24, 26, 28, 30, 32, 34, 36
sX, sWS, sWA, sWB, sW2, sMI, sCRE, sCIM = 40, 44, 48, 52, 56, 60, 64, 68
(sG, sJ, sW, sT0, sNON, sRH, sC, sOFF5, sOFF1, sW1K, sI512, sK3, sONE,
 sHP, sX1a, sX1b, sH, sU, sC128, sCrow, sJ256) = range(72, 93)
sT = 93


def fhex(x):
    return "0x%08x" % struct.unpack("<I", struct.pack("<f", x))[0]


def srd(k, s, p, nbytes):
    k(f"""s_mov_b32 s{s}, s{p}
    s_mov_b32 s{s+1}, s{p+1}
    s_mov_b32 s{s+2}, {nbytes}
    s_mov_b32 s{s+3}, 0x00020000""")


class VA:
    def __init__(self, lo=2, hi=256):
        self.free = list(range(lo, hi))
    def clone(self):
        v = VA(0, 0)
        v.free = list(self.free)
        return v
    def get(self, n=1, align=1):
        if n > 1 and align == 1:
            align = 4 if n >= 4 else 2
        fs = set(self.free)
        for b in self.free:
            if b % align == 0 and all((b + i) in fs for i in range(n)):
                for i in range(n):
                    self.free.remove(b + i)
                return b
        raise RuntimeError("out of VGPRs")
    def put(self, b, n=1):
        for i in range(n):
            assert (b + i) not in self.free, b + i
            self.free.append(b + i)
        self.free.sort()


def vr(b, n):
    return f"v[{b}:{b+n-1}]" if n > 1 else f"v{b}"


class Sched:
    def __init__(self):
        self.owner = [None] * NUNIT
        self.items = []
        self.unit_of = {}
        self.flags = set()
        self.reserve = 4
        self.log = []
    def clone(self):
        s = Sched()
        s.owner = list(self.owner); s.items = list(self.items); s.unit_of = dict(self.unit_of)
        s.flags = set(self.flags); s.reserve = self.reserve
        return s
    def add(self, name, flag, emit):
        self.items.append(dict(name=name, flag=flag, emit=emit))
    def free(self, name):
        self.owner[self.unit_of[name]] = None
    def base(self, name):
        return UNIT0 + UNIT * self.unit_of[name]
    def issue(self, c, maxn=99):
        n = 0
        blocked = 0
        for it in self.items:
            if it["name"] in self.unit_of:
                continue
            fr = [u for u in range(NUNIT) if self.owner[u] is None]
            if it["flag"] is not None and it["flag"] not in self.flags:
                blocked = min(blocked + 1, self.reserve)
                continue
            if len(fr) - blocked <= 0 or n >= maxn:
                break
            u = fr[0]
            self.owner[u] = it["name"]
            self.unit_of[it["name"]] = u
            it["emit"](c, UNIT0 + UNIT * u, it["name"])
            c.k.comment(f"issued {it['name']} -> unit {u}")
            n += 1


class Ctx:
    def __init__(self, role, opts, va, sched):
        self.k = Prog(role)
        self.role = role
        self.va = va
        self.hi = {}
        self.opts = opts
        self.sched = sched

    def ds(self, base, absoff):
        h = absoff >> 16
        imm = absoff & 0xFFFF
        if h == 0:
            r = base
        else:
            if (base, h) not in self.hi:
                r = self.va.get()
                self.k(f"v_add_u32 v{r}, {h << 16}, v{base}")
                self.hi[(base, h)] = r
            r = self.hi[(base, h)]
        return f"v{r}", (f" offset:{imm}" if imm else "")

    def pre_hi(self, base, hs=(1, 2)):
        for h in hs:
            self.ds(base, h << 16)

    def free_base(self, base):
        for key in [x for x in self.hi if x[0] == base]:
            self.va.put(self.hi.pop(key))
        self.va.put(base)

    def dsr(self, mn, dst, n, base, absoff, tag=None):
        r, o = self.ds(base, absoff)
        return self.k(f"{mn} {vr(dst, n)}, {r}{o}", tag=tag)

    def dsw(self, mn, base, absoff, src, n):
        r, o = self.ds(base, absoff)
        return self.k(f"{mn} {r}, {vr(src, n)}{o}")

    def dma(self, voff, srd_, soff, lds, inst=0, sc1=False, tag=None, sadd=None, wave=True):
        k = self.k
        imm = lds - inst
        assert imm >= 0
        if wave:
            k(f"s_add_u32 m0, s{sW1K}, {imm}")
        else:
            k(f"s_mov_b32 m0, {imm}")
        if sadd is not None:
            k(f"s_add_u32 s{sT+8}, s{sadd[0]}, {sadd[1]}")
            soff = f"s{sT+8}"
        o = f" offset:{inst}" if inst else ""
        k(f"buffer_load_dwordx4 v{voff}, s[{srd_}:{srd_+3}], {soff} offen{o}{' sc1' if sc1 else ''} lds", tag=tag)

    def bf16r(self, d, s):
        self.k(f"v_cvt_pk_bf16_f32 v{d}, v{s}, v{s}\nv_and_b32 v{d}, 0xffff0000, v{d}")

    def barrier(self, free=(), issue=True):
        self.k("s_barrier")
        for f in free:
            self.sched.free(f)
        if issue:
            self.sched.issue(self)

    def stamp(self, idx):
        if not self.opts.get("stamps"):
            return
        self.k(f"""s_memtime s[{sT+5}:{sT+6}]
        s_waitcnt lgkmcnt(0)
        v_writelane_b32 v255, s{sT+5}, {idx}""")

    def stamp_flush(self):
        if not self.opts.get("stamps"):
            return
        t = self.va.get()
        self.k(f"""s_mov_b64 exec, -1
        s_lshl_b32 s{sT+5}, s2, 3
        s_add_u32 s{sT+5}, s{sT+5}, s{sW}
        s_lshl_b32 s{sT+5}, s{sT+5}, 8
        s_add_u32 s{sT+5}, s{sT+5}, {WS_STAMP}
        v_lshlrev_b32 v{t}, 2, v1
        buffer_store_dword v255, v{t}, s[{sWS}:{sWS+3}], s{sT+5} offen""")
        if self.opts.get("dbg"):
            lab = self.k.label("L_dbg")
            lab2 = self.k.label("L_dbg")
            u = self.va.get(2)
            wg = self.opts.get("dbg") - 1
            srd(self.k, sMI, P_DBG, 256)
            self.k(f"""s_cmp_lg_u32 s{sW}, 0
            s_cbranch_scc1 {lab}""")
            self.k.region_begin()
            self.k(f"""s_memrealtime s[{sT+5}:{sT+6}]
            s_waitcnt lgkmcnt(0)
            v_readlane_b32 s{sT+6}, v255, 63
            s_not_b32 s{sT+6}, s{sT+6}
            v_mov_b32 v{u}, s{sT+6}
            v_mov_b32 v{u+1}, s{sT+5}
            v_mov_b32 v{t}, 0
            s_mov_b64 exec, 1
            buffer_atomic_umax v{u}, v{t}, s[{sMI}:{sMI+3}], 0 offen
            buffer_atomic_umax v{u+1}, v{t}, s[{sMI}:{sMI+3}], 0 offen offset:4
            s_cmp_lg_u32 s2, {wg}
            s_cbranch_scc1 {lab2}
            s_mov_b64 exec, 0x3fff
            v_lshlrev_b32 v{t}, 2, v1
            buffer_store_dword v255, v{t}, s[{sMI}:{sMI+3}], 0 offen offset:8
            {lab2}:
            s_mov_b64 exec, -1""")
            self.k.region_end()
            self.k(f"{lab}:")
            self.va.put(u, 2)
        self.va.put(t)


class G:
    pass


def prologue(c, g):
    k, va = c.k, c.va
    k(f"""
    s_cmp_ge_u32 s2, 256
    s_cbranch_scc1 L_exit
    s_load_dwordx16 s[4:19], s[0:1], 0
    s_load_dwordx16 s[20:35], s[0:1], 64
    s_load_dwordx2 s[36:37], s[0:1], 128
    {"s_memrealtime s[98:99]" if c.opts.get("dbg") else ""}
    v_lshrrev_b32 v2, 6, v0
    v_and_b32 v1, 63, v0
    v_readfirstlane_b32 s{sW}, v2
    s_and_b32 s{sG}, s2, 7
    s_lshl_b32 s{sG}, s{sG}, 1
    s_lshr_b32 s{sT}, s2, 7
    s_add_u32 s{sG}, s{sG}, s{sT}
    s_lshr_b32 s{sJ}, s2, 3
    s_and_b32 s{sJ}, s{sJ}, 15
    s_lshl_b32 s{sT0}, s{sG}, 7
    s_and_b32 s{sRH}, s{sJ}, 1
    s_lshr_b32 s{sC}, s{sJ}, 1
    s_lshr_b32 s{sT}, s{sC}, 1
    s_and_b32 s{sT+1}, s{sT}, 1
    s_lshl_b32 s{sT+1}, s{sT+1}, 1
    s_sub_u32 s{sOFF5}, 2, s{sT+1}
    s_cmp_lt_u32 s{sT}, 2
    s_cselect_b32 s{sOFF1}, 1, s{sT+1}
    s_lshl_b32 s{sW1K}, s{sW}, 10
    s_mov_b32 s{sI512}, {fhex(1/512)}
    s_mov_b32 s{sK3}, {fhex(-K3)}
    s_mov_b32 s{sONE}, 0x3f803f80
    s_lshl_b32 s{sC128}, s{sC}, 7
    s_lshl_b32 s{sCrow}, s{sC}, 16
    s_lshl_b32 s{sJ256}, s{sJ}, 8
    s_lshl_b32 s{sT}, s{sRH}, 6
    s_add_u32 s{sT}, s{sT}, s{sT0}
    s_lshl_b32 s{sHP}, s{sT}, 10
    s_lshl_b32 s{sH}, s{sT}, 11
    s_add_u32 s{sH}, s{sH}, {WS_H}
    s_mul_i32 s{sU}, s{sT}, 3584
    s_add_u32 s{sU}, s{sU}, {WS_U}
    s_lshl_b32 s{sX1a}, s{sT0}, 10
    s_add_u32 s{sX1a}, s{sX1a}, {WS_X1}
    s_add_u32 s{sX1b}, s{sX1a}, 65536
    """)
    assert WS_HP == 0
    g.vR1k, g.vK1k = va.get(), va.get()
    g.vX0, g.vX1, g.vB = va.get(), va.get(), va.get()
    g.vnon = va.get()
    g.srow = va.get(4)
    r8, pos, t, u, f = [va.get() for _ in range(5)]
    k(f"""v_lshrrev_b32 v{r8}, 3, v1
    v_and_b32 v{pos}, 7, v1
    s_and_b32 s{sT}, s{sW}, 1
    s_lshl_b32 s{sT+1}, s{sT}, 2
    v_lshrrev_b32 v{u}, 1, v{r8}
    v_or_b32 v{f}, s{sT+1}, v{u}
    v_xor_b32 v{f}, v{f}, v{pos}
    v_lshlrev_b32 v{f}, 4, v{f}
    s_lshl_b32 s{sT+2}, s{sW}, 3
    v_add_u32 v{t}, s{sT+2}, v{r8}              ; 8w+r8
    v_lshl_add_u32 v{g.vR1k}, v{t}, 10, v{f}
    s_sub_u32 s{sT+3}, s{sT0}, s{sOFF5}
    s_lshl_b32 s{sT+3}, s{sT+3}, 10
    v_add_u32 v{g.vX0}, s{sT+3}, v{g.vR1k}
    v_add_u32 v{g.vX1}, 0x10000, v{g.vX0}
    v_and_b32 v{u}, 1, v{u}
    s_lshl_b32 s{sT+1}, s{sT}, 1
    v_or_b32 v{u}, s{sT+1}, v{u}
    v_lshlrev_b32 v{u}, 1, v{u}
    v_xor_b32 v{u}, v{u}, v{pos}
    v_lshlrev_b32 v{u}, 4, v{u}
    v_lshl_add_u32 v{g.vK1k}, v{t}, 10, v{u}
    v_and_b32 v{g.vB}, 0x7fff, v{g.vR1k}
    s_lshl_b32 s{sT}, s{sJ}, 15
    v_add_u32 v{g.vB}, s{sT}, v{g.vB}
    s_lshl_b32 s{sT}, s{sJ}, 3
    s_add_u32 s{sT}, s{sT}, s{sT0}
    s_add_u32 s{sT}, s{sT}, s{sW}
    s_lshl_b32 s{sT}, s{sT}, 10
    v_lshlrev_b32 v{t}, 4, v1
    v_mov_b32 v{g.vnon}, 0
    s_mov_b32 s{sT+1}, {WS_NONCE}
    s_waitcnt lgkmcnt(0)
    """)
    if c.opts.get("dbg"):
        k("v_writelane_b32 v255, s98, 63")
    srd(k, sX, P_X, 2048 * 1024)
    srd(k, sWS, P_WS, 0x10000000)
    k(f"""buffer_load_dword v{g.vnon}, v{g.vnon}, s[{sWS}:{sWS+3}], s{sT+1} offen sc1
    buffer_load_dwordx4 {vr(g.srow,4)}, v{t}, s[{sX}:{sX+3}], s{sT} offen""")
    srd(k, sWA, P_W1, 512 * 1024)
    srd(k, sW2, P_W2, 512 * 1024)
    for r in (r8, pos, t, u, f):
        va.put(r)
    k(f"""
    s_cmp_ge_u32 s{sW}, 4
    s_cbranch_scc1 L_roleB
    """)


def wave_sum(c, S, x):
    k = c.k
    for m in ("quad_perm:[1,0,3,2]", "quad_perm:[2,3,0,1]", "row_half_mirror", "row_mirror"):
        for s in S:
            k(f"v_add_f32_dpp v{s}, v{s}, v{s} {m} row_mask:0xf bank_mask:0xf")
    for sw in ("v_permlane16_swap_b32", "v_permlane32_swap_b32"):
        for s, xx in zip(S, x):
            k(f"v_mov_b32 v{xx}, v{s}")
        for s, xx in zip(S, x):
            k(f"{sw} v{s}, v{xx}")
        for s, xx in zip(S, x):
            k(f"v_add_f32 v{s}, v{s}, v{xx}")


def stat_publish(c, g):
    k, va = c.k, c.va
    S1, S2 = va.get(), va.get()
    t = va.get(8)
    mean, var, m1, d1, a1, m2, d2, x = range(t, t + 8)
    o = va.get(4)
    k(f"v_mov_b32 v{S1}, 0\nv_mov_b32 v{S2}, 0")
    for i in range(4):
        k(f"v_dot2c_f32_bf16 v{S1}, s{sONE}, v{g.srow+i}\nv_dot2c_f32_bf16 v{S2}, v{g.srow+i}, v{g.srow+i}")
    wave_sum(c, [S1, S2], [mean, var])
    k(f"""v_mul_f32 v{mean}, {fhex(1/512)}, v{S1}
    v_mul_f32 v{x}, v{mean}, v{mean}
    v_fma_f32 v{var}, v{S2}, s{sI512}, -v{x}
    v_max_f32 v{var}, 0, v{var}""")
    c.bf16r(m1, mean)
    c.bf16r(x, var)
    k(f"v_add_f32 v{x}, {fhex(EPS)}, v{x}")
    c.bf16r(x, x)
    k(f"v_sqrt_f32 v{x}, v{x}")
    c.bf16r(d1, x)
    k(f"""v_rcp_f32 v{a1}, v{d1}
    v_sub_f32 v{x}, v{mean}, v{m1}
    v_mul_f32 v{m2}, v{x}, v{a1}
    v_mul_f32 v{x}, v{var}, v{a1}
    v_mul_f32 v{x}, v{x}, v{a1}""")
    c.bf16r(x, x)
    k(f"v_add_f32 v{x}, {fhex(EPS)}, v{x}")
    c.bf16r(x, x)
    k(f"""v_sqrt_f32 v{d2}, v{x}
    v_cvt_pk_bf16_f32 v{o}, v{m1}, v{d1}
    v_cvt_pk_bf16_f32 v{o+2}, v{m2}, v{d2}
    v_readfirstlane_b32 s{sNON}, v{g.vnon}
    s_add_u32 s{sNON}, s{sNON}, 1
    v_mov_b32 v{o+1}, s{sNON}
    v_mov_b32 v{o+3}, s{sNON}
    s_lshl_b32 s{sT}, s{sJ}, 3
    s_add_u32 s{sT}, s{sT}, s{sT0}
    s_add_u32 s{sT}, s{sT}, s{sW}
    s_lshl_b32 s{sT}, s{sT}, 4
    s_add_u32 s{sT}, s{sT}, {WS_RS}
    v_mov_b32 v{x}, 0
    s_mov_b64 exec, 1
    buffer_store_dwordx4 {vr(o,4)}, v{x}, s[{sWS}:{sWS+3}], s{sT} offen sc1
    s_mov_b64 exec, -1""")
    va.put(S1); va.put(S2); va.put(t, 8); va.put(o, 4)
    va.put(g.srow, 4); va.put(g.vnon)


def gelu_many(c, xs):
    k, va = c.k, c.va
    ts = [va.get() for _ in xs]
    kk = va.get()
    k(f"v_mov_b32 v{kk}, {fhex(-K1)}")
    for x, t in zip(xs, ts):
        k(f"v_mul_f32 v{t}, v{x}, v{x}")
    for x, t in zip(xs, ts):
        k(f"v_fma_f32 v{t}, v{t}, s{sK3}, v{kk}")
    for x, t in zip(xs, ts):
        k(f"v_mul_f32 v{t}, v{t}, v{x}")
    for x, t in zip(xs, ts):
        k(f"v_exp_f32 v{t}, v{t}")
    for x, t in zip(xs, ts):
        k(f"v_add_f32 v{t}, 1.0, v{t}")
    for x, t in zip(xs, ts):
        k(f"v_rcp_f32 v{t}, v{t}")
    for x, t in zip(xs, ts):
        k(f"v_mul_f32 v{x}, v{x}, v{t}")
    for t in ts:
        va.put(t)
    va.put(kk)


def p1_issue(c, g, s):
    k = c.k
    sl = RING0 + (s % 4) * SLOT
    c.dma(g.vX0, sX, 0, sl, inst=s * 128)
    c.dma(g.vX1, sX, 0, sl + 8192, inst=s * 128)
    if c.role == "B":
        k("s_mov_b64 exec, 0xffff")
        c.dma(c.vXh, sX, 0, sl + 16384, inst=s * 128, wave=False)
        k("s_mov_b64 exec, -1")
    c.dma(g.vK1k, sWA, None, sl + XW1, sadd=(sC128, s * 65536))
    c.dma(g.vB, sWB, 0, sl + XB, inst=s * 128, tag=f"p1s{s}")


def p1_step_sync(c, g, s):
    k = c.k
    if c.opts.get("sp") == 1:
        c.stamp(16 + 3 * s)
    k.waitvm(f"p1s{s}")
    if c.opts.get("sp") == 1:
        c.stamp(17 + 3 * s)
    k("s_barrier")
    if c.opts.get("sp") == 1:
        c.stamp(18 + 3 * s)
    if 1 <= s and s + 3 < 8:
        p1_issue(c, g, s + 3)
    sc = c.sched
    rel = {4: [8], 5: [0], 6: [1, 2], 7: [3, 4]}.get(s, [])
    for u in rel:
        sc.owner[u] = None
    if s >= 4:
        sc.issue(c)


def flag_store(c, phase):
    k, va = c.k, c.va
    t = va.get(2)
    lab = k.label("L_fs")
    k(f"""s_cmp_lg_u32 s{sW}, 0
    s_cbranch_scc1 {lab}""")
    k.region_begin("W0")
    k(f"""s_lshl_b32 s{sT}, s{sG}, 7
    s_lshl_b32 s{sT+1}, s{sRH}, 5
    s_add_u32 s{sT}, s{sT}, s{sT+1}
    s_lshl_b32 s{sT+1}, s{sC}, 2
    s_add_u32 s{sT}, s{sT}, s{sT+1}
    s_add_u32 s{sT}, s{sT}, {WS_FL + phase * 2048}
    v_mov_b32 v{t}, s{sT}
    v_mov_b32 v{t+1}, s{sNON}
    s_mov_b64 exec, 1
    buffer_store_dword v{t+1}, v{t}, s[{sWS}:{sWS+3}], 0 offen sc1
    s_mov_b64 exec, -1""")
    k.region_end()
    k(f"{lab}:")
    va.put(t, 2)


def flag_wait(c, phase, mask_kind, free=()):
    k, va = c.k, c.va
    t = va.get(2)
    lab = k.label("L_fw")
    loop = k.label("L_fl")
    done = k.label("L_fd")
    k(f"""s_cmp_lg_u32 s{sW}, 0
    s_cbranch_scc1 {lab}""")
    k.region_begin("W0")
    k(f"""s_lshl_b32 s{sT}, s{sG}, 7
    s_add_u32 s{sT}, s{sT}, {WS_FL + phase * 2048}
    v_lshlrev_b32 v{t}, 2, v1
    v_add_u32 v{t}, s{sT}, v{t}
    s_mov_b32 s{sT+1}, {SPIN}""")
    if mask_kind == "half":
        k(f"""s_lshl_b32 s{sT+2}, s{sRH}, 3
        s_lshl_b64 exec, 0xff, s{sT+2}""")
    elif mask_kind == "all":
        k("s_mov_b64 exec, 0xffff")
    else:
        k("s_mov_b64 exec, 0x7f7f")
    k(f"""{loop}:
    buffer_load_dword v{t+1}, v{t}, s[{sWS}:{sWS+3}], 0 offen sc1
    s_waitcnt vmcnt(0)
    v_cmp_ne_u32 vcc, s{sNON}, v{t+1}
    s_cbranch_vccz {done}
    s_sub_u32 s{sT+1}, s{sT+1}, 1
    s_cmp_lg_u32 s{sT+1}, 0
    s_cbranch_scc1 {loop}
    {done}:
    s_mov_b64 exec, -1""")
    k.region_end()
    k(f"{lab}:")
    va.put(t, 2)
    c.sched.flags.add(phase)
    k("s_waitcnt lgkmcnt(0)")
    c.barrier(free=free)


def cmad(k, dr, di, ar, ai, br, bi, cr, ci):
    assert dr not in (br, bi) and di not in (br, bi)
    k(f"""v_fma_f32 v{dr}, v{ar}, v{br}, v{cr}
    v_fma_f32 v{di}, v{ar}, v{bi}, v{ci}
    v_fma_f32 v{dr}, -v{ai}, v{bi}, v{dr}
    v_fma_f32 v{di}, v{ai}, v{br}, v{di}""")


def csq(k, r, i, t):
    k(f"""v_mul_f32 v{t}, v{i}, v{i}
    v_fma_f32 v{t}, v{r}, v{r}, -v{t}
    v_mul_f32 v{i}, v{r}, v{i}
    v_add_f32 v{i}, v{i}, v{i}
    v_mov_b32 v{r}, v{t}""")


def p1_roleA(c, g):
    k, va = c.k, c.va
    srd(k, sWB, P_BRE, 512 * 1024)
    i32, hf, t, u = va.get(), va.get(), va.get(), va.get()
    lre, lim, ldt = va.get(), va.get(), va.get()
    k(f"""v_and_b32 v{i32}, 31, v1
    v_lshrrev_b32 v{hf}, 5, v1
    s_lshl_b32 s{sT}, s{sJ}, 6
    v_lshlrev_b32 v{t}, 1, v{i32}""")
    for p, d in ((P_LRE, lre), (P_LIM, lim), (P_LDT, ldt)):
        srd(k, sMI, p, 1024)
        k(f"buffer_load_ushort v{d}, v{t}, s[{sMI}:{sMI+3}], s{sT} offen")
    for s in range(4):
        p1_issue(c, g, s)
    c.stamp(0)
    aA = [va.get() for _ in range(4)]
    aB = [va.get() for _ in range(4)]
    k(f"""v_lshrrev_b32 v{t}, 2, v{i32}
    v_and_b32 v{t}, 1, v{t}
    v_lshlrev_b32 v{t}, 4, v{t}              ; 16*((i>>2)&1)
    v_lshrrev_b32 v{u}, 3, v{i32}
    v_lshl_add_u32 v{t}, v{u}, 2, v{t}       ; +4*(i>>3)
    v_and_b32 v{u}, 3, v{i32}
    v_add_u32 v{t}, v{t}, v{u}               ; tau
    s_lshl_b32 s{sT}, s{sW}, 5
    s_add_u32 s{sT}, s{sT}, s{sOFF5}
    v_add_u32 v{t}, s{sT}, v{t}              ; rho
    v_bfe_u32 v{u}, v{t}, 1, 3
    v_xor_b32 v{u}, v{u}, v{hf}
    v_lshlrev_b32 v{u}, 4, v{u}
    v_lshl_add_u32 v{aA[0]}, v{t}, 7, v{u}
    v_bfe_u32 v{u}, v{i32}, 1, 3
    v_xor_b32 v{u}, v{u}, v{hf}
    v_lshlrev_b32 v{u}, 4, v{u}
    v_lshl_add_u32 v{aB[0]}, v{i32}, 7, v{u}
    s_lshl_b32 s{sT}, s{sW}, 5
    v_xor_b32 v{aA[0]}, s{sT}, v{aA[0]}
    v_xor_b32 v{aB[0]}, s{sT}, v{aB[0]}""")
    for i in range(1, 4):
        k(f"v_xor_b32 v{aA[i]}, {i*32}, v{aA[0]}\nv_xor_b32 v{aB[i]}, {i*32}, v{aB[0]}")
    for a in aA + aB:
        c.pre_hi(a, (1,))
    stat_publish(c, g)
    accr, acci = va.get(16), va.get(16)
    csr, csi = va.get(), va.get()
    k(f"v_mov_b32 v{csr}, 0\nv_mov_b32 v{csi}, 0")
    fa = [va.get(4) for _ in range(4)]
    fr = [va.get(4) for _ in range(4)]
    fi = [va.get(4) for _ in range(4)]
    lr, li, kr, ki, l16r, l16i, l128r, l128i = [va.get() for _ in range(8)]
    dt, e, x2 = va.get(), va.get(), va.get()
    k(f"""v_lshlrev_b32 v{lre}, 16, v{lre}
    v_lshlrev_b32 v{lim}, 16, v{lim}
    v_lshlrev_b32 v{ldt}, 16, v{ldt}
    v_mul_f32 v{dt}, {fhex(LOG2E)}, v{ldt}
    v_exp_f32 v{dt}, v{dt}""")
    c.bf16r(dt, dt)
    k(f"""v_mul_f32 v{e}, v{dt}, v{lre}
    v_mul_f32 v{e}, {fhex(LOG2E)}, v{e}
    v_exp_f32 v{e}, v{e}
    v_mul_f32 v{x2}, v{dt}, v{lim}
    v_mul_f32 v{x2}, {fhex(0.15915494309189535)}, v{x2}
    v_cos_f32 v{lr}, v{x2}
    v_sin_f32 v{li}, v{x2}
    v_mul_f32 v{lr}, v{lr}, v{e}
    v_mul_f32 v{li}, v{li}, v{e}
    v_mul_f32 v{e}, v{lre}, v{lre}
    v_fma_f32 v{e}, v{lim}, v{lim}, v{e}
    v_rcp_f32 v{e}, v{e}
    v_add_f32 v{x2}, -1.0, v{lr}             ; (lam-1).re
    v_mul_f32 v{kr}, v{x2}, v{lre}
    v_fma_f32 v{kr}, v{li}, v{lim}, v{kr}    ; re((lam-1)*conj(L))
    v_mul_f32 v{ki}, v{li}, v{lre}
    v_fma_f32 v{ki}, -v{x2}, v{lim}, v{ki}   ; im
    v_add_f32 v{e}, v{e}, v{e}
    v_mul_f32 v{kr}, v{kr}, v{e}             ; 2*coef
    v_mul_f32 v{ki}, v{ki}, v{e}
    v_mov_b32 v{l16r}, v{lr}
    v_mov_b32 v{l16i}, v{li}""")
    for _ in range(4):
        csq(k, l16r, l16i, x2)
    k(f"v_mov_b32 v{l128r}, v{l16r}\nv_mov_b32 v{l128i}, v{l16i}")
    for _ in range(3):
        csq(k, l128r, l128i, x2)
    for r in (lre, lim, ldt, dt, e, x2):
        va.put(r)
    for s in range(8):
        p1_step_sync(c, g, s)
        sl = RING0 + (s % 4) * SLOT
        for i in range(4):
            c.dsr("ds_read_b128", fa[i], 4, aA[i], sl)
            c.dsr("ds_read_b128", fr[i], 4, aB[i], sl + XB)
            c.dsr("ds_read_b128", fi[i], 4, aB[i], sl + XB + 4096)
        for i in range(4):
            z = (s == 0 and i == 0)
            k(f"v_mfma_f32_32x32x16_bf16 {vr(accr,16)}, {vr(fa[i],4)}, {vr(fr[i],4)}, {'0' if z else vr(accr,16)}")
            k(f"v_mfma_f32_32x32x16_bf16 {vr(acci,16)}, {vr(fa[i],4)}, {vr(fi[i],4)}, {'0' if z else vr(acci,16)}")
            if i == 0:
                for r in range(4):
                    k(f"v_dot2c_f32_bf16 v{csr}, s{sONE}, v{fr[0]+r}\nv_dot2c_f32_bf16 v{csi}, s{sONE}, v{fi[0]+r}")
    for a in aA + aB:
        c.free_base(a)
    for f in fa + fr + fi:
        va.put(f, 4)
    k(f"""v_permlane32_swap_b32 v{csr}, v{csi}
    v_add_f32 v{csr}, v{csr}, v{csi}
    v_lshlrev_b32 v{t}, 5, v{i32}
    v_lshl_add_u32 v{u}, v{hf}, 2, v{t}
    s_lshl_b32 s{sT}, s{sW}, 3
    v_add_u32 v{u}, s{sT}, v{u}""")
    c.dsw("ds_write_b32", u, CSB, csr, 1)
    k("s_waitcnt lgkmcnt(0)\ns_barrier")
    for uu in (5, 6, 7):
        c.sched.owner[uu] = None
    c.sched.issue(c)
    c.stamp(1)
    cs = va.get(8)
    c.dsr("ds_read_b128", cs, 4, t, CSB)
    c.dsr("ds_read_b128", cs + 4, 4, t, CSB + 16)
    c.free_base(t); c.free_base(u)
    st = va.get(32)
    t = va.get()
    k(f"""s_lshl_b32 s{sT}, s{sW}, 5
    s_add_u32 s{sT}, s{sT}, s{sOFF5}
    v_lshl_add_u32 v{t}, v{hf}, 4, s{sT}
    v_lshlrev_b32 v{t}, 3, v{t}""")
    for i in range(8):
        c.dsr("ds_read_b128", st + 4 * i, 4, t, ST_A + 16 * i)
    c.free_base(t)
    k(f"""v_add_f32 v{csr}, v{cs}, v{cs+2}
    v_add_f32 v{csi}, v{cs+1}, v{cs+3}
    v_add_f32 v{cs+4}, v{cs+4}, v{cs+6}
    v_add_f32 v{cs+5}, v{cs+5}, v{cs+7}
    v_add_f32 v{csr}, v{csr}, v{cs+4}
    v_add_f32 v{csi}, v{csi}, v{cs+5}""")
    va.put(cs, 8)
    t1, t2 = va.get(), va.get()
    for r in range(16):
        a, b = st + 2 * r, st + 2 * r + 1
        k(f"""v_mul_f32 v{t1}, v{b}, v{csr}
        v_mul_f32 v{t2}, v{b}, v{csi}
        v_fma_f32 v{accr+r}, v{a}, v{accr+r}, -v{t1}
        v_fma_f32 v{acci+r}, v{a}, v{acci+r}, -v{t2}""")
    va.put(st, 32); va.put(csr); va.put(csi); va.put(t1); va.put(t2)
    h = [va.get(2), va.get(2)]
    cur = (accr, acci)
    for r in range(1, 16):
        d = h[r & 1]
        cmad(k, d, d + 1, lr, li, cur[0], cur[1], accr + r, acci + r)
        cur = (d, d + 1)
    sega = va.get()
    k(f"""s_lshl_b32 s{sT}, s{sW}, 9
    v_lshlrev_b32 v{sega}, 3, v1
    v_add_u32 v{sega}, s{sT}, v{sega}""")
    c.dsw("ds_write_b64", sega, SEG, cur[0], 2)
    c.free_base(sega)
    k("s_waitcnt lgkmcnt(0)\ns_barrier")
    flag_store(c, 0)
    c.stamp(2)
    eseg = va.get(16)
    sega = va.get()
    k(f"v_lshlrev_b32 v{sega}, 3, v{i32}")
    for s in range(8):
        c.dsr("ds_read_b64", eseg + 2 * s, 2, sega, SEG + 256 * s)
    c.free_base(sega)
    cur = (eseg, eseg + 1)
    for s in range(1, 8):
        d = h[s & 1]
        cmad(k, d, d + 1, l16r, l16i, cur[0], cur[1], eseg + 2 * s, eseg + 2 * s + 1)
        cur = (d, d + 1)
    g4 = va.get(4)
    t = va.get()
    k(f"""v_mov_b32 v{g4}, v{cur[0]}
    v_mov_b32 v{g4+1}, s{sNON}
    v_mov_b32 v{g4+2}, v{cur[1]}
    v_mov_b32 v{g4+3}, s{sNON}
    s_lshl_b32 s{sT}, s{sG}, 13
    s_lshl_b32 s{sT+1}, s{sJ}, 9
    s_add_u32 s{sT}, s{sT}, s{sT+1}
    s_add_u32 s{sT}, s{sT}, {WS_E}
    v_lshlrev_b32 v{t}, 4, v{i32}
    s_mov_b64 exec, 0xffffffff
    buffer_store_dwordx4 {vr(g4,4)}, v{t}, s[{sWS}:{sWS+3}], s{sT} offen sc1
    s_mov_b64 exec, -1""")
    va.put(g4, 4); va.put(t); va.put(h[0], 2); va.put(h[1], 2)
    g.scan = dict(accr=accr, acci=acci, lr=lr, li=li, kr=kr, ki=ki, l16r=l16r, l16i=l16i, l128r=l128r, l128i=l128i,
                  eseg=eseg, i32=i32, hf=hf)


def kn_addr(c, aW0, aW1, tmp):
    t, u, q = tmp
    c.k(f"""v_lshrrev_b32 v{q}, 4, v1                   ; gq
    v_bfe_u32 v{t}, v1, 2, 2                    ; r'
    v_lshl_add_u32 v{u}, v{q}, 3, v{t}          ; 8gq+r'
    v_lshlrev_b32 v{aW0}, 7, v{u}
    v_lshrrev_b32 v{t}, 1, v{t}
    v_and_b32 v{u}, 1, v{q}
    v_lshl_add_u32 v{t}, v{u}, 1, v{t}          ; s
    v_lshlrev_b32 v{t}, 1, v{t}                 ; s<<1
    v_bfe_u32 v{u}, v1, 1, 1                    ; c4>>1
    s_and_b32 s{sT}, s{sW}, 1
    s_lshl_b32 s{sT}, s{sT}, 2
    v_add_u32 v{u}, s{sT}, v{u}
    v_xor_b32 v{u}, v{u}, v{t}
    v_lshl_add_u32 v{aW0}, v{u}, 4, v{aW0}
    v_and_b32 v{u}, 1, v1
    v_lshl_add_u32 v{aW0}, v{u}, 3, v{aW0}
    v_xor_b32 v{aW1}, 32, v{aW0}""")


def p1_roleB(c, g):
    k, va = c.k, c.va
    srd(k, sWB, P_BIM, 512 * 1024)
    t, u, w_, q = va.get(), va.get(), va.get(), va.get()
    c.vXh = va.get()
    k(f"""s_add_u32 s{sT}, s{sT0}, 128
    s_sub_u32 s{sT}, s{sT}, s{sOFF5}
    s_lshl_b32 s{sT}, s{sT}, 10
    v_lshrrev_b32 v{t}, 3, v1
    v_lshlrev_b32 v{t}, 10, v{t}
    v_and_b32 v{u}, 7, v1
    v_lshl_add_u32 v{t}, v{u}, 4, v{t}
    v_add_u32 v{c.vXh}, s{sT}, v{t}""")
    for s in range(4):
        p1_issue(c, g, s)
    c.stamp(0)
    aW = [va.get(), va.get()]
    aXr = [va.get(), va.get()]
    kn_addr(c, aW[0], aW[1], (t, u, q))
    k(f"""s_and_b32 s{sT+3}, s{sW}, 1            ; nh
    s_bfe_u32 s{sT+4}, s{sW}, 0x10001           ; th
    s_lshl_b32 s{sT}, s{sRH}, 6
    s_lshl_b32 s{sT+1}, s{sT+4}, 5
    s_add_u32 s{sT}, s{sT}, s{sT+1}
    s_add_u32 s{sT+2}, s{sT}, s{sOFF1}
    v_and_b32 v{w_}, 15, v1
    v_add_u32 v{t}, s{sT+2}, v{w_}              ; rho
    v_bfe_u32 v{u}, v{t}, 1, 3
    v_xor_b32 v{u}, v{u}, v{q}
    v_lshlrev_b32 v{u}, 4, v{u}
    v_lshl_add_u32 v{aXr[0]}, v{t}, 7, v{u}
    v_xor_b32 v{aXr[1]}, 64, v{aXr[0]}""")
    vst = va.get()
    vo = va.get()
    k(f"""v_lshlrev_b32 v{vst}, 3, v{t}
    s_add_u32 s{sT}, s{sT}, s{sT0}
    v_add_u32 v{t}, s{sT}, v{w_}
    v_lshlrev_b32 v{vo}, 10, v{t}
    v_and_b32 v{u}, 1, v{q}
    v_lshl_add_u32 v{vo}, v{u}, 5, v{vo}
    v_lshrrev_b32 v{u}, 1, v{q}
    v_lshl_add_u32 v{vo}, v{u}, 4, v{vo}
    s_lshl_b32 s{sT+1}, s{sT+3}, 6
    s_add_u32 s{sT}, s{sC128}, s{sT+1}
    v_add_u32 v{vo}, s{sT}, v{vo}""")
    vrho, vrs, vok = va.get(), va.get(), va.get()
    k(f"""s_and_b32 s{sT}, s{sW}, 3
    s_lshl_b32 s{sT+1}, s{sT}, 6
    v_add_u32 v{vrho}, s{sT+1}, v1
    v_and_b32 v{u}, 1, v1
    v_add_u32 v{u}, 128, v{u}
    s_cmp_lt_u32 s{sT}, 2
    s_cselect_b64 vcc, -1, 0
    v_cndmask_b32 v{vrho}, v{u}, v{vrho}, vcc
    s_sub_u32 s{sT}, s{sT0}, s{sOFF5}
    v_add_u32 v{u}, s{sT}, v{vrho}
    v_max_i32 v{t}, 0, v{u}
    v_min_i32 v{t}, 2047, v{t}
    v_cmp_eq_u32 vcc, v{t}, v{u}
    v_cndmask_b32 v{vok}, 0, 1.0, vcc
    v_lshlrev_b32 v{vrs}, 4, v{t}
    v_lshlrev_b32 v{vrho}, 3, v{vrho}""")
    for r in (t, u, w_, q):
        va.put(r)
    for a in aW + aXr:
        c.pre_hi(a, (1,))
    for a in (vrho, vst):
        c.pre_hi(a, (2,))
    stat_publish(c, g)
    acc = [[va.get(4) for tt in range(2)] for a in range(2)]
    cs = [va.get(4) for a in range(2)]
    ones = va.get(4)
    for i in range(4):
        k(f"v_mov_b32 v{ones+i}, s{sONE}")
    fA = [[va.get(4) for a in range(2)] for ks in range(2)]
    fB = [[va.get(4) for tt in range(2)] for ks in range(2)]
    rs = va.get(4)
    for s in range(8):
        p1_step_sync(c, g, s)
        if s == 4:
            k(f"s_mov_b32 s{sT}, {WS_RS}")
            k(f"buffer_load_dwordx4 {vr(rs,4)}, v{vrs}, s[{sWS}:{sWS+3}], s{sT} offen sc1")
        sl = RING0 + (s % 4) * SLOT
        for ks in range(2):
            for a in range(2):
                for uu in range(2):
                    c.dsr("ds_read_b64_tr_b16", fA[ks][a] + 2 * uu, 2, aW[a], sl + XW1 + (32 * ks + 4 * uu) * 128)
            for tt in range(2):
                c.dsr("ds_read_b128", fB[ks][tt], 4, aXr[ks], sl + tt * 2048)
        if s == 7:
            stat_consume(c, rs, vrs, vrho, vok)
        for ks in range(2):
            z = (s == 0 and ks == 0)
            for a in range(2):
                for tt in range(2):
                    k(f"v_mfma_f32_16x16x32_bf16 {vr(acc[a][tt],4)}, {vr(fA[ks][a],4)}, {vr(fB[ks][tt],4)}, {'0' if z else vr(acc[a][tt],4)}")
                k(f"v_mfma_f32_16x16x32_bf16 {vr(cs[a],4)}, {vr(fA[ks][a],4)}, {vr(ones,4)}, {'0' if z else vr(cs[a],4)}")
    for a in aW + aXr:
        c.free_base(a)
    for f in fA[0] + fA[1] + fB[0] + fB[1] + [ones, rs]:
        va.put(f, 4)
    va.put(c.vXh); va.put(vrs); va.put(vok); c.free_base(vrho)
    k("s_waitcnt lgkmcnt(0)\ns_barrier")
    for uu in (5, 6, 7):
        c.sched.owner[uu] = None
    c.sched.issue(c)
    c.stamp(1)
    ab = [va.get(2), va.get(2)]
    for tt in range(2):
        c.dsr("ds_read_b64", ab[tt], 2, vst, ST_B + tt * 128)
    c.free_base(vst)
    t = va.get()
    for tt in range(2):
        for a in range(2):
            for r in range(4):
                k(f"""v_mul_f32 v{t}, v{ab[tt]+1}, v{cs[a]+r}
                v_fma_f32 v{acc[a][tt]+r}, v{ab[tt]}, v{acc[a][tt]+r}, -v{t}""")
    va.put(t)
    for tt in range(2):
        gelu_many(c, [acc[a][tt] + r for a in range(2) for r in range(4)])
        P = va.get(4)
        for a in range(2):
            for i in range(2):
                k(f"v_cvt_pk_bf16_f32 v{P+2*a+i}, v{acc[a][tt]+2*i}, v{acc[a][tt]+2*i+1}")
        for i in range(2):
            k(f"v_permlane16_swap_b32 v{P+i}, v{P+2+i}")
        k(f"s_mov_b32 s{sT}, {WS_HP + tt*16*1024}")
        k(f"buffer_store_dwordx4 {vr(P,4)}, v{vo}, s[{sWS}:{sWS+3}], s{sT} offen sc1", tag=f"hp{tt}")
        va.put(P, 4)
    for a in range(2):
        va.put(cs[a], 4); va.put(ab[a], 2)
        for tt in range(2):
            va.put(acc[a][tt], 4)
    va.put(vo)
    k.waitvm("hp1")
    k("s_barrier")
    c.stamp(2)


def stat_consume(c, rs, vrs, vrho, vok):
    k, va = c.k, c.va
    loop, done = k.label("L_sl"), k.label("L_sd")
    t = va.get(8)
    m1, d1, m2, d2, a1, a2, x, y = range(t, t + 8)
    k(f"""v_mov_b32 v{x}, v{rs+1}
    s_mov_b32 s{sT+1}, {SPIN}
    s_mov_b32 s{sT}, {WS_RS}
    {loop}:
    v_xor_b32 v{x}, s{sNON}, v{rs+1}
    v_xor_b32 v{y}, s{sNON}, v{rs+3}
    v_or_b32 v{x}, v{x}, v{y}
    v_cmp_ne_u32 vcc, 0, v{x}
    s_cbranch_vccz {done}""")
    k.region_begin()
    k(f"""buffer_load_dwordx4 {vr(rs,4)}, v{vrs}, s[{sWS}:{sWS+3}], s{sT} offen sc1
    s_waitcnt vmcnt(0)
    s_sub_u32 s{sT+1}, s{sT+1}, 1
    s_cmp_lg_u32 s{sT+1}, 0
    s_cbranch_scc1 {loop}""")
    k.region_end()
    o = [va.get(2) for _ in range(3)]
    k(f"""{done}:
    v_lshlrev_b32 v{m1}, 16, v{rs}
    v_and_b32 v{d1}, 0xffff0000, v{rs}
    v_lshlrev_b32 v{m2}, 16, v{rs+2}
    v_and_b32 v{d2}, 0xffff0000, v{rs+2}
    v_rcp_f32 v{a1}, v{d1}
    v_rcp_f32 v{a2}, v{d2}
    v_mul_f32 v{m1}, v{m1}, v{vok}
    v_mul_f32 v{m2}, v{m2}, v{vok}
    v_mov_b32 v{o[0]}, v{a1}
    v_mul_f32 v{o[0]+1}, v{m1}, v{a1}
    v_mul_f32 v{o[1]}, v{a1}, v{a2}
    v_fma_f32 v{x}, v{m2}, v{d1}, v{m1}
    v_mul_f32 v{o[1]+1}, v{x}, v{o[1]}
    v_mov_b32 v{o[2]}, v{m1}
    v_mov_b32 v{o[2]+1}, v{a1}""")
    for oo, st in zip(o, (ST_A, ST_B, ST_C)):
        c.dsw("ds_write_b64", vrho, st, oo, 2)
        va.put(oo, 2)
    va.put(t, 8)


def add_w2_items(sc, g):
    for i in range(4):
        def em(c, base, name, i=i):
            for p in range(2):
                c.dma(g.vK1k, sW2, None, base + 8192 * p, sadd=(sC128, (2 * i + p) * 65536), tag=name if p else None)
        sc.add(f"w2_{i}", None, em)


def merge_vm(a, b):
    out = []
    seen = set()
    for q in (a, b):
        for e in q:
            if e["tag"] is not None and e["tag"] not in seen:
                seen.add(e["tag"])
    for q in (a, b):
        assert not any(e["dst"] for e in q), "register loads pending at join"
    order = [e["tag"] for e in a if e["tag"] is not None]
    for e in b:
        if e["tag"] is not None and e["tag"] not in order:
            order.append(e["tag"])
    return [dict(dst=set(), tag=t, region=None) for t in order]


def build(opts):
    g = G()
    sc = Sched()
    sc.owner = ["P1"] * NUNIT
    add_w2_items(sc, g)
    P = Ctx("pro", opts, VA(2, 255), sc)
    prologue(P, g)
    A = Ctx("A", opts, P.va.clone(), sc.clone())
    B = Ctx("B", opts, P.va.clone(), sc.clone())
    p1_roleA(A, g)
    p1_roleB(B, g)
    assert A.sched.unit_of == B.sched.unit_of
    stop = opts.get("stop", 99)
    B.k("s_branch L_common")
    tp = P.k.finalize()
    ta = A.k.finalize(init_vm=P.k.final_vm)
    tb = B.k.finalize(init_vm=P.k.final_vm)
    assert not A.k.final_ds and not B.k.final_ds
    vm0 = merge_vm(A.k.final_vm, B.k.final_vm)
    done0 = A.k.final_done | B.k.final_done
    body = tp + ta + "L_common:\n"
    if stop > 1:
        import mk2
        va = VA(0, 0)
        va.free = sorted(set(A.va.free) & set(B.va.free))
        for r in (g.vX0, g.vX1, g.vB):
            va.put(r)
        body += f"  s_cmp_ge_u32 s{sJ}, 14\n  s_cbranch_scc1 L_nog3\n"
        for var, lab in ((True, None), (False, "L_nog3")):
            C = Ctx("C" if var else "D", opts, va.clone(), A.sched.clone())
            mk2.rest(C, g, opts, var)
            C.stamp_flush()
            C.k("s_waitcnt vmcnt(0) lgkmcnt(0)\ns_endpgm")
            if lab:
                body += lab + ":\n"
            body += C.k.finalize(init_vm=vm0, init_done=done0)
    else:
        body += "  s_waitcnt vmcnt(0) lgkmcnt(0)\n  s_endpgm\n"
    body += "L_roleB:\n" + tb + "L_exit:\n  s_endpgm\n"
    n = NAME + "_kernel"
    hdr = f"""; fused S5-SSM + shift-MLP kernel (generated by dev/mk.py)
; @launch grid=(256,1,1) block=(512,1,1) lds={LDS_BYTES}
.amdgcn_target "amdgcn-amd-amdhsa--gfx950"
.text
.globl {n}
.p2align 8
.type {n},@function
{n}:
"""
    tail = f""".section .rodata,"a"
.p2align 6
.amdhsa_kernel {n}
  .amdhsa_next_free_vgpr 256
  .amdhsa_next_free_sgpr 102
  .amdhsa_accum_offset 256
  .amdhsa_group_segment_fixed_size 0
  .amdhsa_kernarg_size 136
  .amdhsa_user_sgpr_count 2
  .amdhsa_user_sgpr_kernarg_segment_ptr 1
  .amdhsa_system_sgpr_workgroup_id_x 1
.end_amdhsa_kernel
"""
    return hdr + body + tail


if __name__ == "__main__":
    import argparse
    ap = argparse.ArgumentParser()
    ap.add_argument("-o", default="k.s")
    ap.add_argument("--stop", type=int, default=99)
    ap.add_argument("--stamps", action="store_true")
    ap.add_argument("--opt", action="append", default=[])
    a = ap.parse_args()
    opts = dict(stop=a.stop, stamps=a.stamps)
    for o in a.opt:
        kk, _, vv = o.partition("=")
        opts[kk] = int(vv) if vv else 1
    txt = build(opts)
    open(a.o, "w").write(txt)
    print("wrote", a.o, len(txt), "bytes", txt.count("\n"), "lines")
```

```python
import sys, struct
sys.path.insert(0, "dev")
from ag import Prog

NAME = "recurrent_scan__ssm_conv_s5__mixer_s_mlp__prompt"
WS_HP = 0x000000
WS_X1 = 0x200000
WS_H = 0x400000
WS_U = 0x800000
WS_E = 0x1000000
WS_PS = 0x1040000
WS_RS = 0x10C0000
WS_FL = 0x1100000
WS_NONCE = 0x1200000
WS_STAMP = 0x1300000
LDS_BYTES = 163840
MISC = 155648
ST_A = MISC
ST_B = MISC + 1088
ST_C = MISC + 2176
CSB = MISC + 3264
SEG = MISC + 4352
ST3 = MISC + 6400
SLOT = 33024
RING0 = 7168
XW1 = 16640
XB = 24832
UNIT0 = 8192
UNIT = 16384
NUNIT = 9
K1 = 2.0 * 0.7978845608028654 * 1.4426950408889634
K3 = K1 * 0.044715
EPS = 1e-5
SPIN = 100000
LOG2E = 1.4426950408889634

P_X, P_LRE, P_LIM, P_BRE, P_BIM, P_CRE, P_CIM, P_LDT = 4, 6, 8, 10, 12, 14, 16, 18
P_DSK, P_W1, P_W2, P_W3, P_W4, P_OUT, P_DBG, P_WS = 20, 24, 26, 28, 30, 32, 34, 36
sX, sWS, sWA, sWB, sW2, sMI, sCRE, sCIM = 40, 44, 48, 52, 56, 60, 64, 68
(sG, sJ, sW, sT0, sNON, sRH, sC, sOFF5, sOFF1, sW1K, sI512, sK3, sONE,
 sHP, sX1a, sX1b, sH, sU, sC128, sCrow, sJ256) = range(72, 93)
sT = 93


def fhex(x):
    return "0x%08x" % struct.unpack("<I", struct.pack("<f", x))[0]


def srd(k, s, p, nbytes):
    k(f"""s_mov_b32 s{s}, s{p}
    s_mov_b32 s{s+1}, s{p+1}
    s_mov_b32 s{s+2}, {nbytes}
    s_mov_b32 s{s+3}, 0x00020000""")


class VA:
    def __init__(self, lo=2, hi=256):
        self.free = list(range(lo, hi))
    def clone(self):
        v = VA(0, 0)
        v.free = list(self.free)
        return v
    def get(self, n=1, align=1):
        if n > 1 and align == 1:
            align = 4 if n >= 4 else 2
        fs = set(self.free)
        for b in self.free:
            if b % align == 0 and all((b + i) in fs for i in range(n)):
                for i in range(n):
                    self.free.remove(b + i)
                return b
        raise RuntimeError("out of VGPRs")
    def put(self, b, n=1):
        for i in range(n):
            assert (b + i) not in self.free, b + i
            self.free.append(b + i)
        self.free.sort()


def vr(b, n):
    return f"v[{b}:{b+n-1}]" if n > 1 else f"v{b}"


class Sched:
    def __init__(self):
        self.owner = [None] * NUNIT
        self.items = []
        self.unit_of = {}
        self.flags = set()
        self.reserve = 4
        self.log = []
    def clone(self):
        s = Sched()
        s.owner = list(self.owner); s.items = list(self.items); s.unit_of = dict(self.unit_of)
        s.flags = set(self.flags); s.reserve = self.reserve
        return s
    def add(self, name, flag, emit):
        self.items.append(dict(name=name, flag=flag, emit=emit))
    def free(self, name):
        self.owner[self.unit_of[name]] = None
    def base(self, name):
        return UNIT0 + UNIT * self.unit_of[name]
    def issue(self, c, maxn=99):
        n = 0
        blocked = 0
        for it in self.items:
            if it["name"] in self.unit_of:
                continue
            fr = [u for u in range(NUNIT) if self.owner[u] is None]
            if it["flag"] is not None and it["flag"] not in self.flags:
                blocked = min(blocked + 1, self.reserve)
                continue
            if len(fr) - blocked <= 0 or n >= maxn:
                break
            u = fr[0]
            self.owner[u] = it["name"]
            self.unit_of[it["name"]] = u
            it["emit"](c, UNIT0 + UNIT * u, it["name"])
            c.k.comment(f"issued {it['name']} -> unit {u}")
            n += 1


class Ctx:
    def __init__(self, role, opts, va, sched):
        self.k = Prog(role)
        self.role = role
        self.va = va
        self.hi = {}
        self.opts = opts
        self.sched = sched

    def ds(self, base, absoff):
        h = absoff >> 16
        imm = absoff & 0xFFFF
        if h == 0:
            r = base
        else:
            if (base, h) not in self.hi:
                r = self.va.get()
                self.k(f"v_add_u32 v{r}, {h << 16}, v{base}")
                self.hi[(base, h)] = r
            r = self.hi[(base, h)]
        return f"v{r}", (f" offset:{imm}" if imm else "")

    def pre_hi(self, base, hs=(1, 2)):
        for h in hs:
            self.ds(base, h << 16)

    def free_base(self, base):
        for key in [x for x in self.hi if x[0] == base]:
            self.va.put(self.hi.pop(key))
        self.va.put(base)

    def dsr(self, mn, dst, n, base, absoff, tag=None):
        r, o = self.ds(base, absoff)
        return self.k(f"{mn} {vr(dst, n)}, {r}{o}", tag=tag)

    def dsw(self, mn, base, absoff, src, n):
        r, o = self.ds(base, absoff)
        return self.k(f"{mn} {r}, {vr(src, n)}{o}")

    def dma(self, voff, srd_, soff, lds, inst=0, sc1=False, tag=None, sadd=None, wave=True):
        k = self.k
        imm = lds - inst
        assert imm >= 0
        if wave:
            k(f"s_add_u32 m0, s{sW1K}, {imm}")
        else:
            k(f"s_mov_b32 m0, {imm}")
        if sadd is not None:
            k(f"s_add_u32 s{sT+8}, s{sadd[0]}, {sadd[1]}")
            soff = f"s{sT+8}"
        o = f" offset:{inst}" if inst else ""
        k(f"buffer_load_dwordx4 v{voff}, s[{srd_}:{srd_+3}], {soff} offen{o}{' sc1' if sc1 else ''} lds", tag=tag)

    def bf16r(self, d, s):
        self.k(f"v_cvt_pk_bf16_f32 v{d}, v{s}, v{s}\nv_and_b32 v{d}, 0xffff0000, v{d}")

    def barrier(self, free=(), issue=True):
        self.k("s_barrier")
        for f in free:
            self.sched.free(f)
        if issue:
            self.sched.issue(self)

    def stamp(self, idx):
        if not self.opts.get("stamps"):
            return
        self.k(f"""s_memtime s[{sT+5}:{sT+6}]
        s_waitcnt lgkmcnt(0)
        v_writelane_b32 v255, s{sT+5}, {idx}""")

    def stamp_flush(self):
        if not self.opts.get("stamps"):
            return
        t = self.va.get()
        self.k(f"""s_mov_b64 exec, -1
        s_lshl_b32 s{sT+5}, s2, 3
        s_add_u32 s{sT+5}, s{sT+5}, s{sW}
        s_lshl_b32 s{sT+5}, s{sT+5}, 8
        s_add_u32 s{sT+5}, s{sT+5}, {WS_STAMP}
        v_lshlrev_b32 v{t}, 2, v1
        buffer_store_dword v255, v{t}, s[{sWS}:{sWS+3}], s{sT+5} offen""")
        if self.opts.get("dbg"):
            lab = self.k.label("L_dbg")
            lab2 = self.k.label("L_dbg")
            u = self.va.get(2)
            wg = self.opts.get("dbg") - 1
            srd(self.k, sMI, P_DBG, 256)
            self.k(f"""s_cmp_lg_u32 s{sW}, 0
            s_cbranch_scc1 {lab}""")
            self.k.region_begin()
            self.k(f"""s_memrealtime s[{sT+5}:{sT+6}]
            s_waitcnt lgkmcnt(0)
            v_readlane_b32 s{sT+6}, v255, 63
            s_not_b32 s{sT+6}, s{sT+6}
            v_mov_b32 v{u}, s{sT+6}
            v_mov_b32 v{u+1}, s{sT+5}
            v_mov_b32 v{t}, 0
            s_mov_b64 exec, 1
            buffer_atomic_umax v{u}, v{t}, s[{sMI}:{sMI+3}], 0 offen
            buffer_atomic_umax v{u+1}, v{t}, s[{sMI}:{sMI+3}], 0 offen offset:4
            s_cmp_lg_u32 s2, {wg}
            s_cbranch_scc1 {lab2}
            s_mov_b64 exec, 0x3fff
            v_lshlrev_b32 v{t}, 2, v1
            buffer_store_dword v255, v{t}, s[{sMI}:{sMI+3}], 0 offen offset:8
            {lab2}:
            s_mov_b64 exec, -1""")
            self.k.region_end()
            self.k(f"{lab}:")
            self.va.put(u, 2)
        self.va.put(t)


class G:
    pass


def prologue(c, g):
    k, va = c.k, c.va
    k(f"""
    s_cmp_ge_u32 s2, 256
    s_cbranch_scc1 L_exit
    s_load_dwordx16 s[4:19], s[0:1], 0
    s_load_dwordx16 s[20:35], s[0:1], 64
    s_load_dwordx2 s[36:37], s[0:1], 128
    {"s_memrealtime s[98:99]" if c.opts.get("dbg") else ""}
    v_lshrrev_b32 v2, 6, v0
    v_and_b32 v1, 63, v0
    v_readfirstlane_b32 s{sW}, v2
    s_and_b32 s{sG}, s2, 7
    s_lshl_b32 s{sG}, s{sG}, 1
    s_lshr_b32 s{sT}, s2, 7
    s_add_u32 s{sG}, s{sG}, s{sT}
    s_lshr_b32 s{sJ}, s2, 3
    s_and_b32 s{sJ}, s{sJ}, 15
    s_lshl_b32 s{sT0}, s{sG}, 7
    s_and_b32 s{sRH}, s{sJ}, 1
    s_lshr_b32 s{sC}, s{sJ}, 1
    s_lshr_b32 s{sT}, s{sC}, 1
    s_and_b32 s{sT+1}, s{sT}, 1
    s_lshl_b32 s{sT+1}, s{sT+1}, 1
    s_sub_u32 s{sOFF5}, 2, s{sT+1}
    s_cmp_lt_u32 s{sT}, 2
    s_cselect_b32 s{sOFF1}, 1, s{sT+1}
    s_lshl_b32 s{sW1K}, s{sW}, 10
    s_mov_b32 s{sI512}, {fhex(1/512)}
    s_mov_b32 s{sK3}, {fhex(-K3)}
    s_mov_b32 s{sONE}, 0x3f803f80
    s_lshl_b32 s{sC128}, s{sC}, 7
    s_lshl_b32 s{sCrow}, s{sC}, 16
    s_lshl_b32 s{sJ256}, s{sJ}, 8
    s_lshl_b32 s{sT}, s{sRH}, 6
    s_add_u32 s{sT}, s{sT}, s{sT0}
    s_lshl_b32 s{sHP}, s{sT}, 10
    s_lshl_b32 s{sH}, s{sT}, 11
    s_add_u32 s{sH}, s{sH}, {WS_H}
    s_mul_i32 s{sU}, s{sT}, 3584
    s_add_u32 s{sU}, s{sU}, {WS_U}
    s_lshl_b32 s{sX1a}, s{sT0}, 10
    s_add_u32 s{sX1a}, s{sX1a}, {WS_X1}
    s_add_u32 s{sX1b}, s{sX1a}, 65536
    """)
    assert WS_HP == 0
    g.vR1k, g.vK1k = va.get(), va.get()
    g.vX0, g.vX1, g.vB = va.get(), va.get(), va.get()
    g.vnon = va.get()
    g.srow = va.get(4)
    r8, pos, t, u, f = [va.get() for _ in range(5)]
    k(f"""v_lshrrev_b32 v{r8}, 3, v1
    v_and_b32 v{pos}, 7, v1
    s_and_b32 s{sT}, s{sW}, 1
    s_lshl_b32 s{sT+1}, s{sT}, 2
    v_lshrrev_b32 v{u}, 1, v{r8}
    v_or_b32 v{f}, s{sT+1}, v{u}
    v_xor_b32 v{f}, v{f}, v{pos}
    v_lshlrev_b32 v{f}, 4, v{f}
    s_lshl_b32 s{sT+2}, s{sW}, 3
    v_add_u32 v{t}, s{sT+2}, v{r8}              ; 8w+r8
    v_lshl_add_u32 v{g.vR1k}, v{t}, 10, v{f}
    s_sub_u32 s{sT+3}, s{sT0}, s{sOFF5}
    s_lshl_b32 s{sT+3}, s{sT+3}, 10
    v_add_u32 v{g.vX0}, s{sT+3}, v{g.vR1k}
    v_add_u32 v{g.vX1}, 0x10000, v{g.vX0}
    v_and_b32 v{u}, 1, v{u}
    s_lshl_b32 s{sT+1}, s{sT}, 1
    v_or_b32 v{u}, s{sT+1}, v{u}
    v_lshlrev_b32 v{u}, 1, v{u}
    v_xor_b32 v{u}, v{u}, v{pos}
    v_lshlrev_b32 v{u}, 4, v{u}
    v_lshl_add_u32 v{g.vK1k}, v{t}, 10, v{u}
    v_and_b32 v{g.vB}, 0x7fff, v{g.vR1k}
    s_lshl_b32 s{sT}, s{sJ}, 15
    v_add_u32 v{g.vB}, s{sT}, v{g.vB}
    s_lshl_b32 s{sT}, s{sJ}, 3
    s_add_u32 s{sT}, s{sT}, s{sT0}
    s_add_u32 s{sT}, s{sT}, s{sW}
    s_lshl_b32 s{sT}, s{sT}, 10
    v_lshlrev_b32 v{t}, 4, v1
    v_mov_b32 v{g.vnon}, 0
    s_mov_b32 s{sT+1}, {WS_NONCE}
    s_waitcnt lgkmcnt(0)
    """)
    if c.opts.get("dbg"):
        k("v_writelane_b32 v255, s98, 63")
    srd(k, sX, P_X, 2048 * 1024)
    srd(k, sWS, P_WS, 0x10000000)
    k(f"""buffer_load_dword v{g.vnon}, v{g.vnon}, s[{sWS}:{sWS+3}], s{sT+1} offen sc1
    buffer_load_dwordx4 {vr(g.srow,4)}, v{t}, s[{sX}:{sX+3}], s{sT} offen""")
    srd(k, sWA, P_W1, 512 * 1024)
    srd(k, sW2, P_W2, 512 * 1024)
    for r in (r8, pos, t, u, f):
        va.put(r)
    k(f"""
    s_cmp_ge_u32 s{sW}, 4
    s_cbranch_scc1 L_roleB
    """)


def warm_mall(c, g):
    if not c.opts.get("warm"):
        return
    k, va = c.k, c.va
    t = va.get()
    g.vwarm = va.get()
    lab = k.label("L_wm")
    k(f"""s_lshl_b32 s{sT}, s{sW}, 8
    s_add_u32 s{sT}, s{sT}, s2
    s_cmp_ge_u32 s{sT}, 640
    s_cbranch_scc1 {lab}""")
    k.region_begin()
    k(f"""s_mov_b32 s{sMI}, s{P_W2}
    s_mov_b32 s{sMI+1}, s{P_W2+1}
    s_mov_b32 s{sT+1}, s{sT}
    s_mov_b32 s{sMI+2}, {512*1024}
    s_cmp_ge_u32 s{sT}, 64
    s_cselect_b32 s{sMI}, s{P_W3}, s{sMI}
    s_cselect_b32 s{sMI+1}, s{P_W3+1}, s{sMI+1}
    s_cselect_b32 s{sMI+2}, {512*3584}, s{sMI+2}
    s_cselect_b32 s{sT+2}, 64, 0
    s_cmp_ge_u32 s{sT}, 288
    s_cselect_b32 s{sMI}, s{P_CRE}, s{sMI}
    s_cselect_b32 s{sMI+1}, s{P_CRE+1}, s{sMI+1}
    s_cselect_b32 s{sMI+2}, {512*1024}, s{sMI+2}
    s_cselect_b32 s{sT+2}, 288, s{sT+2}
    s_cmp_ge_u32 s{sT}, 352
    s_cselect_b32 s{sMI}, s{P_CIM}, s{sMI}
    s_cselect_b32 s{sMI+1}, s{P_CIM+1}, s{sMI+1}
    s_cselect_b32 s{sT+2}, 352, s{sT+2}
    s_cmp_ge_u32 s{sT}, 416
    s_cselect_b32 s{sMI}, s{P_W4}, s{sMI}
    s_cselect_b32 s{sMI+1}, s{P_W4+1}, s{sMI+1}
    s_cselect_b32 s{sMI+2}, {512*3584}, s{sMI+2}
    s_cselect_b32 s{sT+2}, 416, s{sT+2}
    s_mov_b32 s{sMI+3}, 0x00020000
    s_sub_u32 s{sT}, s{sT}, s{sT+2}
    s_lshl_b32 s{sT}, s{sT}, 13
    v_lshlrev_b32 v{t}, 7, v1
    buffer_load_dword v{g.vwarm}, v{t}, s[{sMI}:{sMI+3}], s{sT} offen""")
    k.region_end()
    k(f"{lab}:")
    va.put(t)


def wave_sum(c, S, x):
    k = c.k
    for m in ("quad_perm:[1,0,3,2]", "quad_perm:[2,3,0,1]", "row_half_mirror", "row_mirror"):
        for s in S:
            k(f"v_add_f32_dpp v{s}, v{s}, v{s} {m} row_mask:0xf bank_mask:0xf")
    for sw in ("v_permlane16_swap_b32", "v_permlane32_swap_b32"):
        for s, xx in zip(S, x):
            k(f"v_mov_b32 v{xx}, v{s}")
        for s, xx in zip(S, x):
            k(f"{sw} v{s}, v{xx}")
        for s, xx in zip(S, x):
            k(f"v_add_f32 v{s}, v{s}, v{xx}")


def stat_publish(c, g):
    k, va = c.k, c.va
    S1, S2 = va.get(), va.get()
    t = va.get(8)
    mean, var, m1, d1, a1, m2, d2, x = range(t, t + 8)
    o = va.get(4)
    k(f"v_mov_b32 v{S1}, 0\nv_mov_b32 v{S2}, 0")
    for i in range(4):
        k(f"v_dot2c_f32_bf16 v{S1}, s{sONE}, v{g.srow+i}\nv_dot2c_f32_bf16 v{S2}, v{g.srow+i}, v{g.srow+i}")
    wave_sum(c, [S1, S2], [mean, var])
    k(f"""v_mul_f32 v{mean}, {fhex(1/512)}, v{S1}
    v_mul_f32 v{x}, v{mean}, v{mean}
    v_fma_f32 v{var}, v{S2}, s{sI512}, -v{x}
    v_max_f32 v{var}, 0, v{var}""")
    c.bf16r(m1, mean)
    c.bf16r(x, var)
    k(f"v_add_f32 v{x}, {fhex(EPS)}, v{x}")
    c.bf16r(x, x)
    k(f"v_sqrt_f32 v{x}, v{x}")
    c.bf16r(d1, x)
    k(f"""v_rcp_f32 v{a1}, v{d1}
    v_sub_f32 v{x}, v{mean}, v{m1}
    v_mul_f32 v{m2}, v{x}, v{a1}
    v_mul_f32 v{x}, v{var}, v{a1}
    v_mul_f32 v{x}, v{x}, v{a1}""")
    c.bf16r(x, x)
    k(f"v_add_f32 v{x}, {fhex(EPS)}, v{x}")
    c.bf16r(x, x)
    k(f"""v_sqrt_f32 v{d2}, v{x}
    v_cvt_pk_bf16_f32 v{o}, v{m1}, v{d1}
    v_cvt_pk_bf16_f32 v{o+2}, v{m2}, v{d2}
    v_readfirstlane_b32 s{sNON}, v{g.vnon}
    s_add_u32 s{sNON}, s{sNON}, 1
    v_mov_b32 v{o+1}, s{sNON}
    v_mov_b32 v{o+3}, s{sNON}
    s_lshl_b32 s{sT}, s{sJ}, 3
    s_add_u32 s{sT}, s{sT}, s{sT0}
    s_add_u32 s{sT}, s{sT}, s{sW}
    s_lshl_b32 s{sT}, s{sT}, 4
    s_add_u32 s{sT}, s{sT}, {WS_RS}
    v_mov_b32 v{x}, 0
    s_mov_b64 exec, 1
    buffer_store_dwordx4 {vr(o,4)}, v{x}, s[{sWS}:{sWS+3}], s{sT} offen sc1
    s_mov_b64 exec, -1""")
    va.put(S1); va.put(S2); va.put(t, 8); va.put(o, 4)
    va.put(g.srow, 4); va.put(g.vnon)


def gelu_many(c, xs):
    k, va = c.k, c.va
    ts = [va.get() for _ in xs]
    kk = va.get()
    k(f"v_mov_b32 v{kk}, {fhex(-K1)}")
    for x, t in zip(xs, ts):
        k(f"v_mul_f32 v{t}, v{x}, v{x}")
    for x, t in zip(xs, ts):
        k(f"v_fma_f32 v{t}, v{t}, s{sK3}, v{kk}")
    for x, t in zip(xs, ts):
        k(f"v_mul_f32 v{t}, v{t}, v{x}")
    for x, t in zip(xs, ts):
        k(f"v_exp_f32 v{t}, v{t}")
    for x, t in zip(xs, ts):
        k(f"v_add_f32 v{t}, 1.0, v{t}")
    for x, t in zip(xs, ts):
        k(f"v_rcp_f32 v{t}, v{t}")
    for x, t in zip(xs, ts):
        k(f"v_mul_f32 v{x}, v{x}, v{t}")
    for t in ts:
        va.put(t)
    va.put(kk)


def p1_issue(c, g, s):
    k = c.k
    sl = RING0 + (s % 4) * SLOT
    c.dma(g.vX0, sX, 0, sl, inst=s * 128)
    c.dma(g.vX1, sX, 0, sl + 8192, inst=s * 128)
    if c.role == "B":
        k("s_mov_b64 exec, 0xffff")
        c.dma(c.vXh, sX, 0, sl + 16384, inst=s * 128, wave=False)
        k("s_mov_b64 exec, -1")
    c.dma(g.vK1k, sWA, None, sl + XW1, sadd=(sC128, s * 65536))
    c.dma(g.vB, sWB, 0, sl + XB, inst=s * 128, tag=f"p1s{s}")


def p1_step_sync(c, g, s):
    k = c.k
    if c.opts.get("sp") == 1:
        c.stamp(16 + 3 * s)
    k.waitvm(f"p1s{s}")
    if c.opts.get("sp") == 1:
        c.stamp(17 + 3 * s)
    k("s_barrier")
    if c.opts.get("sp") == 1:
        c.stamp(18 + 3 * s)
    if 1 <= s and s + 3 < 8:
        p1_issue(c, g, s + 3)
    sc = c.sched
    rel = {4: [8], 5: [0], 6: [1, 2], 7: [3, 4]}.get(s, [])
    for u in rel:
        sc.owner[u] = None
    if s >= 4:
        sc.issue(c)


def flag_store(c, phase):
    k, va = c.k, c.va
    t = va.get(2)
    lab = k.label("L_fs")
    k(f"""s_cmp_lg_u32 s{sW}, 0
    s_cbranch_scc1 {lab}""")
    k.region_begin("W0")
    k(f"""s_lshl_b32 s{sT}, s{sG}, 7
    s_lshl_b32 s{sT+1}, s{sRH}, 5
    s_add_u32 s{sT}, s{sT}, s{sT+1}
    s_lshl_b32 s{sT+1}, s{sC}, 2
    s_add_u32 s{sT}, s{sT}, s{sT+1}
    s_add_u32 s{sT}, s{sT}, {WS_FL + phase * 2048}
    v_mov_b32 v{t}, s{sT}
    v_mov_b32 v{t+1}, s{sNON}
    s_mov_b64 exec, 1
    buffer_store_dword v{t+1}, v{t}, s[{sWS}:{sWS+3}], 0 offen sc1
    s_mov_b64 exec, -1""")
    k.region_end()
    k(f"{lab}:")
    va.put(t, 2)


def flag_wait(c, phase, mask_kind, free=()):
    k, va = c.k, c.va
    t = va.get(2)
    lab = k.label("L_fw")
    loop = k.label("L_fl")
    done = k.label("L_fd")
    k(f"""s_cmp_lg_u32 s{sW}, 0
    s_cbranch_scc1 {lab}""")
    k.region_begin("W0")
    k(f"""s_lshl_b32 s{sT}, s{sG}, 7
    s_add_u32 s{sT}, s{sT}, {WS_FL + phase * 2048}
    v_lshlrev_b32 v{t}, 2, v1
    v_add_u32 v{t}, s{sT}, v{t}
    s_mov_b32 s{sT+1}, {SPIN}""")
    if mask_kind == "half":
        k(f"""s_lshl_b32 s{sT+2}, s{sRH}, 3
        s_lshl_b64 exec, 0xff, s{sT+2}""")
    elif mask_kind == "all":
        k("s_mov_b64 exec, 0xffff")
    else:
        k("s_mov_b64 exec, 0x7f7f")
    k(f"""{loop}:
    buffer_load_dword v{t+1}, v{t}, s[{sWS}:{sWS+3}], 0 offen sc1
    s_waitcnt vmcnt(0)
    v_cmp_ne_u32 vcc, s{sNON}, v{t+1}
    s_cbranch_vccz {done}
    s_sub_u32 s{sT+1}, s{sT+1}, 1
    s_cmp_lg_u32 s{sT+1}, 0
    s_cbranch_scc1 {loop}
    {done}:
    s_mov_b64 exec, -1""")
    k.region_end()
    k(f"{lab}:")
    va.put(t, 2)
    c.sched.flags.add(phase)
    k("s_waitcnt lgkmcnt(0)")
    c.barrier(free=free)


def cmad(k, dr, di, ar, ai, br, bi, cr, ci):
    assert dr not in (br, bi) and di not in (br, bi)
    k(f"""v_fma_f32 v{dr}, v{ar}, v{br}, v{cr}
    v_fma_f32 v{di}, v{ar}, v{bi}, v{ci}
    v_fma_f32 v{dr}, -v{ai}, v{bi}, v{dr}
    v_fma_f32 v{di}, v{ai}, v{br}, v{di}""")


def csq(k, r, i, t):
    k(f"""v_mul_f32 v{t}, v{i}, v{i}
    v_fma_f32 v{t}, v{r}, v{r}, -v{t}
    v_mul_f32 v{i}, v{r}, v{i}
    v_add_f32 v{i}, v{i}, v{i}
    v_mov_b32 v{r}, v{t}""")


def p1_roleA(c, g):
    k, va = c.k, c.va
    srd(k, sWB, P_BRE, 512 * 1024)
    i32, hf, t, u = va.get(), va.get(), va.get(), va.get()
    lre, lim, ldt = va.get(), va.get(), va.get()
    k(f"""v_and_b32 v{i32}, 31, v1
    v_lshrrev_b32 v{hf}, 5, v1
    s_lshl_b32 s{sT}, s{sJ}, 6
    v_lshlrev_b32 v{t}, 1, v{i32}""")
    for p, d in ((P_LRE, lre), (P_LIM, lim), (P_LDT, ldt)):
        srd(k, sMI, p, 1024)
        k(f"buffer_load_ushort v{d}, v{t}, s[{sMI}:{sMI+3}], s{sT} offen")
    for s in range(4):
        p1_issue(c, g, s)
        if s == c.opts.get("warm", 0) - 1:
            warm_mall(c, g)
    c.stamp(0)
    aA = [va.get() for _ in range(4)]
    aB = [va.get() for _ in range(4)]
    k(f"""v_lshrrev_b32 v{t}, 2, v{i32}
    v_and_b32 v{t}, 1, v{t}
    v_lshlrev_b32 v{t}, 4, v{t}              ; 16*((i>>2)&1)
    v_lshrrev_b32 v{u}, 3, v{i32}
    v_lshl_add_u32 v{t}, v{u}, 2, v{t}       ; +4*(i>>3)
    v_and_b32 v{u}, 3, v{i32}
    v_add_u32 v{t}, v{t}, v{u}               ; tau
    s_lshl_b32 s{sT}, s{sW}, 5
    s_add_u32 s{sT}, s{sT}, s{sOFF5}
    v_add_u32 v{t}, s{sT}, v{t}              ; rho
    v_bfe_u32 v{u}, v{t}, 1, 3
    v_xor_b32 v{u}, v{u}, v{hf}
    v_lshlrev_b32 v{u}, 4, v{u}
    v_lshl_add_u32 v{aA[0]}, v{t}, 7, v{u}
    v_bfe_u32 v{u}, v{i32}, 1, 3
    v_xor_b32 v{u}, v{u}, v{hf}
    v_lshlrev_b32 v{u}, 4, v{u}
    v_lshl_add_u32 v{aB[0]}, v{i32}, 7, v{u}
    s_lshl_b32 s{sT}, s{sW}, 5
    v_xor_b32 v{aA[0]}, s{sT}, v{aA[0]}
    v_xor_b32 v{aB[0]}, s{sT}, v{aB[0]}""")
    for i in range(1, 4):
        k(f"v_xor_b32 v{aA[i]}, {i*32}, v{aA[0]}\nv_xor_b32 v{aB[i]}, {i*32}, v{aB[0]}")
    for a in aA + aB:
        c.pre_hi(a, (1,))
    stat_publish(c, g)
    accr, acci = va.get(16), va.get(16)
    csr, csi = va.get(), va.get()
    k(f"v_mov_b32 v{csr}, 0\nv_mov_b32 v{csi}, 0")
    fa = [va.get(4) for _ in range(4)]
    fr = [va.get(4) for _ in range(4)]
    fi = [va.get(4) for _ in range(4)]
    lr, li, kr, ki, l16r, l16i, l128r, l128i = [va.get() for _ in range(8)]
    dt, e, x2 = va.get(), va.get(), va.get()
    k(f"""v_lshlrev_b32 v{lre}, 16, v{lre}
    v_lshlrev_b32 v{lim}, 16, v{lim}
    v_lshlrev_b32 v{ldt}, 16, v{ldt}
    v_mul_f32 v{dt}, {fhex(LOG2E)}, v{ldt}
    v_exp_f32 v{dt}, v{dt}""")
    c.bf16r(dt, dt)
    k(f"""v_mul_f32 v{e}, v{dt}, v{lre}
    v_mul_f32 v{e}, {fhex(LOG2E)}, v{e}
    v_exp_f32 v{e}, v{e}
    v_mul_f32 v{x2}, v{dt}, v{lim}
    v_mul_f32 v{x2}, {fhex(0.15915494309189535)}, v{x2}
    v_cos_f32 v{lr}, v{x2}
    v_sin_f32 v{li}, v{x2}
    v_mul_f32 v{lr}, v{lr}, v{e}
    v_mul_f32 v{li}, v{li}, v{e}
    v_mul_f32 v{e}, v{lre}, v{lre}
    v_fma_f32 v{e}, v{lim}, v{lim}, v{e}
    v_rcp_f32 v{e}, v{e}
    v_add_f32 v{x2}, -1.0, v{lr}             ; (lam-1).re
    v_mul_f32 v{kr}, v{x2}, v{lre}
    v_fma_f32 v{kr}, v{li}, v{lim}, v{kr}    ; re((lam-1)*conj(L))
    v_mul_f32 v{ki}, v{li}, v{lre}
    v_fma_f32 v{ki}, -v{x2}, v{lim}, v{ki}   ; im
    v_add_f32 v{e}, v{e}, v{e}
    v_mul_f32 v{kr}, v{kr}, v{e}             ; 2*coef
    v_mul_f32 v{ki}, v{ki}, v{e}
    v_mov_b32 v{l16r}, v{lr}
    v_mov_b32 v{l16i}, v{li}""")
    for _ in range(4):
        csq(k, l16r, l16i, x2)
    k(f"v_mov_b32 v{l128r}, v{l16r}\nv_mov_b32 v{l128i}, v{l16i}")
    for _ in range(3):
        csq(k, l128r, l128i, x2)
    for r in (lre, lim, ldt, dt, e, x2):
        va.put(r)
    for s in range(8):
        p1_step_sync(c, g, s)
        sl = RING0 + (s % 4) * SLOT
        for i in range(4):
            c.dsr("ds_read_b128", fa[i], 4, aA[i], sl)
            c.dsr("ds_read_b128", fr[i], 4, aB[i], sl + XB)
            c.dsr("ds_read_b128", fi[i], 4, aB[i], sl + XB + 4096)
        for i in range(4):
            z = (s == 0 and i == 0)
            k(f"v_mfma_f32_32x32x16_bf16 {vr(accr,16)}, {vr(fa[i],4)}, {vr(fr[i],4)}, {'0' if z else vr(accr,16)}")
            k(f"v_mfma_f32_32x32x16_bf16 {vr(acci,16)}, {vr(fa[i],4)}, {vr(fi[i],4)}, {'0' if z else vr(acci,16)}")
            if i == 0:
                for r in range(4):
                    k(f"v_dot2c_f32_bf16 v{csr}, s{sONE}, v{fr[0]+r}\nv_dot2c_f32_bf16 v{csi}, s{sONE}, v{fi[0]+r}")
    for a in aA + aB:
        c.free_base(a)
    for f in fa + fr + fi:
        va.put(f, 4)
    k(f"""v_permlane32_swap_b32 v{csr}, v{csi}
    v_add_f32 v{csr}, v{csr}, v{csi}
    v_lshlrev_b32 v{t}, 5, v{i32}
    v_lshl_add_u32 v{u}, v{hf}, 2, v{t}
    s_lshl_b32 s{sT}, s{sW}, 3
    v_add_u32 v{u}, s{sT}, v{u}""")
    c.dsw("ds_write_b32", u, CSB, csr, 1)
    if c.opts.get("warm"):
        k(f"v_mov_b32 v{g.vwarm}, 0")
        va.put(g.vwarm)
    k("s_waitcnt lgkmcnt(0)\ns_barrier")
    for uu in (5, 6, 7):
        c.sched.owner[uu] = None
    c.sched.issue(c)
    c.stamp(1)
    cs = va.get(8)
    c.dsr("ds_read_b128", cs, 4, t, CSB)
    c.dsr("ds_read_b128", cs + 4, 4, t, CSB + 16)
    c.free_base(t); c.free_base(u)
    st = va.get(32)
    t = va.get()
    k(f"""s_lshl_b32 s{sT}, s{sW}, 5
    s_add_u32 s{sT}, s{sT}, s{sOFF5}
    v_lshl_add_u32 v{t}, v{hf}, 4, s{sT}
    v_lshlrev_b32 v{t}, 3, v{t}""")
    for i in range(8):
        c.dsr("ds_read_b128", st + 4 * i, 4, t, ST_A + 16 * i)
    c.free_base(t)
    k(f"""v_add_f32 v{csr}, v{cs}, v{cs+2}
    v_add_f32 v{csi}, v{cs+1}, v{cs+3}
    v_add_f32 v{cs+4}, v{cs+4}, v{cs+6}
    v_add_f32 v{cs+5}, v{cs+5}, v{cs+7}
    v_add_f32 v{csr}, v{csr}, v{cs+4}
    v_add_f32 v{csi}, v{csi}, v{cs+5}""")
    va.put(cs, 8)
    t1, t2 = va.get(), va.get()
    for r in range(16):
        a, b = st + 2 * r, st + 2 * r + 1
        k(f"""v_mul_f32 v{t1}, v{b}, v{csr}
        v_mul_f32 v{t2}, v{b}, v{csi}
        v_fma_f32 v{accr+r}, v{a}, v{accr+r}, -v{t1}
        v_fma_f32 v{acci+r}, v{a}, v{acci+r}, -v{t2}""")
    va.put(st, 32); va.put(csr); va.put(csi); va.put(t1); va.put(t2)
    h = [va.get(2), va.get(2)]
    cur = (accr, acci)
    for r in range(1, 16):
        d = h[r & 1]
        cmad(k, d, d + 1, lr, li, cur[0], cur[1], accr + r, acci + r)
        cur = (d, d + 1)
    sega = va.get()
    k(f"""s_lshl_b32 s{sT}, s{sW}, 9
    v_lshlrev_b32 v{sega}, 3, v1
    v_add_u32 v{sega}, s{sT}, v{sega}""")
    c.dsw("ds_write_b64", sega, SEG, cur[0], 2)
    c.free_base(sega)
    k("s_waitcnt lgkmcnt(0)\ns_barrier")
    flag_store(c, 0)
    c.stamp(2)
    eseg = va.get(16)
    sega = va.get()
    k(f"v_lshlrev_b32 v{sega}, 3, v{i32}")
    for s in range(8):
        c.dsr("ds_read_b64", eseg + 2 * s, 2, sega, SEG + 256 * s)
    c.free_base(sega)
    cur = (eseg, eseg + 1)
    for s in range(1, 8):
        d = h[s & 1]
        cmad(k, d, d + 1, l16r, l16i, cur[0], cur[1], eseg + 2 * s, eseg + 2 * s + 1)
        cur = (d, d + 1)
    g4 = va.get(4)
    t = va.get()
    k(f"""v_mov_b32 v{g4}, v{cur[0]}
    v_mov_b32 v{g4+1}, s{sNON}
    v_mov_b32 v{g4+2}, v{cur[1]}
    v_mov_b32 v{g4+3}, s{sNON}
    s_lshl_b32 s{sT}, s{sG}, 13
    s_lshl_b32 s{sT+1}, s{sJ}, 9
    s_add_u32 s{sT}, s{sT}, s{sT+1}
    s_add_u32 s{sT}, s{sT}, {WS_E}
    v_lshlrev_b32 v{t}, 4, v{i32}
    s_mov_b64 exec, 0xffffffff
    buffer_store_dwordx4 {vr(g4,4)}, v{t}, s[{sWS}:{sWS+3}], s{sT} offen sc1
    s_mov_b64 exec, -1""")
    va.put(g4, 4); va.put(t); va.put(h[0], 2); va.put(h[1], 2)
    g.scan = dict(accr=accr, acci=acci, lr=lr, li=li, kr=kr, ki=ki, l16r=l16r, l16i=l16i, l128r=l128r, l128i=l128i,
                  eseg=eseg, i32=i32, hf=hf)


def kn_addr(c, aW0, aW1, tmp):
    t, u, q = tmp
    c.k(f"""v_lshrrev_b32 v{q}, 4, v1                   ; gq
    v_bfe_u32 v{t}, v1, 2, 2                    ; r'
    v_lshl_add_u32 v{u}, v{q}, 3, v{t}          ; 8gq+r'
    v_lshlrev_b32 v{aW0}, 7, v{u}
    v_lshrrev_b32 v{t}, 1, v{t}
    v_and_b32 v{u}, 1, v{q}
    v_lshl_add_u32 v{t}, v{u}, 1, v{t}          ; s
    v_lshlrev_b32 v{t}, 1, v{t}                 ; s<<1
    v_bfe_u32 v{u}, v1, 1, 1                    ; c4>>1
    s_and_b32 s{sT}, s{sW}, 1
    s_lshl_b32 s{sT}, s{sT}, 2
    v_add_u32 v{u}, s{sT}, v{u}
    v_xor_b32 v{u}, v{u}, v{t}
    v_lshl_add_u32 v{aW0}, v{u}, 4, v{aW0}
    v_and_b32 v{u}, 1, v1
    v_lshl_add_u32 v{aW0}, v{u}, 3, v{aW0}
    v_xor_b32 v{aW1}, 32, v{aW0}""")


def p1_roleB(c, g):
    k, va = c.k, c.va
    srd(k, sWB, P_BIM, 512 * 1024)
    t, u, w_, q = va.get(), va.get(), va.get(), va.get()
    c.vXh = va.get()
    k(f"""s_add_u32 s{sT}, s{sT0}, 128
    s_sub_u32 s{sT}, s{sT}, s{sOFF5}
    s_lshl_b32 s{sT}, s{sT}, 10
    v_lshrrev_b32 v{t}, 3, v1
    v_lshlrev_b32 v{t}, 10, v{t}
    v_and_b32 v{u}, 7, v1
    v_lshl_add_u32 v{t}, v{u}, 4, v{t}
    v_add_u32 v{c.vXh}, s{sT}, v{t}""")
    for s in range(4):
        p1_issue(c, g, s)
    c.stamp(0)
    aW = [va.get(), va.get()]
    aXr = [va.get(), va.get()]
    kn_addr(c, aW[0], aW[1], (t, u, q))
    k(f"""s_and_b32 s{sT+3}, s{sW}, 1            ; nh
    s_bfe_u32 s{sT+4}, s{sW}, 0x10001           ; th
    s_lshl_b32 s{sT}, s{sRH}, 6
    s_lshl_b32 s{sT+1}, s{sT+4}, 5
    s_add_u32 s{sT}, s{sT}, s{sT+1}
    s_add_u32 s{sT+2}, s{sT}, s{sOFF1}
    v_and_b32 v{w_}, 15, v1
    v_add_u32 v{t}, s{sT+2}, v{w_}              ; rho
    v_bfe_u32 v{u}, v{t}, 1, 3
    v_xor_b32 v{u}, v{u}, v{q}
    v_lshlrev_b32 v{u}, 4, v{u}
    v_lshl_add_u32 v{aXr[0]}, v{t}, 7, v{u}
    v_xor_b32 v{aXr[1]}, 64, v{aXr[0]}""")
    vst = va.get()
    vo = va.get()
    k(f"""v_lshlrev_b32 v{vst}, 3, v{t}
    s_add_u32 s{sT}, s{sT}, s{sT0}
    v_add_u32 v{t}, s{sT}, v{w_}
    v_lshlrev_b32 v{vo}, 10, v{t}
    v_and_b32 v{u}, 1, v{q}
    v_lshl_add_u32 v{vo}, v{u}, 5, v{vo}
    v_lshrrev_b32 v{u}, 1, v{q}
    v_lshl_add_u32 v{vo}, v{u}, 4, v{vo}
    s_lshl_b32 s{sT+1}, s{sT+3}, 6
    s_add_u32 s{sT}, s{sC128}, s{sT+1}
    v_add_u32 v{vo}, s{sT}, v{vo}""")
    vrho, vrs, vok = va.get(), va.get(), va.get()
    k(f"""s_and_b32 s{sT}, s{sW}, 3
    s_lshl_b32 s{sT+1}, s{sT}, 6
    v_add_u32 v{vrho}, s{sT+1}, v1
    v_and_b32 v{u}, 1, v1
    v_add_u32 v{u}, 128, v{u}
    s_cmp_lt_u32 s{sT}, 2
    s_cselect_b64 vcc, -1, 0
    v_cndmask_b32 v{vrho}, v{u}, v{vrho}, vcc
    s_sub_u32 s{sT}, s{sT0}, s{sOFF5}
    v_add_u32 v{u}, s{sT}, v{vrho}
    v_max_i32 v{t}, 0, v{u}
    v_min_i32 v{t}, 2047, v{t}
    v_cmp_eq_u32 vcc, v{t}, v{u}
    v_cndmask_b32 v{vok}, 0, 1.0, vcc
    v_lshlrev_b32 v{vrs}, 4, v{t}
    v_lshlrev_b32 v{vrho}, 3, v{vrho}""")
    for r in (t, u, w_, q):
        va.put(r)
    for a in aW + aXr:
        c.pre_hi(a, (1,))
    for a in (vrho, vst):
        c.pre_hi(a, (2,))
    stat_publish(c, g)
    acc = [[va.get(4) for tt in range(2)] for a in range(2)]
    cs = [va.get(4) for a in range(2)]
    ones = va.get(4)
    for i in range(4):
        k(f"v_mov_b32 v{ones+i}, s{sONE}")
    fA = [[va.get(4) for a in range(2)] for ks in range(2)]
    fB = [[va.get(4) for tt in range(2)] for ks in range(2)]
    rs = va.get(4)
    for s in range(8):
        p1_step_sync(c, g, s)
        if s == 4:
            k(f"s_mov_b32 s{sT}, {WS_RS}")
            k(f"buffer_load_dwordx4 {vr(rs,4)}, v{vrs}, s[{sWS}:{sWS+3}], s{sT} offen sc1")
        sl = RING0 + (s % 4) * SLOT
        for ks in range(2):
            for a in range(2):
                for uu in range(2):
                    c.dsr("ds_read_b64_tr_b16", fA[ks][a] + 2 * uu, 2, aW[a], sl + XW1 + (32 * ks + 4 * uu) * 128)
            for tt in range(2):
                c.dsr("ds_read_b128", fB[ks][tt], 4, aXr[ks], sl + tt * 2048)
        if s == 7:
            stat_consume(c, rs, vrs, vrho, vok)
        for ks in range(2):
            z = (s == 0 and ks == 0)
            for a in range(2):
                for tt in range(2):
                    k(f"v_mfma_f32_16x16x32_bf16 {vr(acc[a][tt],4)}, {vr(fA[ks][a],4)}, {vr(fB[ks][tt],4)}, {'0' if z else vr(acc[a][tt],4)}")
                k(f"v_mfma_f32_16x16x32_bf16 {vr(cs[a],4)}, {vr(fA[ks][a],4)}, {vr(ones,4)}, {'0' if z else vr(cs[a],4)}")
    for a in aW + aXr:
        c.free_base(a)
    for f in fA[0] + fA[1] + fB[0] + fB[1] + [ones, rs]:
        va.put(f, 4)
    va.put(c.vXh); va.put(vrs); va.put(vok); c.free_base(vrho)
    k("s_waitcnt lgkmcnt(0)\ns_barrier")
    for uu in (5, 6, 7):
        c.sched.owner[uu] = None
    c.sched.issue(c)
    c.stamp(1)
    ab = [va.get(2), va.get(2)]
    for tt in range(2):
        c.dsr("ds_read_b64", ab[tt], 2, vst, ST_B + tt * 128)
    c.free_base(vst)
    t = va.get()
    for tt in range(2):
        for a in range(2):
            for r in range(4):
                k(f"""v_mul_f32 v{t}, v{ab[tt]+1}, v{cs[a]+r}
                v_fma_f32 v{acc[a][tt]+r}, v{ab[tt]}, v{acc[a][tt]+r}, -v{t}""")
    va.put(t)
    for tt in range(2):
        gelu_many(c, [acc[a][tt] + r for a in range(2) for r in range(4)])
        P = va.get(4)
        for a in range(2):
            for i in range(2):
                k(f"v_cvt_pk_bf16_f32 v{P+2*a+i}, v{acc[a][tt]+2*i}, v{acc[a][tt]+2*i+1}")
        for i in range(2):
            k(f"v_permlane16_swap_b32 v{P+i}, v{P+2+i}")
        k(f"s_mov_b32 s{sT}, {WS_HP + tt*16*1024}")
        k(f"buffer_store_dwordx4 {vr(P,4)}, v{vo}, s[{sWS}:{sWS+3}], s{sT} offen sc1", tag=f"hp{tt}")
        va.put(P, 4)
    for a in range(2):
        va.put(cs[a], 4); va.put(ab[a], 2)
        for tt in range(2):
            va.put(acc[a][tt], 4)
    va.put(vo)
    k.waitvm("hp1")
    k("s_barrier")
    c.stamp(2)


def stat_consume(c, rs, vrs, vrho, vok):
    k, va = c.k, c.va
    loop, done = k.label("L_sl"), k.label("L_sd")
    t = va.get(8)
    m1, d1, m2, d2, a1, a2, x, y = range(t, t + 8)
    k(f"""v_mov_b32 v{x}, v{rs+1}
    s_mov_b32 s{sT+1}, {SPIN}
    s_mov_b32 s{sT}, {WS_RS}
    {loop}:
    v_xor_b32 v{x}, s{sNON}, v{rs+1}
    v_xor_b32 v{y}, s{sNON}, v{rs+3}
    v_or_b32 v{x}, v{x}, v{y}
    v_cmp_ne_u32 vcc, 0, v{x}
    s_cbranch_vccz {done}""")
    k.region_begin()
    k(f"""buffer_load_dwordx4 {vr(rs,4)}, v{vrs}, s[{sWS}:{sWS+3}], s{sT} offen sc1
    s_waitcnt vmcnt(0)
    s_sub_u32 s{sT+1}, s{sT+1}, 1
    s_cmp_lg_u32 s{sT+1}, 0
    s_cbranch_scc1 {loop}""")
    k.region_end()
    o = [va.get(2) for _ in range(3)]
    k(f"""{done}:
    v_lshlrev_b32 v{m1}, 16, v{rs}
    v_and_b32 v{d1}, 0xffff0000, v{rs}
    v_lshlrev_b32 v{m2}, 16, v{rs+2}
    v_and_b32 v{d2}, 0xffff0000, v{rs+2}
    v_rcp_f32 v{a1}, v{d1}
    v_rcp_f32 v{a2}, v{d2}
    v_mul_f32 v{m1}, v{m1}, v{vok}
    v_mul_f32 v{m2}, v{m2}, v{vok}
    v_mov_b32 v{o[0]}, v{a1}
    v_mul_f32 v{o[0]+1}, v{m1}, v{a1}
    v_mul_f32 v{o[1]}, v{a1}, v{a2}
    v_fma_f32 v{x}, v{m2}, v{d1}, v{m1}
    v_mul_f32 v{o[1]+1}, v{x}, v{o[1]}
    v_mov_b32 v{o[2]}, v{m1}
    v_mov_b32 v{o[2]+1}, v{a1}""")
    for oo, st in zip(o, (ST_A, ST_B, ST_C)):
        c.dsw("ds_write_b64", vrho, st, oo, 2)
        va.put(oo, 2)
    va.put(t, 8)


def add_w2_items(sc, g):
    for i in range(4):
        def em(c, base, name, i=i):
            for p in range(2):
                c.dma(g.vK1k, sW2, None, base + 8192 * p, sadd=(sC128, (2 * i + p) * 65536), tag=name if p else None)
        sc.add(f"w2_{i}", None, em)


def merge_vm(a, b):
    out = []
    seen = set()
    for q in (a, b):
        for e in q:
            if e["tag"] is not None and e["tag"] not in seen:
                seen.add(e["tag"])
    for q in (a, b):
        assert not any(e["dst"] for e in q), "register loads pending at join"
    order = [e["tag"] for e in a if e["tag"] is not None]
    for e in b:
        if e["tag"] is not None and e["tag"] not in order:
            order.append(e["tag"])
    return [dict(dst=set(), tag=t, region=None) for t in order]


def build(opts):
    g = G()
    sc = Sched()
    sc.owner = ["P1"] * NUNIT
    add_w2_items(sc, g)
    P = Ctx("pro", opts, VA(2, 255), sc)
    prologue(P, g)
    A = Ctx("A", opts, P.va.clone(), sc.clone())
    B = Ctx("B", opts, P.va.clone(), sc.clone())
    p1_roleA(A, g)
    p1_roleB(B, g)
    assert A.sched.unit_of == B.sched.unit_of
    stop = opts.get("stop", 99)
    B.k("s_branch L_common")
    tp = P.k.finalize()
    ta = A.k.finalize(init_vm=P.k.final_vm)
    tb = B.k.finalize(init_vm=P.k.final_vm)
    assert not A.k.final_ds and not B.k.final_ds
    vm0 = merge_vm(A.k.final_vm, B.k.final_vm)
    done0 = A.k.final_done | B.k.final_done
    body = tp + ta + "L_common:\n"
    if stop > 1:
        import mk2
        va = VA(0, 0)
        va.free = sorted(set(A.va.free) & set(B.va.free))
        for r in (g.vX0, g.vX1, g.vB):
            va.put(r)
        body += f"  s_cmp_ge_u32 s{sJ}, 14\n  s_cbranch_scc1 L_nog3\n"
        for var, lab in ((True, None), (False, "L_nog3")):
            C = Ctx("C" if var else "D", opts, va.clone(), A.sched.clone())
            mk2.rest(C, g, opts, var)
            C.stamp_flush()
            C.k("s_waitcnt vmcnt(0) lgkmcnt(0)\ns_endpgm")
            if lab:
                body += lab + ":\n"
            body += C.k.finalize(init_vm=vm0, init_done=done0)
    else:
        body += "  s_waitcnt vmcnt(0) lgkmcnt(0)\n  s_endpgm\n"
    body += "L_roleB:\n" + tb + "L_exit:\n  s_endpgm\n"
    n = NAME + "_kernel"
    hdr = f"""; fused S5-SSM + shift-MLP kernel (generated by dev/mk.py)
; @launch grid=(256,1,1) block=(512,1,1) lds={LDS_BYTES}
.amdgcn_target "amdgcn-amd-amdhsa--gfx950"
.text
.globl {n}
.p2align 8
.type {n},@function
{n}:
"""
    tail = f""".section .rodata,"a"
.p2align 6
.amdhsa_kernel {n}
  .amdhsa_next_free_vgpr 256
  .amdhsa_next_free_sgpr 102
  .amdhsa_accum_offset 256
  .amdhsa_group_segment_fixed_size 0
  .amdhsa_kernarg_size 136
  .amdhsa_user_sgpr_count 2
  .amdhsa_user_sgpr_kernarg_segment_ptr 1
  .amdhsa_system_sgpr_workgroup_id_x 1
.end_amdhsa_kernel
"""
    return hdr + body + tail


if __name__ == "__main__":
    import argparse
    ap = argparse.ArgumentParser()
    ap.add_argument("-o", default="k.s")
    ap.add_argument("--stop", type=int, default=99)
    ap.add_argument("--stamps", action="store_true")
    ap.add_argument("--opt", action="append", default=[])
    a = ap.parse_args()
    opts = dict(stop=a.stop, stamps=a.stamps)
    for o in a.opt:
        kk, _, vv = o.partition("=")
        opts[kk] = int(vv) if vv else 1
    txt = build(opts)
    open(a.o, "w").write(txt)
    print("wrote", a.o, len(txt), "bytes", txt.count("\n"), "lines")
```

```python
import re

TRANS = {"v_exp_f32", "v_log_f32", "v_rcp_f32", "v_rsq_f32", "v_sqrt_f32", "v_sin_f32", "v_cos_f32"}
_reg = re.compile(r"^(v|s|a)(\d+)$")
_rng = re.compile(r"^(v|s|a)\[(\d+):(\d+)\]$")


def regs_of(op):
    op = op.strip()
    neg = op.lstrip("-").strip("|")
    if neg.startswith("abs(") or neg.startswith("neg("):
        neg = neg[4:-1]
    m = _reg.match(neg)
    if m:
        return [(m.group(1), int(m.group(2)))]
    m = _rng.match(neg)
    if m:
        return [(m.group(1), i) for i in range(int(m.group(2)), int(m.group(3)) + 1)]
    if neg == "vcc":
        return [("vcc", 0), ("vcc", 1)]
    if neg == "vcc_lo":
        return [("vcc", 0)]
    if neg == "vcc_hi":
        return [("vcc", 1)]
    if neg == "exec":
        return [("exec", 0)]
    if neg == "m0":
        return [("m0", 0)]
    return []


class Ins:
    __slots__ = ("text", "mn", "ops", "mods", "dst", "src", "cls", "tag", "region", "passes", "srcC", "dual")

    def __init__(self, text):
        self.text = text
        t = text.split(";")[0].strip()
        parts = t.split(None, 1)
        self.mn = parts[0]
        rest = parts[1] if len(parts) > 1 else ""
        ops = []
        cur = ""
        depth = 0
        for ch in rest:
            if ch == "[":
                depth += 1
            if ch == "]":
                depth -= 1
            if ch == "," and depth == 0:
                ops.append(cur.strip())
                cur = ""
            else:
                cur += ch
        if cur.strip():
            ops.append(cur.strip())
        mods = []
        if ops:
            last = ops[-1].split()
            ops[-1] = last[0]
            mods = last[1:]
        self.ops = ops
        self.mods = mods
        self.tag = None
        self.region = None
        self.passes = 0
        self.srcC = []
        self.dual = None
        self.classify()

    def classify(self):
        mn = self.mn
        ops = self.ops
        R = regs_of
        dst, src = [], []
        base = mn.replace("_e32", "").replace("_e64", "").replace("_dpp", "").replace("_sdwa", "")
        if mn.startswith("v_mfma"):
            cls = "mfma"
            dst = R(ops[0])
            src = R(ops[1]) + R(ops[2]) + R(ops[3])
            self.srcC = R(ops[3])
            self.passes = 8 if "32x32x16" in mn else (4 if "16x16x32" in mn else (2 if "4x4x4" in mn else 16))
        elif mn.startswith("v_"):
            cls = "valu"
            if base in TRANS:
                cls = "trans"
            if base.startswith("v_dot"):
                cls = "dot"
            if base.startswith("v_permlane") and "swap" in base:
                dst = R(ops[0]) + R(ops[1])
                src = list(dst)
                cls = "permlane"
            elif base == "v_nop":
                pass
            else:
                dst = R(ops[0])
                for o in ops[1:]:
                    src += R(o)
                if base.startswith("v_fmac") or base.startswith("v_dot2c") or base.startswith("v_pk_fmac") or base == "v_writelane_b32":
                    src += dst
                if base.startswith("v_cndmask") and len(ops) == 3:
                    src += [("vcc", 0), ("vcc", 1)]
                if base.startswith("v_cmp") and len(ops) == 2:
                    src = R(ops[0]) + R(ops[1])
                    dst = [("vcc", 0), ("vcc", 1)]
                if any(m.startswith("row_") or m.startswith("quad_perm") or m.startswith("wave_") or m.startswith("bank_mask") for m in self.mods):
                    cls = "dpp"
                    src += dst
                if base in ("v_readfirstlane_b32", "v_readlane_b32"):
                    cls = "readlane"
                if any(m.startswith("dst_sel") or m.startswith("op_sel") for m in self.mods):
                    src += dst
        elif mn.startswith("ds_"):
            cls = "ds"
            if mn.startswith("ds_read") or mn.startswith("ds_bpermute") or mn.startswith("ds_swizzle") or mn.startswith("ds_permute"):
                dst = R(ops[0])
                for o in ops[1:]:
                    src += R(o)
                if "d16" in mn:
                    src += dst
            else:
                for o in ops:
                    src += R(o)
        elif mn.startswith("buffer_"):
            cls = "vmem"
            if mn.startswith("buffer_load"):
                if "lds" in self.mods:
                    for o in ops:
                        src += R(o)
                    src += [("m0", 0)]
                    cls = "dma"
                else:
                    dst = R(ops[0])
                    for o in ops[1:]:
                        src += R(o)
                    if "d16" in mn:
                        src += dst
            else:
                for o in ops:
                    src += R(o)
        elif mn.startswith("s_"):
            cls = "salu"
            if mn in ("s_waitcnt", "s_nop", "s_barrier", "s_endpgm", "s_sleep", "s_setprio") or mn.startswith("s_cbranch") or mn == "s_branch":
                cls = "ctl"
            elif mn.startswith("s_cmp") or mn.startswith("s_bitcmp"):
                for o in ops:
                    src += R(o)
            else:
                dst = R(ops[0]) if ops else []
                for o in ops[1:]:
                    src += R(o)
                if "saveexec" in mn:
                    dst += [("exec", 0)]
                if mn.startswith("s_load") or mn.startswith("s_memtime") or mn.startswith("s_buffer_load"):
                    cls = "smem"
        else:
            raise ValueError("unknown instruction: " + self.text)
        self.dst, self.src, self.cls = dst, src, cls


class Prog:
    def __init__(self, name="p"):
        self.items = []
        self.name = name
        self._rid = 0
        self._lab = 0

    def __call__(self, text, tag=None):
        last = None
        for l in text.strip("\n").split("\n"):
            l = l.strip()
            if not l or l.startswith(";"):
                continue
            if l.endswith(":"):
                self.items.append(("label", l[:-1]))
            else:
                last = Ins(l)
                self.items.append(last)
        if tag is not None:
            last.tag = tag
        return last

    def label(self, hint="L"):
        self._lab += 1
        return f"{hint}_{self.name}_{self._lab}"

    def waitvm(self, tag):
        self.items.append(("waitvm", tag))

    def waitds(self, tag):
        self.items.append(("waitds", tag))

    def comment(self, s):
        self.items.append(("raw", "; " + s))

    def region_begin(self, cls=None):
        if cls is None:
            self._rid += 1
            cls = self._rid
        self.items.append(("region", cls))

    def region_end(self):
        self.items.append(("region", None))

    def finalize(self, init_vm=None, init_done=None):
        out = []
        pos = 0
        lastw = {}
        aux = {}
        srcC_read = {}
        store_data = {}
        vm = [dict(e) for e in (init_vm or [])]
        ds = []
        region = None
        tags_done = set(init_done or [])

        def emit(t, states=1):
            nonlocal pos
            out.append("  " + t)
            pos += states

        def count_after(q, i):
            r0 = q[i]["region"]
            n = 0
            for e in q[i + 1:]:
                if e["region"] is None or e["region"] == region or e["region"] == r0:
                    n += 1
            return n

        def do_wait(nv, nl):
            parts = []
            if nv is not None:
                parts.append(f"vmcnt({min(nv, 63)})")
            if nl is not None:
                parts.append(f"lgkmcnt({min(nl, 15)})")
            if parts:
                emit("s_waitcnt " + " ".join(parts))

        def retire(q, i):
            keep = []
            for e in q[:i + 1]:
                if region is not None and e["region"] != region:
                    keep.append(e)
                    continue
                if e["tag"] is not None:
                    tags_done.add(e["tag"])
            q[:i + 1] = keep

        def flush_hazards():
            need = 0
            for r, (p, c, ps) in lastw.items():
                if c == "mfma":
                    need = max(need, p + {2: 5, 4: 8, 8: 12, 16: 20}[ps] - pos)
                elif c in ("valu", "trans", "dot", "dpp", "permlane", "readlane"):
                    need = max(need, p + (5 if r[0] in ("s", "vcc") else 3) - pos)
                elif c == "salu" and r[0] == "m0":
                    need = max(need, p + 1 - pos)
            for r, (p, ps) in srcC_read.items():
                need = max(need, p + {2: 1, 4: 3, 8: 7, 16: 15}[ps] - pos)
            for r, p in store_data.items():
                need = max(need, p + 2 - pos)
            pad(need)

        def pad(n):
            while n > 0:
                m = min(n, 16)
                emit(f"s_nop {m - 1}", m)
                n -= m

        for it in self.items:
            if isinstance(it, tuple):
                kind = it[0]
                if kind == "label":
                    flush_hazards()
                    out.append(it[1] + ":")
                elif kind == "raw":
                    out.append("  " + it[1])
                elif kind == "region":
                    region = it[1]
                elif kind in ("waitvm", "waitds"):
                    q = vm if kind == "waitvm" else ds
                    idx = [i for i, e in enumerate(q) if e["tag"] == it[1]]
                    if not idx:
                        assert it[1] in tags_done, f"unknown tag {it[1]}"
                        continue
                    i = idx[-1]
                    n = count_after(q, i)
                    do_wait(n if kind == "waitvm" else None, n if kind == "waitds" else None)
                    retire(q, i)
                continue
            ins = it
            c = ins.cls
            if ins.mn == "s_waitcnt":
                m = re.search(r"vmcnt\((\d+)\)", ins.text)
                if m:
                    n = int(m.group(1))
                    if n == 0:
                        retire(vm, len(vm) - 1) if vm else None
                    else:
                        definite = [i for i, e in enumerate(vm) if e["region"] is None or e["region"] == region]
                        if len(definite) > n:
                            retire(vm, definite[len(definite) - n - 1])
                m = re.search(r"lgkmcnt\((\d+)\)", ins.text)
                if m:
                    n = int(m.group(1))
                    if n == 0:
                        retire(ds, len(ds) - 1) if ds else None
                    else:
                        definite = [i for i, e in enumerate(ds) if e["region"] is None or e["region"] == region]
                        if len(definite) > n:
                            retire(ds, definite[len(definite) - n - 1])
                emit(ins.text)
                continue
            if ins.mn == "s_nop":
                emit(ins.text, int(ins.ops[0]) + 1)
                continue
            if ins.mn.startswith("s_cbranch") or ins.mn == "s_branch":
                flush_hazards()
                emit(ins.text)
                continue
            touched = set(ins.src) | set(ins.dst)
            nv = nl = None
            for q, which in ((vm, "v"), (ds, "l")):
                hit = -1
                for i, e in enumerate(q):
                    if e["dst"] & touched:
                        hit = i
                if hit >= 0:
                    n = count_after(q, hit)
                    if which == "v":
                        nv = n
                    else:
                        nl = n
                    retire(q, hit)
            do_wait(nv, nl)
            need = 0
            isvalu = c in ("valu", "trans", "dot", "dpp", "permlane", "readlane")
            for r in ins.src:
                if r in lastw:
                    p, wc, ps = lastw[r]
                    d = 0
                    if wc == "mfma":
                        if c == "mfma" and r in ins.srcC and ins.srcC == aux.get(("D", r), None) and ps == ins.passes:
                            d = 2 if ps == 2 else 0
                        elif c == "mfma" and r in ins.srcC:
                            d = {2: 4, 4: 6, 8: 10, 16: 18}[ps]
                        else:
                            d = {2: 5, 4: 8, 8: 12, 16: 20}[ps]
                    elif wc in ("valu", "trans", "dot", "dpp", "permlane", "readlane"):
                        if r[0] == "v" or r[0] == "a":
                            if c == "mfma":
                                d = 2
                            if c in ("dpp", "permlane"):
                                d = max(d, 2)
                            if c == "readlane":
                                d = max(d, 1)
                            if wc == "trans" and isvalu:
                                d = max(d, 1)
                            if wc == "dot":
                                same = aux.get(("M", r)) == ins.mn
                                if not (same and r in ins.dst):
                                    d = max(d, 3)
                            if aux.get(("S", r)):
                                d = max(d, 1)
                        else:
                            if isvalu:
                                d = 4 if c == "readlane" else 2
                            if c in ("vmem", "dma"):
                                d = 5
                    elif wc == "salu" and r[0] == "m0" and c == "dma":
                        d = 1
                    need = max(need, p + d - pos)
            for r in ins.dst:
                if r in lastw:
                    p, wc, ps = lastw[r]
                    if wc == "mfma" and not (c == "mfma"):
                        need = max(need, p + {2: 5, 4: 8, 8: 12, 16: 20}[ps] - pos)
                    if wc == "mfma" and c == "mfma" and r not in ins.srcC:
                        need = max(need, p + {2: 5, 4: 8, 8: 12, 16: 20}[ps] - pos)
                    if wc == "dot" and not (aux.get(("M", r)) == ins.mn):
                        need = max(need, p + 3 - pos)
                if r in srcC_read and isvalu:
                    p, ps = srcC_read[r]
                    need = max(need, p + {2: 1, 4: 3, 8: 7, 16: 15}[ps] - pos)
                if r in store_data:
                    need = max(need, store_data[r] + 2 - pos)
            pad(need)
            if ins.dual:
                sm, lab = ins.dual
                emit(f"s_cmp_eq_u32 s{sm}, 0")
                emit(f"s_cbranch_scc1 {lab}_f")
                out.append("  " + ins.text + " sc1")
                out.append(f"  s_branch {lab}_d")
                out.append(f"{lab}_f:")
                emit(ins.text)
                out.append(f"{lab}_d:")
            else:
                emit(ins.text)
            for r in ins.dst:
                lastw[r] = (pos, c, ins.passes)
                aux[("M", r)] = ins.mn
                aux[("S", r)] = any(m.startswith("dst_sel") or m.startswith("op_sel") for m in ins.mods)
                if c == "mfma":
                    aux[("D", r)] = ins.dst
            if c == "mfma":
                for r in ins.srcC:
                    srcC_read[r] = (pos, ins.passes)
            if c == "vmem" and ins.mn.startswith("buffer_store") and ("x3" in ins.mn or "x4" in ins.mn):
                for r in regs_of(ins.ops[0]):
                    store_data[r] = pos
            if c in ("vmem", "dma"):
                vm.append(dict(dst=set(ins.dst), tag=ins.tag, region=region))
            if c == "ds":
                ds.append(dict(dst=set(ins.dst), tag=ins.tag, region=region))
        flush_hazards()
        self.final_vm = vm
        self.final_ds = ds
        self.final_done = tags_done
        return "\n".join(out) + "\n"
```

```python
from mk3 import *

XR = [4, 5, 18, 17]


class Sched:
    def __init__(self, c, g):
        self.c, self.g = c, g
        self.free = set()
        self.items = [("C", r) for r in range(8)] + [("W", n) for n in range(28)]
        self.unit = {}

    def release(self, us):
        for u in us:
            assert u not in self.free
            self.free.add(u)

    def units(self, it):
        u = self.unit[it]
        return [u, u + 1] if it[0] == "C" else [u]

    def next(self, maxn=99):
        c, g = self.c, self.g
        out = []
        for it in self.items:
            if it in self.unit:
                continue
            if len(out) >= maxn:
                break
            fr = sorted(self.free)
            pairs = [u for u in fr if u + 1 in self.free]
            if it[0] == "C":
                if not pairs:
                    continue
                u = pairs[0]
                self.free -= {u, u + 1}
                self.unit[it] = u
                r = it[1]
                out.append(lambda u=u, r=r: c.dma(g.vR1k, sWC, f"s{sCrow}", U(u), inst=r * 128))
                out.append(lambda u=u, r=r: c.dma(g.vR1k, sWD, f"s{sCrow}", U(u + 1), inst=r * 128, tag=f"C{r}"))
            else:
                if not fr:
                    break
                u = fr[0]
                self.free.discard(u)
                self.unit[it] = u
                n = it[1]
                ph, j3 = n // 14, n % 14
                out.append(lambda u=u, n=n, ph=ph, j3=j3: c.dma(g.vK1k, sWB, None, U(u), sadd=(sC128, (2 * j3 + ph) * 65536), tag=f"W{n}"))
        return out


def sel(k, dst, sidx, vals):
    k(f"s_mov_b32 s{dst}, {vals[0]}")
    for i in range(1, len(vals)):
        k(f"s_cmp_eq_u32 s{sidx}, {i}\ns_cselect_b32 s{dst}, {vals[i]}, s{dst}")


def late_srds(c):
    k = c.k
    srd(k, sWB, P_W4, 1792 * 1024)
    srd(k, sWC, P_CRE, 512 * 1024)
    srd(k, sWD, P_CIM, 512 * 1024)


def f0_issue(c, g):
    k = c.k
    k(f"""s_lshl_b32 s{sT}, s{sRH}, 8
    s_lshl_b32 s{sT+1}, s{sW}, 5
    s_add_u32 s{sT}, s{sT}, s{sT+1}
    s_add_u32 s{sD}, s{sT}, s{sFL}""")
    g.p0 = c.poll_issue(g, sD, 8)


def e_loads(c, g):
    k = c.k
    k(f"""s_add_u32 s{sMI}, s{P_WS}, {WS_E}
    s_addc_u32 s{sMI+1}, s{P_WS+1}, 0
    s_mov_b32 s{sMI+2}, 131072
    s_mov_b32 s{sMI+3}, 0x00020000""")
    for ii in range(2):
        k(f"buffer_load_dwordx4 {vr(g.eg+4*ii,4)}, v{g.veb+ii}, s[{sMI}:{sMI+3}], 0 offen sc1")


def g2(c, g, kind, after_bar, mid, sc):
    k, va, o = c.k, c.va, c.opts
    isS = kind != "M"
    c.poll_check(g, g.p0)
    c.stamp(4)
    hp = va.get(32)
    k(f"""s_lshr_b32 s{sT}, s{sT0}, 4
    s_lshl_b32 s{sT+1}, s{sRH}, 2
    s_add_u32 s{sT}, s{sT}, s{sT+1}
    s_lshl_b32 s{sT}, s{sT}, 14
    s_lshl_b32 s{sT+1}, s{sW}, 13
    s_add_u32 s{sT}, s{sT}, s{sT+1}
    s_add_u32 s{sT+1}, s{sT}, 4096""")
    nb = o.get("hpn", 4)
    for i in range(8):
        if i == nb and mid:
            mid()
        k(f"buffer_load_dwordx4 {vr(hp+4*i,4)}, v{g.vL16}, s[{sWS}:{sWS+3}], s{sT+(i>>2)} offen offset:{(i&3)*1024} sc1")
    if nb >= 8 and mid:
        mid()
    if isS:
        S = g.scan
        g.eg = va.get(8)
        g.veb = va.get(2)
        k(f"""s_lshl_b32 s{sT}, s{sTQ}, 2
        s_sub_u32 s{sT}, s{sG}, s{sT}
        s_sub_u32 s{sT}, s{sT}, 1
        s_lshl_b32 s{sT}, s{sT}, 13
        s_lshl_b32 s{sT+1}, s{sC}, 10
        s_add_u32 s{sT}, s{sT}, s{sT+1}
        s_lshl_b32 s{sT+1}, s{sKH}, 9
        s_add_u32 s{sT}, s{sT}, s{sT+1}
        v_lshl_add_u32 v{g.veb}, v{S['i32']}, 4, s{sT}
        v_lshlrev_b32 v{g.veb+1}, 14, v{S['hf']}
        v_sub_u32 v{g.veb}, v{g.veb}, v{g.veb+1}
        v_subrev_u32 v{g.veb+1}, 8192, v{g.veb}""")
        if o.get("stop", 99) >= 3:
            e_loads(c, g)
        if kind == "S3":
            for i in g.w3rest:
                w3_dma(c, g, 0, i)
        else:
            late_srds(c)
            sc.release([14, 15, 16, 17, 0, 1, 2, 3])
            for f in sc.next():
                f()
    aG = [va.get() for _ in range(4)]
    t, u, q = va.get(), va.get(), va.get()
    k(f"""v_lshrrev_b32 v{q}, 4, v1
    v_bfe_u32 v{t}, v1, 2, 2
    v_lshl_add_u32 v{u}, v{q}, 2, v{t}          ; 4q+r'
    v_lshlrev_b32 v{aG[0]}, 7, v{u}
    v_lshrrev_b32 v{t}, 1, v{t}
    v_lshlrev_b32 v{t}, 2, v{t}
    v_and_b32 v{u}, 1, v{q}
    v_lshl_add_u32 v{t}, v{u}, 1, v{t}          ; swz
    v_bfe_u32 v{u}, v1, 1, 1
    s_lshl_b32 s{sT}, s{sKH}, 2
    v_add_u32 v{u}, s{sT}, v{u}
    v_xor_b32 v{u}, v{u}, v{t}
    v_lshl_add_u32 v{aG[0]}, v{u}, 4, v{aG[0]}
    v_and_b32 v{u}, 1, v1
    v_lshl_add_u32 v{aG[0]}, v{u}, 3, v{aG[0]}
    s_lshl_b32 s{sT}, s{sKH}, 15
    s_add_u32 s{sT}, s{sT}, {U(6)}
    v_add_u32 v{aG[0]}, s{sT}, v{aG[0]}""")
    for a in range(1, 4):
        k(f"v_xor_b32 v{aG[a]}, {a*32}, v{aG[0]}")
    xn_prep(c, g)
    vx1, vex = va.get(), va.get()
    k(f"""v_and_b32 v{t}, 15, v1
    v_and_b32 v{u}, 1, v{q}
    v_lshl_add_u32 v{t}, v{u}, 5, v{t}
    v_lshlrev_b32 v{t}, 4, v{t}
    v_lshrrev_b32 v{u}, 1, v{q}
    v_lshl_add_u32 v{vx1}, v{u}, 10, v{t}
    s_lshl_b32 s{sT}, s{sW}, 11
    s_add_u32 s{sT}, s{sT}, {U(4)}
    v_add_u32 v{vex}, s{sT}, v{g.vL16}""")
    for r in (t, u, q):
        va.put(r)
    if not isS:
        k.waitvm("w2_7")
        bar(c)
        after_bar()
    c.stamp(5)
    acc = [va.get(4) for _ in range(4)]
    NB = 3
    fa = [va.get(16) for _ in range(NB)]
    pipe = Pipe()
    for i in range(8):
        for a in range(4):
            for uu in range(2):
                k(f"ds_read_b64_tr_b16 {vr(fa[i%NB]+4*a+2*uu,2)}, v{aG[a]} offset:{(i>>1)*8192 + (32*(i&1)+16*uu)*128}")

        def mf(i=i):
            for a in (2, 3, 0, 1):
                mf16(k, acc[a], fa[i % NB] + 4 * a, hp + 4 * i, i == 0)
        pipe.push(mf)
        pipe.drain(2)
    pipe.drain()
    for f in fa:
        va.put(f, 16)
    for a in aG:
        va.put(a)
    va.put(hp, 32)
    for i in range(2):
        k(f"ds_write_b128 v{vex}, {vr(acc[2+i],4)} offset:{1024*i}")
    k(f"""v_xor_b32 v{vex}, 2048, v{vex}
    s_lshr_b32 s{sT}, s{sT0}, 5
    s_lshl_b32 s{sT+1}, s{sRH}, 1
    s_lshr_b32 s{sT+2}, s{sW}, 2
    s_add_u32 s{sT+1}, s{sT+1}, s{sT+2}
    s_add_u32 s{sT}, s{sT}, s{sT+1}             ; t32
    s_lshl_b32 s{sT+2}, s{sC}, 1
    s_add_u32 s{sT+2}, s{sT+2}, s{sKH}          ; slice
    s_and_b32 s{sT+3}, s{sTQ}, 1
    s_lshl_b32 s{sT}, s{sT}, 4
    s_add_u32 s{sT}, s{sT}, s{sT+2}             ; t32*16+slice
    s_lshl_b32 s{sT+4}, s{sT}, 11
    s_lshl_b32 s{sT+7}, s{sT+3}, 8
    s_add_u32 s{sT+4}, s{sT+4}, s{sT+7}
    s_add_u32 s{sHB}, s{sT+4}, {WS_X1}
    s_lshl_b32 s{sT}, s{sT}, 8
    s_lshl_b32 s{sT+7}, s{sT+3}, 7
    s_add_u32 s{sT}, s{sT}, s{sT+7}
    s_add_u32 s{sUB}, s{sT}, {WS_PS}
    s_lshl_b32 s{sT+1}, s{sT+1}, 5
    s_lshl_b32 s{sT+3}, s{sT+3}, 4
    s_add_u32 s{sT+1}, s{sT+1}, s{sT+3}
    s_add_u32 s{sT+1}, s{sT+1}, s{sT+2}
    s_lshl_b32 s{sT+1}, s{sT+1}, 2
    s_add_u32 s{sT+1}, s{sT+1}, s{sFL}
    s_add_u32 s{sD}, s{sT+1}, 1024""")
    bar(c)
    c.stamp(6)
    for i in range(2):
        k(f"ds_read_b128 {vr(acc[2+i],4)}, v{vex} offset:{1024*i}")
    lo, hi = va.get(), va.get()
    x1 = va.get(4)
    for i in range(4):
        a = acc[i >> 1] + 2 * (i & 1)
        b = acc[2 + (i >> 1)] + 2 * (i & 1)
        k(f"""v_lshlrev_b32 v{lo}, 16, v{g.xq+i}
        v_and_b32 v{hi}, 0xffff0000, v{g.xq+i}
        v_add_f32 v{a}, v{a}, v{b}
        v_add_f32 v{a+1}, v{a+1}, v{b+1}
        v_add_f32 v{lo}, v{lo}, v{a}
        v_add_f32 v{hi}, v{hi}, v{a+1}
        v_cvt_pk_bf16_f32 v{x1+i}, v{lo}, v{hi}""")
    c.store(f"buffer_store_dwordx4 {vr(x1,4)}, v{vx1}, s[{sWS}:{sWS+3}], s{sHB} offen", o.get("phx"))
    for a in acc:
        va.put(a, 4)
    va.put(g.xq, 4)
    s12 = va.get(2)
    S1, S2 = s12, s12 + 1
    k(f"v_mov_b32 v{S1}, 0\nv_mov_b32 v{S2}, 0")
    for i in range(4):
        k(f"v_dot2c_f32_bf16 v{S1}, s{sONE}, v{x1+i}\nv_dot2c_f32_bf16 v{S2}, v{x1+i}, v{x1+i}")
    k(f"""v_permlane32_swap_b32 v{S1}, v{S2}
    v_add_f32 v{S1}, v{S1}, v{S2}
    v_mov_b32 v{S2}, v{S1}
    v_permlane16_swap_b32 v{S1}, v{S2}
    v_add_f32 v{S1}, v{S1}, v{S2}
    v_mov_b32 v{S2}, v{S1}
    v_permlane32_swap_b32 v{S1}, v{S2}
    v_lshlrev_b32 v{lo}, 3, v1
    s_mov_b64 exec, 0xffff""")
    c.store(f"buffer_store_dwordx2 {vr(s12,2)}, v{lo}, s[{sWS}:{sWS+3}], s{sUB} offen", o.get("phx"), tag="x1st")
    k("s_mov_b64 exec, -1")
    va.put(s12, 2); va.put(x1, 4); va.put(lo); va.put(hi); va.put(vx1)
    g.vscr = vex
    c.stamp(7)
    if kind != "S0":
        todo = [lambda i=i: w3_dma(c, g, 1, i) for i in range(8)] if o.get("stop", 99) >= 4 else []
    else:
        sc.release(range(6, 14))
        todo = sc.next() if o.get("stop", 99) >= 5 else []

    def f1():
        k = c.k
        k.waitvm("x1st")
        c.flag(g, sD)
    return todo, f1


def scan2a(c, g):
    k, va = c.k, c.va
    S = g.scan
    eg = g.eg
    loop, done = k.label("L_el"), k.label("L_ed")
    bad, e_, x_, y_ = [va.get() for _ in range(4)]
    k(f"""v_mov_b32 v{bad}, v{eg+7}
    s_mov_b32 s{sT+1}, {SPIN}
    {loop}:
    v_mov_b32 v{bad}, 0""")
    for ii in range(2):
        k(f"""v_cmp_le_i32 vcc, 0, v{g.veb+ii}
        v_cndmask_b32 v{e_}, 0, v{g.vNON}, vcc
        v_xor_b32 v{x_}, v{e_}, v{eg+4*ii+1}
        v_xor_b32 v{y_}, v{e_}, v{eg+4*ii+3}
        v_or3_b32 v{bad}, v{bad}, v{x_}, v{y_}""")
    k(f"""v_cmp_ne_u32 vcc, 0, v{bad}
    s_cbranch_vccz {done}""")
    k.region_begin()
    e_loads(c, g)
    k(f"""s_waitcnt vmcnt(0)
    s_sub_u32 s{sT+1}, s{sT+1}, 1
    s_cmp_lg_u32 s{sT+1}, 0
    s_cbranch_scc1 {loop}""")
    k.region_end()
    k(f"{done}:")
    d = va.get(2)
    cmad(k, x_, y_, S["l128"], S["l128"] + 1, eg + 4, eg + 6, eg, eg + 2)
    cmul(k, d, d + 1, S["fe"], S["fe"] + 1, x_, y_)
    k(f"""v_mov_b32 v{x_}, v{d}
    v_mov_b32 v{y_}, v{d+1}
    v_permlane32_swap_b32 v{d}, v{x_}
    v_permlane32_swap_b32 v{d+1}, v{y_}
    v_add_f32 v{d}, v{d}, v{x_}
    v_add_f32 v{d+1}, v{d+1}, v{y_}
    s_lshl_b32 s{sT}, s{sKH}, 8
    s_add_u32 s{sT}, s{sT}, {CSB}
    v_lshl_add_u32 v{e_}, v{S['i32']}, 3, s{sT}
    s_lshl_b32 s{sT}, s{sTQ}, 9
    v_add_u32 v{bad}, s{sT}, v{e_}
    ds_write_b64 v{bad}, {vr(d,2)}""")
    g.vep = e_
    for r in (bad, x_, y_):
        va.put(r)
    va.put(d, 2); va.put(eg, 8); va.put(g.veb, 2); va.put(S["l128"], 2); va.put(S["fe"], 2)


def scan2b(c, g, hooks):
    k, va = c.k, c.va
    S = g.scan
    ep = va.get(8)
    for i in range(4):
        k(f"ds_read_b64 {vr(ep+2*i,2)}, v{g.vep} offset:{512*i}")
    va.put(g.vep)
    wr, rd, vho, t = [va.get() for _ in range(4)]
    k(f"""s_xor_b32 s{sT}, s{sW}, 1
    s_lshl_b32 s{sT}, s{sT}, 11
    s_add_u32 s{sT}, s{sT}, {U(4)}
    v_lshl_add_u32 v{wr}, v{S['i32']}, 5, s{sT}
    v_lshl_add_u32 v{wr}, v{S['hf']}, 4, v{wr}
    v_lshl_add_u32 v{rd}, v{S['hf']}, 10, s{sT}
    v_bfe_u32 v{t}, v1, 4, 1
    v_lshl_add_u32 v{rd}, v{t}, 8, v{rd}
    v_lshlrev_b32 v{vho}, 10, v{t}
    v_and_b32 v{t}, 15, v1
    v_lshl_add_u32 v{rd}, v{t}, 3, v{rd}        ; r'*32 + c4*8
    v_lshl_add_u32 v{vho}, v{S['hf']}, 9, v{vho}
    v_bfe_u32 v{t}, v1, 3, 1
    v_lshl_add_u32 v{vho}, v{t}, 8, v{vho}
    v_and_b32 v{t}, 7, v1
    v_lshl_add_u32 v{vho}, v{t}, 4, v{vho}
    s_lshr_b32 s{sT}, s{sT0}, 5
    s_add_u32 s{sT}, s{sT}, s{sTQ}
    s_lshl_b32 s{sT}, s{sT}, 16
    s_lshl_b32 s{sT+1}, s{sC}, 13
    s_add_u32 s{sT}, s{sT}, s{sT+1}
    s_lshl_b32 s{sT+1}, s{sKH}, 12
    s_add_u32 s{sT}, s{sT}, s{sT+1}
    s_add_u32 s{sHB}, s{sT}, {WS_H}
    s_lshl_b32 s{sT}, s{sW}, 3
    s_add_u32 s{sT}, s{sT}, s{sC}
    s_lshl_b32 s{sT}, s{sT}, 2
    s_add_u32 s{sT}, s{sT}, s{sFL}
    s_add_u32 s{sUB}, s{sT}, 2048
    v_add_f32 v{ep}, v{ep}, v{ep+2}
    v_add_f32 v{ep+1}, v{ep+1}, v{ep+3}
    v_add_f32 v{ep+4}, v{ep+4}, v{ep+6}
    v_add_f32 v{ep+5}, v{ep+5}, v{ep+7}
    v_add_f32 v{ep}, v{ep}, v{ep+4}
    v_add_f32 v{ep+1}, v{ep+1}, v{ep+5}""")
    cin = ep + 2
    cmad(k, cin, cin + 1, S["fs"], S["fs"] + 1, ep, ep + 1, S["pre"], S["pre"] + 1)
    pk = [va.get(4), va.get(4)]
    ob = [va.get(4) for _ in range(4)]
    cur = (cin, cin + 1)
    for r in range(16):
        hr, hi_ = S["accr"] + r, S["acci"] + r
        cmad(k, hr, hi_, S["lr"], S["li"], cur[0], cur[1], hr, hi_)
        cur = (hr, hi_)
        if r & 1:
            j = (r >> 1) & 3
            k(f"""v_cvt_pk_bf16_f32 v{pk[0]+j}, v{hr-1}, v{hr}
            v_cvt_pk_bf16_f32 v{pk[1]+j}, -v{hi_-1}, -v{hi_}""")
        if r & 7 == 7:
            rho = r >> 3
            k(f"""ds_write_b128 v{wr}, {vr(pk[0],4)}
            ds_write_b128 v{wr}, {vr(pk[1],4)} offset:1024""")
            for kk in range(2):
                for uu in range(2):
                    k(f"ds_read_b64_tr_b16 {vr(ob[2*rho+kk]+2*uu,2)}, v{rd} offset:{512*kk+128*uu}")
        if r == 11 or r == 15:
            rho = (r >> 2) & 1
            for kk in range(2):
                k(f"buffer_store_dwordx4 {vr(ob[2*rho+kk],4)}, v{vho}, s[{sWS}:{sWS+3}], s{sHB} offen offset:{2048*kk+128*rho} sc1",
                  tag="hst")
        if r in hooks:
            hooks[r]()
    for r in (wr, rd, vho, t):
        va.put(r)
    for f in pk + ob:
        va.put(f, 4)
    va.put(ep, 8)
    va.put(S["accr"], 16); va.put(S["acci"], 16)
    for n_ in ("lr", "li", "i32", "hf"):
        va.put(S[n_])
    va.put(S["fs"], 2); va.put(S["pre"], 2)


def tr32_lane(c, dst, tile_sgpr):
    k, va = c.k, c.va
    t, u, h = va.get(), va.get(), va.get()
    k(f"""v_lshrrev_b32 v{h}, 5, v1
    v_bfe_u32 v{t}, v1, 2, 2
    v_lshl_add_u32 v{u}, v{h}, 2, v{t}
    v_lshlrev_b32 v{dst}, 7, v{u}
    v_lshrrev_b32 v{t}, 1, v{t}
    v_lshlrev_b32 v{t}, 2, v{t}
    v_lshl_add_u32 v{t}, v{h}, 1, v{t}          ; swz
    v_bfe_u32 v{u}, v1, 4, 1
    v_bfe_u32 v{h}, v1, 1, 1
    v_lshl_add_u32 v{u}, v{u}, 1, v{h}""")
    if tile_sgpr is not None:
        k(f"s_lshl_b32 s{sT}, s{tile_sgpr}, 2\nv_add_u32 v{u}, s{sT}, v{u}")
    k(f"""v_xor_b32 v{u}, v{u}, v{t}
    v_lshl_add_u32 v{dst}, v{u}, 4, v{dst}
    v_and_b32 v{u}, 1, v1
    v_lshl_add_u32 v{dst}, v{u}, 3, v{dst}""")
    for r in (t, u, h):
        va.put(r)


def g46_scalars(c):
    c.k(f"""s_lshr_b32 s{sT}, s{sT0}, 5
    s_lshl_b32 s{sT+1}, s{sRH}, 1
    s_add_u32 s{sT+1}, s{sT+1}, s{sKH}          ; tb'
    s_add_u32 s{sT}, s{sT}, s{sT+1}             ; t32
    s_lshl_b32 s{sT+2}, s{sT}, 16
    s_lshl_b32 s{sT+3}, s{sTQ}, 11
    s_add_u32 s{sT+2}, s{sT+2}, s{sT+3}
    s_add_u32 s{sHB}, s{sT+2}, {WS_H}
    s_lshl_b32 s{sT+1}, s{sT+1}, 1
    s_lshr_b32 s{sT+3}, s{sW}, 2
    s_add_u32 s{sT+1}, s{sT+1}, s{sT+3}
    s_lshl_b32 s{sT+3}, s{sT+1}, 5
    s_add_u32 s{sT+3}, s{sT+3}, s{sFL}
    s_add_u32 s{sA}, s{sT+3}, 2048
    s_lshl_b32 s{sT+3}, s{sT+1}, 6
    s_add_u32 s{sT+3}, s{sT+3}, s{sFL}
    s_add_u32 s{sB}, s{sT+3}, 3072""")


def h_load(c, g, dst, n):
    r, b = n >> 1, n & 1
    c.k(f"""s_add_u32 s{sT+7}, s{sHB}, {r*8192}
    buffer_load_dwordx4 {vr(dst,4)}, v{g.vL16}, s[{sWS}:{sWS+3}], s{sT+7} offen offset:{b*1024} sc1""")


def f1_issue(c, g):
    c.k(f"""s_lshl_b32 s{sT}, s{sTQ}, 7
    s_add_u32 s{sT}, s{sT}, s{sFL}
    s_add_u32 s{sA}, s{sT}, 1024""")
    g.p1 = c.poll_issue(g, sA, 32)


def g3(c, g, sc, f2flag):
    k, va, o = c.k, c.va, c.opts
    stop = o.get("stop", 99)
    xf = va.get(64)
    ps = va.get(8)
    a3 = [[va.get() for j in range(4)] for a in range(2)]
    ax = [va.get(), va.get()]
    vps = va.get()
    tr32_lane(c, a3[0][0], sKH)
    fx = lambda x: ((x >> 1) << 12) | ((x & 1) << 10)
    k(f"""s_lshr_b32 s{sT}, s{sTQ}, 1
    s_lshl_b32 s{sT}, s{sT}, 12
    s_and_b32 s{sT+1}, s{sTQ}, 1
    s_lshl_b32 s{sT+1}, s{sT+1}, 10
    s_or_b32 s{sT}, s{sT}, s{sT+1}
    s_mov_b32 s{sB}, {U(10)}
    s_cmp_eq_u32 s{sKH}, 0
    s_cselect_b32 s{sT+1}, {U(14)}, {U(0)}
    s_cselect_b32 s{sB}, {(U(6) - U(14)) & 0xffffffff}, s{sB}
    s_add_u32 s{sT}, s{sT}, s{sT+1}
    v_add_u32 v{a3[0][0]}, s{sT}, v{a3[0][0]}
    v_xor_b32 v{a3[1][0]}, 64, v{a3[0][0]}
    v_add_u32 v{ax[0]}, s{sB}, v{a3[0][0]}
    v_add_u32 v{ax[1]}, s{sB}, v{a3[1][0]}
    v_and_b32 v{vps}, 31, v1
    v_lshrrev_b32 v{ps}, 5, v1
    v_lshlrev_b32 v{ps}, 10, v{ps}
    v_lshl_add_u32 v{vps}, v{vps}, 3, v{ps}
    s_lshr_b32 s{sT}, s{sT0}, 5
    s_add_u32 s{sT}, s{sT}, s{sTQ}              ; t32
    s_mul_i32 s{sUB}, s{sT}, {112*1024}
    s_lshl_b32 s{sT+1}, s{sJ3B}, 5
    s_add_u32 s{sUB}, s{sUB}, s{sT+1}
    s_lshl_b32 s{sT+1}, s{sKH}, 11
    s_add_u32 s{sUB}, s{sUB}, s{sT+1}
    s_add_u32 s{sUB}, s{sUB}, {WS_U}
    s_lshl_b32 s{sT}, s{sT}, 1
    s_add_u32 s{sT}, s{sT}, s{sKH}
    s_lshl_b32 s{sT+1}, s{sT}, 11
    s_add_u32 s{sT+4}, s{sT+1}, {WS_PS}
    s_lshl_b32 s{sT}, s{sT}, 14
    s_add_u32 s{sD}, s{sT}, {WS_X1}""")
    for a in range(2):
        for j in range(1, 4):
            k(f"v_xor_b32 v{a3[a][j]}, {fx(j)}, v{a3[a][0]}")
    late_srds(c)
    c.stamp(9)
    c.poll_check(g, g.p1)
    c.stamp(10)

    def x_load(i):
        c.k(f"""s_xor_b32 s{sT+7}, s{sTQ}, {i}
        s_lshl_b32 s{sT+7}, s{sT+7}, 10
        s_add_u32 s{sT+7}, s{sT+7}, s{sD}
        buffer_load_dwordx4 {vr(xf+4*i,4)}, v{g.vL16}, s[{sWS}:{sWS+3}], s{sT+7} offen sc1""")
    D = o.get("d3", 5)
    for i in range(D):
        x_load(i)
    for i in range(4):
        k(f"buffer_load_dwordx2 {vr(ps+2*i,2)}, v{vps}, s[{sWS}:{sWS+3}], s{sT+4} offen offset:{256*i} sc1")
    va.put(vps)
    k.waitvm("w3_1_7")
    if f2flag:
        f2flag()
    bar(c)
    c.stamp(11)
    acc = [[va.get(16), va.get(16)] for ph in range(2)]
    cs = [[va.get(), va.get()] for ph in range(2)]
    for ph in range(2):
        for a in range(2):
            k(f"v_mov_b32 v{cs[ph][a]}, 0")
    NB = 3
    fa = [va.get(8) for _ in range(NB)]
    fx1 = va.get(8)
    pipe = Pipe()

    def reads(i):
        for a in (1, 0):
            for uu in range(2):
                c.k(f"ds_read_b64_tr_b16 {vr(fa[i%NB]+4*a+2*uu,2)}, v{a3[a][i&3]} offset:{(i>>2)*8192 + 2048*uu}")

    for i in range(16):
        reads(i)
        if (i & 3) == 1:
            for a in range(2):
                for uu in range(2):
                    k(f"ds_read_b64_tr_b16 {vr(fx1+4*a+2*uu,2)}, v{ax[a]} offset:{(i>>2)*8192 + 2048*uu}")
        if i + D < 16:
            x_load(i + D)

        def mf(i=i):
            for a in (1, 0):
                mf32(k, acc[0][a], fa[i % NB] + 4 * a, xf + 4 * i, i == 0)
                if (i & 3) == 0:
                    for r in range(4):
                        k(f"v_dot2c_f32_bf16 v{cs[0][a]}, s{sONE}, v{fa[i%NB]+4*a+r}")
                if (i & 3) == 1:
                    for r in range(4):
                        k(f"v_dot2c_f32_bf16 v{cs[1][a]}, s{sONE}, v{fx1+4*a+r}")
        pipe.push(mf)
        pipe.drain(2)
    pipe.drain()
    va.put(fx1, 8); va.put(ax[0]); va.put(ax[1])
    t, u = va.get(), va.get()
    vxw = va.get()
    vsx = va.get()
    k(f"""v_lshrrev_b32 v{t}, 5, v1
    v_xor_b32 v{t}, s{sKH}, v{t}
    v_and_b32 v{u}, 31, v1
    v_lshl_add_u32 v{t}, v{t}, 5, v{u}
    s_lshl_b32 s{sT}, s{sW}, 2
    s_add_u32 s{sT}, s{sT}, {CSP}
    v_lshl_add_u32 v{t}, v{t}, 5, s{sT}
    s_lshl_b32 s{sT}, s{sW}, 8
    s_add_u32 s{sT}, s{sT}, {ST_A}
    v_lshl_add_u32 v{vsx}, v{u}, 3, s{sT}""")
    for ph in range(2):
        k(f"""v_permlane32_swap_b32 v{cs[ph][0]}, v{cs[ph][1]}
        v_add_f32 v{cs[ph][0]}, v{cs[ph][0]}, v{cs[ph][1]}
        ds_write_b32 v{t}, v{cs[ph][0]} offset:{2048*ph}""")
        va.put(cs[ph][0]); va.put(cs[ph][1])
    k(f"""v_add_f32 v{ps}, v{ps}, v{ps+2}
    v_add_f32 v{ps+1}, v{ps+1}, v{ps+3}
    v_add_f32 v{ps+4}, v{ps+4}, v{ps+6}
    v_add_f32 v{ps+5}, v{ps+5}, v{ps+7}
    v_add_f32 v{ps}, v{ps}, v{ps+4}
    v_add_f32 v{ps+1}, v{ps+1}, v{ps+5}
    v_mov_b32 v{ps+2}, v{ps}
    v_mov_b32 v{ps+3}, v{ps+1}
    v_permlane32_swap_b32 v{ps}, v{ps+2}
    v_permlane32_swap_b32 v{ps+1}, v{ps+3}
    v_add_f32 v{ps}, v{ps}, v{ps+2}
    v_add_f32 v{ps+1}, v{ps+1}, v{ps+3}
    ds_write_b64 v{vsx}, {vr(ps,2)}
    v_xor_b32 v{vsx}, 256, v{vsx}""")
    sel(k, sT, sTQ, [U(x) for x in XR])
    k(f"""s_lshl_b32 s{sT+1}, s{sKH}, 12
    s_add_u32 s{sT}, s{sT}, s{sT+1}
    v_add_u32 v{vxw}, s{sT}, v{g.vL16}""")
    for a in range(2):
        for j in range(4):
            k(f"v_add_u32 v{a3[a][j]}, s{sB}, v{a3[a][j]}")
    k(f"""s_lshl_b32 s{sT}, s{sW}, 6
    s_lshr_b32 s{sT+1}, s{sJ3B}, 6
    s_add_u32 s{sT}, s{sT}, s{sT+1}
    s_add_u32 s{sT}, s{sT}, s{sFL}
    s_add_u32 s{sD}, s{sT}, 3072""")
    g46_scalars(c)
    if stop >= 5:
        g.p2 = c.poll_issue(g, sA, 8)
    va.put(t); va.put(u)
    c.stamp(12)
    bar(c)
    for i in range(4):
        k(f"ds_write_b128 v{vxw}, {vr(acc[0][1]+4*i,4)} offset:{1024*i}")
    sc.release([14, 15, 16, 0, 1, 2, 3])
    todoA = sc.next() if stop >= 5 else []
    ab = va.get(2)
    vcs = va.get()

    def epilogue(ph):
        k = c.k
        A, X = acc[ph][0], acc[ph][1]
        xr = va.get()
        k(f"v_xor_b32 v{xr}, 4096, v{vxw}")
        for i in range(4):
            k(f"ds_read_b128 {vr(X+4*i,4)}, v{xr} offset:{1024*i}", tag=f"xr{ph}" if i == 3 else None)
        va.put(xr)
        if ph == 0:
            x = va.get(4)
            p8 = va.get(8)
            tt = va.get()
            k(f"""ds_read_b64 {vr(ps+2,2)}, v{vsx}
            v_lshlrev_b32 v{tt}, 5, v1
            v_add_u32 v{tt}, {CSP}, v{tt}""")
            for p in range(2):
                k(f"""ds_read_b128 {vr(p8,4)}, v{tt} offset:{2048*p}
                ds_read_b128 {vr(p8+4,4)}, v{tt} offset:{2048*p+16}
                v_add_f32 v{p8}, v{p8}, v{p8+1}
                v_add_f32 v{p8+2}, v{p8+2}, v{p8+3}
                v_add_f32 v{p8+4}, v{p8+4}, v{p8+5}
                v_add_f32 v{p8+6}, v{p8+6}, v{p8+7}
                v_add_f32 v{p8}, v{p8}, v{p8+2}
                v_add_f32 v{p8+4}, v{p8+4}, v{p8+6}
                v_add_f32 v{x+p}, v{p8}, v{p8+4}""")
            k(f"""v_add_u32 v{tt}, {CS3}, v{g.vL4}
            ds_write_b32 v{tt}, v{x}
            ds_write_b32 v{tt}, v{x+1} offset:256
            v_lshrrev_b32 v{vcs}, 5, v1
            s_lshl_b32 s{sT}, s{sKH}, 7
            s_add_u32 s{sT}, s{sT}, {CS3}
            v_lshl_add_u32 v{vcs}, v{vcs}, 4, s{sT}
            v_add_f32 v{ps}, v{ps}, v{ps+2}
            v_add_f32 v{ps+1}, v{ps+1}, v{ps+3}
            v_mul_f32 v{x}, {fhex(1/512)}, v{ps}
            v_mul_f32 v{x+1}, v{x}, v{x}
            v_fma_f32 v{x+1}, v{ps+1}, s{sI512}, -v{x+1}
            v_max_f32 v{x+1}, 0, v{x+1}""")
            c.bf16r(x, x)
            c.bf16r(x + 1, x + 1)
            k(f"v_add_f32 v{x+1}, {fhex(EPS)}, v{x+1}")
            c.bf16r(x + 1, x + 1)
            k(f"v_sqrt_f32 v{x+1}, v{x+1}")
            c.bf16r(x + 1, x + 1)
            k(f"""v_rcp_f32 v{ab}, v{x+1}
            v_mul_f32 v{ab+1}, v{x}, v{ab}""")
            held = [(x, 4), (p8, 8), (tt, 1)]
        else:
            held = []
        for r in range(16):
            k(f"v_add_f32 v{A+r}, v{A+r}, v{X+r}")
        for i in range(4):
            k(f"ds_read_b128 {vr(X+4*i,4)}, v{vcs} offset:{256*ph+32*i}")
        for r in range(16):
            k(f"""v_mul_f32 v{X+r}, v{ab+1}, v{X+r}
            v_fma_f32 v{A+r}, v{ab}, v{A+r}, -v{X+r}""")
        kk = X + 8
        k(f"v_mov_b32 v{kk}, {fhex(-K1)}")
        for e in range(2):
            xs = [A + 8 * e + r for r in range(8)]
            ts = [X + r for r in range(8)]
            for op in ("v_mul_f32 v{t}, v{x}, v{x}", "v_fma_f32 v{t}, v{t}, s%d, v%d" % (sK3, kk), "v_mul_f32 v{t}, v{t}, v{x}",
                       "v_exp_f32 v{t}, v{t}", "v_add_f32 v{t}, 1.0, v{t}", "v_rcp_f32 v{t}, v{t}", "v_mul_f32 v{x}, v{x}, v{t}"):
                for x_, t_ in zip(xs, ts):
                    k(op.format(t=t_, x=x_))
            P = X + 12 if e == 0 else X + 4
            for i in range(4):
                k(f"v_cvt_pk_bf16_f32 v{P+i}, v{xs[2*i]}, v{xs[2*i+1]}")
            k(f"s_add_u32 s{sT+4}, s{sUB}, {4096*ph}")
            k(f"buffer_store_dwordx4 {vr(P,4)}, v{g.vL16}, s[{sWS}:{sWS+3}], s{sT+4} offen offset:{1024*e} sc1", tag=f"ust{ph}")
        return held

    held = []
    fill = capture(c, lambda: held.extend(epilogue(0)))

    def pass2():
        k = c.k
        pipe = Pipe()
        for i in range(16):
            reads(i)
            if todoA:
                todoA.pop(0)()
            if i == 1:
                bar(c)
            if i == 2 and stop >= 5:
                c.poll_check(g, g.p2)
            if i == o.get("c3", 9):
                bar(c)

            def mf(i=i):
                for a in (1, 0):
                    mf32(k, acc[1][a], fa[i % NB] + 4 * a, xf + 4 * i, i == 0)
                if stop >= 5:
                    h_load(c, g, xf + 4 * i, i)
            pipe.push(mf)
            pipe.drain(2)
        pipe.drain()
    main = capture(c, pass2)
    splice(k, main, fill, o.get("per3", 7), start=0)
    for b, n in held:
        va.put(b, n)
    c.stamp(13)
    for f in fa:
        va.put(f, 8)
    for a in range(2):
        for j in range(4):
            va.put(a3[a][j])
    for i in range(4):
        k(f"ds_write_b128 v{vxw}, {vr(acc[1][1]+4*i,4)} offset:{1024*i}")
    k.waitvm("ust0")
    c.flag(g, sD)
    bar(c)
    sc.release(range(6, 14))
    if stop >= 5:
        for f in sc.next():
            f()
    epilogue(1)
    c.stamp(14)
    k(f"s_add_u32 s{sD}, s{sD}, 512")
    va.put(ps, 8); va.put(ab, 2); va.put(vcs); va.put(vxw); va.put(vsx)
    for ph in range(2):
        for a in range(2):
            va.put(acc[ph][a], 16)

    def f3b():
        c.k.waitvm("ust1")
        c.flag(g, sD)
    return xf, f3b


def g64(c, g, sc, xf, f3b, first_free):
    k, va, o = c.k, c.va, c.opts
    aC = [va.get(), va.get()]
    aW = [va.get(), va.get()]
    t, u = va.get(), va.get()
    k(f"""v_and_b32 v{t}, 31, v1
    v_bfe_u32 v{u}, v1, 1, 3
    s_lshl_b32 s{sT}, s{sTQ}, 1
    v_xor_b32 v{u}, s{sT}, v{u}
    v_lshlrev_b32 v{u}, 4, v{u}
    v_lshl_add_u32 v{aC[0]}, v{t}, 7, v{u}
    v_lshrrev_b32 v{u}, 5, v1
    v_lshl_add_u32 v{aC[0]}, v{u}, 13, v{aC[0]}
    v_xor_b32 v{aC[1]}, 16, v{aC[0]}""")
    tr32_lane(c, aW[0], None)
    k(f"""s_lshl_b32 s{sT}, s{sTQ}, 11
    v_add_u32 v{aW[0]}, s{sT}, v{aW[0]}
    v_xor_b32 v{aW[1]}, 64, v{aW[0]}
    s_lshr_b32 s{sT}, s{sT0}, 5
    s_lshl_b32 s{sT+1}, s{sRH}, 1
    s_add_u32 s{sT+1}, s{sT+1}, s{sKH}
    s_add_u32 s{sT}, s{sT}, s{sT+1}             ; t32
    s_mul_i32 s{sUB}, s{sT}, {112*1024}
    s_add_u32 s{sUB}, s{sUB}, {WS_U}
    s_lshl_b32 s{sT+1}, s{sTQ}, 10
    s_add_u32 s{sUB}, s{sUB}, s{sT+1}""")
    va.put(t); va.put(u)
    for a in aC + aW:
        c.pre_hi(a)
    acc6 = [va.get(16), va.get(16)]
    acc4 = [va.get(16), va.get(16)]
    NB = 3
    fa = [va.get(8) for _ in range(NB)]
    D = o.get("d4", 4)
    pool = [va.get(4) for _ in range(o.get("pool", 6))]
    ufr = {}

    def u_load(n):
        ph, j3 = n // 14, n % 14
        r = pool.pop(0)
        ufr[n] = r
        c.k(f"""s_add_u32 s{sT+7}, s{sUB}, {(8*j3+4*ph)*1024}
        buffer_load_dwordx4 {vr(r,4)}, v{g.vL16}, s[{sWS}:{sWS+3}], s{sT+7} offen sc1""")
    steps = [[("C", r)] for r in range(8)] + [[("W", 2 * i), ("W", 2 * i + 1)] for i in range(14)]
    pipe = Pipe()
    prev = list(first_free)
    nblk = 0
    fin = {}
    P3I = {o.get("p3ai", 1): 0, o.get("p3bi", 8): 1}
    dump6 = None
    red6 = None
    for n, st in enumerate(steps):
        c.stamp(24 + n)
        for it in st:
            k.waitvm(f"{it[0]}{it[1]}")
        bar(c)
        sc.release(prev)
        prev = [u_ for it in st for u_ in sc.units(it)]
        todo = sc.next()
        if n == o.get("f3bs", 1) and f3b:
            f3b()
        if n in P3I:
            ph = P3I[n]
            k(f"s_add_u32 s{sA}, s{sB}, {512*ph}")
            g.p3 = c.poll_issue(g, sA, 14)
        for b in range(2):
            buf = fa[nblk % NB]
            nblk += 1
            if n < 8:
                for a in range(2):
                    c.dsr("ds_read_b128", buf + 4 * a, 4, aC[b], U(sc.unit[st[0]]) + 4096 * a)
                fr_ = xf + 4 * (2 * n + b)
                A = acc6
                z = n == 0 and b == 0
            else:
                for a in range(2):
                    for uu in range(2):
                        c.dsr("ds_read_b64_tr_b16", buf + 4 * a + 2 * uu, 2, aW[a], U(sc.unit[st[b]]) + 1024 * uu)
                fr_ = ufr[st[b][1]]
                A = acc4
                z = n == 8 and b == 0
            for _ in range((len(todo) + 1 - b) // (2 - b) if b == 0 else len(todo)):
                todo.pop(0)()

            def mf(buf=buf, fr_=fr_, A=A, z=z):
                for a in range(2):
                    mf32(k, A[a], buf + 4 * a, fr_, z)
                pool.append(fr_)
            pipe.push(mf)
            pipe.drain(1)
        m = n + D - 8
        if 0 <= m < 14:
            if m in (0, 7):
                c.poll_check(g, g.p3)
            u_load(2 * m)
            u_load(2 * m + 1)
        if n == o.get("fls", 14):
            final_loads(c, g, fin)
        if dump6 is not None and red6 is None and n > dump6[1]:
            red6 = reduce_read(c, g, fin, dump6[0])
            final_s(c, g, fin, red6)
            fin["rel"] = n
        if dump6 is None and n >= 9 and all(it in sc.unit for it in sc.items) and len(sc.free) >= 8:
            us = sorted(sc.free)[:8]
            sc.free -= set(us)
            reduce_write(c, g, fin, acc6, us)
            dump6 = (us, n)
    pipe.drain()
    c.stamp(46)
    assert red6 is not None
    if fin["rel"] < len(steps) - 1:
        sc.release(dump6[0])
    us = sorted(sc.free)[:8]
    assert len(us) == 8
    reduce_write(c, g, fin, acc4, us)
    bar(c)
    c.stamp(47)
    z = reduce_read(c, g, fin, us)
    final_out(c, g, fin, red6, z)


def final_loads(c, g, fin):
    k, va = c.k, c.va
    x, x1, dk = va.get(4), va.get(4), va.get(4)
    ma = va.get(2)
    t, u, cq = va.get(), va.get(), va.get()
    vo = va.get()
    srd(k, sMI, P_DSK, 1024)
    k(f"""v_lshrrev_b32 v{t}, 3, v1                   ; row8
    v_and_b32 v{cq}, 7, v1
    v_lshlrev_b32 v{u}, 3, v{cq}
    buffer_load_dwordx2 {vr(dk,2)}, v{u}, s[{sMI}:{sMI+3}], s{sC128} offen
    buffer_load_dwordx2 {vr(dk+2,2)}, v{u}, s[{sMI}:{sMI+3}], s{sC128} offen offset:64
    v_lshl_add_u32 v{vo}, v{t}, 10, v{u}
    s_lshl_b32 s{sT}, s{sRH}, 6
    s_lshl_b32 s{sT+1}, s{sKH}, 5
    s_add_u32 s{sT}, s{sT}, s{sT+1}
    s_lshl_b32 s{sT+1}, s{sTQ}, 3
    s_add_u32 s{sT}, s{sT}, s{sT+1}
    s_add_u32 s{sT+1}, s{sT}, s{sT0}
    s_lshl_b32 s{sT+1}, s{sT+1}, 10
    s_add_u32 s{sHB}, s{sT+1}, s{sC128}
    buffer_load_dwordx2 {vr(x,2)}, v{vo}, s[{sX}:{sX+3}], s{sHB} offen
    buffer_load_dwordx2 {vr(x+2,2)}, v{vo}, s[{sX}:{sX+3}], s{sHB} offen offset:64
    s_lshl_b32 s{sT}, s{sT}, 3
    s_add_u32 s{sT}, s{sT}, {ST_C + 16}
    v_lshl_add_u32 v{u}, v{t}, 3, s{sT}
    ds_read_b64 {vr(ma,2)}, v{u}
    v_lshlrev_b32 v{t}, 4, v{t}
    v_and_b32 v{u}, 1, v{cq}
    v_lshl_add_u32 v{t}, v{u}, 9, v{t}
    v_bfe_u32 v{u}, v{cq}, 1, 1
    v_lshl_add_u32 v{t}, v{u}, 10, v{t}
    v_lshrrev_b32 v{u}, 2, v{cq}
    v_lshl_add_u32 v{t}, v{u}, 3, v{t}
    s_lshr_b32 s{sT}, s{sT0}, 5
    s_lshl_b32 s{sT+1}, s{sRH}, 1
    s_add_u32 s{sT}, s{sT}, s{sT+1}
    s_add_u32 s{sT}, s{sT}, s{sKH}
    s_lshl_b32 s{sT}, s{sT}, 15
    s_lshl_b32 s{sT+1}, s{sC}, 12
    s_add_u32 s{sT}, s{sT}, s{sT+1}
    s_lshl_b32 s{sT+1}, s{sTQ}, 7
    s_add_u32 s{sT}, s{sT}, s{sT+1}
    s_add_u32 s{sT}, s{sT}, {WS_X1}
    buffer_load_dwordx2 {vr(x1,2)}, v{t}, s[{sWS}:{sWS+3}], s{sT} offen sc1
    buffer_load_dwordx2 {vr(x1+2,2)}, v{t}, s[{sWS}:{sWS+3}], s{sT} offen offset:2048 sc1
    v_lshlrev_b32 v{vo}, 1, v{vo}
    s_lshl_b32 s{sHB}, s{sHB}, 1""")
    vw, vr0, vr1 = va.get(), va.get(), va.get()
    k(f"""v_and_b32 v{t}, 7, v1
    v_bfe_u32 v{u}, v1, 1, 1
    v_lshl_add_u32 v{t}, v{u}, 3, v{t}          ; swz(t)
    v_lshrrev_b32 v{u}, 5, v1
    v_xor_b32 v{t}, v{t}, v{u}
    v_lshlrev_b32 v{t}, 4, v{t}
    v_and_b32 v{u}, 31, v1
    v_lshl_add_u32 v{vw}, v{u}, 8, v{t}
    v_lshrrev_b32 v{t}, 3, v1                   ; row8
    v_bfe_u32 v{u}, v1, 4, 1
    v_lshl_add_u32 v{u}, v{u}, 3, v{t}          ; swz(row)
    v_xor_b32 v{u}, v{u}, v{cq}
    v_lshlrev_b32 v{u}, 4, v{u}
    v_lshl_add_u32 v{vr0}, v{t}, 8, v{u}
    s_lshl_b32 s{sT}, s{sTQ}, 11
    v_add_u32 v{vr0}, s{sT}, v{vr0}
    v_xor_b32 v{vr1}, 128, v{vr0}""")
    for r in (t, u, cq):
        va.put(r)
    fin.update(x=x, x1=x1, dk=dk, ma=ma, vo=vo, vw=vw, vr=(vr0, vr1))


def reduce_write(c, g, fin, acc, us):
    k, va = c.k, c.va
    b, t = va.get(), [va.get(), va.get()]
    sel(k, sT, sW, [U(x) for x in us])
    k(f"v_add_u32 v{b}, s{sT}, v{fin['vw']}")
    n = 0
    for a in range(2):
        for i in range(4):
            ad = b
            if a or i:
                ad = t[n & 1]
                k(f"v_xor_b32 v{ad}, {(8*a+2*i)*16}, v{b}")
            k(f"ds_write_b128 v{ad}, {vr(acc[a]+4*i,4)}")
            n += 1
    va.put(b); va.put(t[0]); va.put(t[1])
    fin["accfree"] = acc


def reduce_read(c, g, fin, us):
    k, va = c.k, c.va
    acc = fin["accfree"]
    t = [va.get(), va.get()]
    for kg in range(4):
        k(f"s_mov_b32 s{sT}, {U(us[2*kg+1])}\ns_cmp_eq_u32 s{sKH}, 0\ns_cselect_b32 s{sT}, {U(us[2*kg])}, s{sT}")
        for e in range(2):
            k(f"""v_add_u32 v{t[e]}, s{sT}, v{fin['vr'][e]}
            ds_read_b128 {vr(acc[e]+4*kg,4)}, v{t[e]}""")
    for e in range(2):
        for r in range(4):
            k(f"""v_add_f32 v{acc[e]+r}, v{acc[e]+r}, v{acc[e]+4+r}
            v_add_f32 v{acc[e]+8+r}, v{acc[e]+8+r}, v{acc[e]+12+r}""")
        for r in range(4):
            k(f"v_add_f32 v{acc[e]+r}, v{acc[e]+r}, v{acc[e]+8+r}")
    va.put(t[0]); va.put(t[1])
    return acc


def final_s(c, g, fin, s_):
    k, va = c.k, c.va
    xn = s_[0] + 4
    norm_pairs(c, xn, fin["x"], 4, fin["ma"])
    lo, hi, d0, d1 = s_[0] + 8, s_[0] + 9, s_[0] + 10, s_[0] + 11
    for i in range(4):
        s0 = s_[i >> 1] + 2 * (i & 1)
        k(f"""v_lshlrev_b32 v{lo}, 16, v{xn+i}
        v_and_b32 v{hi}, 0xffff0000, v{xn+i}
        v_lshlrev_b32 v{d0}, 16, v{fin['dk']+i}
        v_and_b32 v{d1}, 0xffff0000, v{fin['dk']+i}
        v_mul_f32 v{lo}, v{lo}, v{d0}
        v_mul_f32 v{hi}, v{hi}, v{d1}
        v_cvt_pk_bf16_f32 v{d0}, v{lo}, v{hi}
        v_lshlrev_b32 v{lo}, 16, v{d0}
        v_and_b32 v{hi}, 0xffff0000, v{d0}
        v_add_f32 v{s0}, v{s0}, v{lo}
        v_add_f32 v{s0+1}, v{s0+1}, v{hi}""")
    xs = [s_[i >> 2] + 4 + (i & 3) for i in range(8)]
    x1s = [s_[i >> 2] + 8 + (i & 3) for i in range(8)]
    for i in range(4):
        k(f"""v_lshlrev_b32 v{xs[2*i]}, 16, v{fin['x']+i}
        v_and_b32 v{xs[2*i+1]}, 0xffff0000, v{fin['x']+i}
        v_lshlrev_b32 v{x1s[2*i]}, 16, v{fin['x1']+i}
        v_and_b32 v{x1s[2*i+1]}, 0xffff0000, v{fin['x1']+i}""")
    fin.update(xs=xs, x1s=x1s)
    srd(k, sMI, P_OUT, 2048 * 2048)


def final_out(c, g, fin, s_, z_):
    k = c.k
    for e in range(2):
        z = [z_[e] + r for r in range(4)]
        ex = [z_[e] + 4 + r for r in range(4)]
        for r in range(4):
            k(f"v_add_f32 v{z[r]}, v{z[r]}, v{fin['x1s'][4*e+r]}")
        for r in range(4):
            k(f"v_mul_f32 v{ex[r]}, {fhex(-LOG2E)}, v{z[r]}")
        for r in range(4):
            k(f"v_exp_f32 v{ex[r]}, v{ex[r]}")
        for r in range(4):
            k(f"v_mul_f32 v{z[r]}, v{z[r]}, v{s_[e]+r}")
        for r in range(4):
            k(f"v_add_f32 v{ex[r]}, 1.0, v{ex[r]}")
        for r in range(4):
            k(f"v_rcp_f32 v{ex[r]}, v{ex[r]}")
        for r in range(4):
            k(f"v_fma_f32 v{ex[r]}, v{z[r]}, v{ex[r]}, v{fin['xs'][4*e+r]}")
        k(f"buffer_store_dwordx4 {vr(ex[0],4)}, v{fin['vo']}, s[{sMI}:{sMI+3}], s{sHB} offen offset:{128*e}")


def path(c, g, kind):
    k, va, o = c.k, c.va, c.opts
    stop = o.get("stop", 99)
    sc = Sched(c, g)
    after_bar = mid = None
    if kind == "M":
        after_bar, mid = p1_M(c, g)
    else:
        p1_S(c, g, kind == "S3")
    if stop < 2:
        if mid:
            mid()
        return
    f0_issue(c, g)
    todo, f1 = g2(c, g, kind, after_bar, mid, sc)
    f2 = None
    for f in todo:
        f()
    if kind == "M":
        f1()
        va.put(g.vscr)
        if stop >= 4:
            f1_issue(c, g)
    else:
        va.put(g.vscr)
        if stop < 3:
            f1()
            return
        scan2a(c, g)
        f1()
        bar(c)
        c.stamp(8)
        hooks = {}
        if kind == "S3" and stop >= 4:
            hooks[o.get("f1i", 9)] = lambda: f1_issue(c, g)
        scan2b(c, g, hooks)
        k(f"s_mov_b32 s{sHB}, s{sUB}")

        def f2():
            c.k.waitvm("hst")
            c.flag(g, sHB)
    if stop < 4:
        if f2:
            f2()
        return
    if kind != "S0":
        xf, f3b = g3(c, g, sc, f2)
        first_free = list(XR)
    else:
        f2()
        f3b = None
        if stop < 5:
            return
        g46_scalars(c)
        g.p2 = c.poll_issue(g, sA, 8)
        xf = va.get(64)
        c.poll_check(g, g.p2)
        for i in range(16):
            h_load(c, g, xf + 4 * i, i)
        first_free = [4, 5, 18]
    if stop < 5:
        f3b()
        return
    g64(c, g, sc, xf, f3b, first_free)
    if kind == "S3":
        lab = k.label("L_nn")
        k(f"""s_cmp_lg_u32 s2, 143
        s_cbranch_scc1 {lab}
        s_cmp_lg_u32 s{sW}, 0
        s_cbranch_scc1 {lab}""")
        k.region_begin()
        k(f"""s_mov_b32 s{sT}, {WS_NONCE}
        s_mov_b64 exec, 1
        buffer_store_dword v{g.vNON}, off, s[{sWS}:{sWS+3}], s{sT} sc1""")
        k.region_end()
        k(f"{lab}:")
    c.stamp(48)
```

```python
import sys, struct
sys.path.insert(0, "dev")
from ag import Prog, Ins

NAME = "recurrent_scan__ssm_conv_s5__mixer_s_mlp__prompt"
WS_HP = 0x000000
WS_X1 = 0x200000
WS_H = 0x400000
WS_U = 0x800000
WS_E = 0x1000000
WS_PS = 0x1040000
WS_RS = 0x10C0000
WS_FL = 0x1100000
WS_NONCE = 0x1200000
WS_STAMP = 0x1300000
LDS_BYTES = 163840
NU = 19
MISC = 155648
ST_A = MISC
ST_B = MISC + 1056
ST_C = MISC + 2112
CSB = MISC + 3168
CSP = CSB
MODE = MISC + 7264
CS3 = MISC + 7296
K1 = 2.0 * 0.7978845608028654 * 1.4426950408889634
K3 = K1 * 0.044715
EPS = 1e-5
SPIN = 20000
LOG2E = 1.4426950408889634

P_X, P_LRE, P_LIM, P_BRE, P_BIM, P_CRE, P_CIM, P_LDT = 4, 6, 8, 10, 12, 14, 16, 18
P_DSK, P_W1, P_W2, P_W3, P_W4, P_OUT, P_DBG, P_WS = 20, 24, 26, 28, 30, 32, 34, 36
sX, sWS, sWA, sWB, sWC, sWD, sMI = 40, 44, 48, 52, 56, 60, 64
(sG, sJ, sW, sT0, sNON, sRH, sC, sW1K, sI512, sK3, sONE, sC128, sMODE, sFL, sXCC, sTQ, sKH,
 sJ3B, sCrow, sHB, sUB, sA, sB, sD) = range(68, 92)
sT = 92


def U(i):
    return i * 8192


def fhex(x):
    return "0x%08x" % struct.unpack("<I", struct.pack("<f", x))[0]


def srd(k, s, p, nbytes):
    k(f"""s_mov_b32 s{s}, s{p}
    s_mov_b32 s{s+1}, s{p+1}
    s_mov_b32 s{s+2}, {nbytes}
    s_mov_b32 s{s+3}, 0x00020000""")


class VA:
    def __init__(self, lo=2, hi=256):
        self.free = list(range(lo, hi))
        self.peak = 0
        self.n0 = hi - lo
    def clone(self):
        v = VA(0, 0)
        v.free = list(self.free)
        v.n0 = self.n0
        return v
    def get(self, n=1, align=1):
        if n > 1 and align == 1:
            align = 4 if n >= 4 else 2
        fs = set(self.free)
        cand = self.free if n > 1 else self.free[::-1]
        for b in cand:
            if b % align == 0 and all((b + i) in fs for i in range(n)):
                for i in range(n):
                    self.free.remove(b + i)
                self.peak = max(self.peak, self.n0 - len(self.free))
                return b
        raise RuntimeError(f"out of VGPRs (n={n}, free={len(self.free)})")
    def put(self, b, n=1):
        for i in range(n):
            assert (b + i) not in self.free, b + i
            self.free.append(b + i)
        self.free.sort()


def vr(b, n):
    return f"v[{b}:{b+n-1}]" if n > 1 else f"v{b}"


class Pipe:
    def __init__(self):
        self.q = []
    def push(self, fn):
        self.q.append(fn)
    def drain(self, keep=0):
        while len(self.q) > keep:
            self.q.pop(0)()


class Ctx:
    def __init__(self, role, opts, va):
        self.k = Prog(role)
        self.role = role
        self.va = va
        self.hi = {}
        self.opts = opts
        self.nd = 0

    def ds(self, base, absoff):
        h = absoff >> 16
        imm = absoff & 0xFFFF
        if h == 0:
            r = base
        else:
            if (base, h) not in self.hi:
                r = self.va.get()
                self.k(f"v_add_u32 v{r}, {h << 16}, v{base}")
                self.hi[(base, h)] = r
            r = self.hi[(base, h)]
        return f"v{r}", (f" offset:{imm}" if imm else "")

    def pre_hi(self, base, hs=(1, 2)):
        for h in hs:
            self.ds(base, h << 16)

    def free_base(self, base):
        for key in [x for x in self.hi if x[0] == base]:
            self.va.put(self.hi.pop(key))
        self.va.put(base)

    def dsr(self, mn, dst, n, base, absoff, tag=None):
        r, o = self.ds(base, absoff)
        return self.k(f"{mn} {vr(dst, n)}, {r}{o}", tag=tag)

    def dsw(self, mn, base, absoff, src, n):
        r, o = self.ds(base, absoff)
        return self.k(f"{mn} {r}, {vr(src, n)}{o}")

    def dma(self, voff, srd_, soff, lds, inst=0, tag=None, sadd=None):
        k = self.k
        if lds < inst:
            assert sadd is None
            if soff == 0:
                k(f"s_mov_b32 s{sT+8}, {inst}")
            else:
                k(f"s_add_u32 s{sT+8}, {soff}, {inst}")
            soff = f"s{sT+8}"
            inst = 0
        imm = lds - inst
        k(f"s_add_u32 m0, s{sW1K}, {imm}")
        if sadd is not None:
            if sadd[1] == 0:
                soff = f"s{sadd[0]}"
            else:
                k(f"s_add_u32 s{sT+8}, s{sadd[0]}, {sadd[1]}")
                soff = f"s{sT+8}"
        o = f" offset:{inst}" if inst else ""
        k(f"buffer_load_dwordx4 v{voff}, s[{srd_}:{srd_+3}], {soff} offen{o} lds", tag=tag)

    def bf16r(self, d, s):
        self.k(f"v_cvt_pk_bf16_f32 v{d}, v{s}, v{s}\nv_and_b32 v{d}, 0xffff0000, v{d}")

    def store(self, text, dual, tag=None):
        if dual:
            ins = self.k(text, tag=tag)
            self.nd += 1
            ins.dual = (sMODE, f"L_du_{self.role}_{self.nd}")
        else:
            self.k(text + " sc1", tag=tag)

    def flag(self, g, soff):
        self.k("s_mov_b64 exec, 1")
        self.store(f"buffer_store_dword v{g.vNON}, off, s[{sWS}:{sWS+3}], s{soff}", not self.opts.get("nofast"))
        self.k("s_mov_b64 exec, -1")

    def poll_issue(self, g, soff, n):
        t = self.va.get()
        self.k(f"""s_mov_b64 exec, {hex((1 << n) - 1)}
        buffer_load_dword v{t}, v{g.vL4}, s[{sWS}:{sWS+3}], s{soff} offen sc1
        s_mov_b64 exec, -1""")
        return (t, soff, n)

    def poll_check(self, g, h):
        t, soff, n = h
        k = self.k
        loop, done = k.label("L_pl"), k.label("L_pd")
        k(f"""v_mov_b32 v{t}, v{t}
        s_mov_b32 s{sT+9}, {SPIN}
        s_mov_b64 exec, {hex((1 << n) - 1)}
        {loop}:
        v_cmp_ne_u32 vcc, s{sNON}, v{t}
        s_cbranch_vccz {done}""")
        k.region_begin()
        k(f"""buffer_load_dword v{t}, v{g.vL4}, s[{sWS}:{sWS+3}], s{soff} offen sc1
        s_waitcnt vmcnt(0)
        s_sub_u32 s{sT+9}, s{sT+9}, 1
        s_cmp_lg_u32 s{sT+9}, 0
        s_cbranch_scc1 {loop}""")
        k.region_end()
        k(f"""{done}:
        s_mov_b64 exec, -1""")
        self.va.put(t)

    def stamp(self, idx):
        if not self.opts.get("stamps"):
            return
        self.k(f"""s_memtime s[{sT+5}:{sT+6}]
        s_waitcnt lgkmcnt(0)
        v_writelane_b32 v255, s{sT+5}, {idx}""")

    def stamp_flush(self):
        if not self.opts.get("stamps"):
            return
        t = self.va.get()
        self.k(f"""s_mov_b64 exec, -1
        s_memrealtime s[{sT+5}:{sT+6}]
        s_waitcnt lgkmcnt(0)
        v_writelane_b32 v255, s{sT+5}, 62
        s_lshl_b32 s{sT+5}, s2, 3
        s_add_u32 s{sT+5}, s{sT+5}, s{sW}
        s_lshl_b32 s{sT+5}, s{sT+5}, 8
        s_add_u32 s{sT+5}, s{sT+5}, {WS_STAMP}
        v_lshlrev_b32 v{t}, 2, v1
        buffer_store_dword v255, v{t}, s[{sWS}:{sWS+3}], s{sT+5} offen""")
        self.va.put(t)


class G:
    pass


def splice(k, main, fill, per, start=0):
    fi = 0
    n = 0
    for it in main:
        k.items.append(it)
        if isinstance(it, Ins) and it.cls == "mfma":
            n += 1
            if n > start:
                cnt = 0
                while fi < len(fill) and cnt < per:
                    f = fill[fi]
                    k.items.append(f)
                    fi += 1
                    if isinstance(f, Ins):
                        cnt += 2 if f.cls == "trans" else 1
    k.items.extend(fill[fi:])


def capture(c, fn):
    old = c.k
    tmp = Prog(old.name)
    tmp._lab = old._lab + 1000
    tmp._rid = old._rid + 1000
    c.k = tmp
    fn()
    c.k = old
    old._lab = tmp._lab
    old._rid = tmp._rid
    return tmp.items


def prologue(c, g):
    k, va = c.k, c.va
    st = c.opts.get("stamps")
    k(f"""
    s_cmp_ge_u32 s2, 256
    s_cbranch_scc1 L_exit
    s_load_dwordx16 s[4:19], s[0:1], 0
    s_load_dwordx16 s[20:35], s[0:1], 64
    s_load_dwordx2 s[36:37], s[0:1], 128
    {"s_memrealtime s[98:99]" if st else ""}
    {"s_memtime s[100:101]" if st else ""}
    v_lshrrev_b32 v2, 6, v0
    v_and_b32 v1, 63, v0
    v_readfirstlane_b32 s{sW}, v2
    s_and_b32 s{sG}, s2, 7
    s_lshl_b32 s{sG}, s{sG}, 1
    s_lshr_b32 s{sT}, s2, 7
    s_add_u32 s{sG}, s{sG}, s{sT}
    s_lshr_b32 s{sJ}, s2, 3
    s_and_b32 s{sJ}, s{sJ}, 15
    s_lshl_b32 s{sT0}, s{sG}, 7
    s_and_b32 s{sRH}, s{sJ}, 1
    s_lshr_b32 s{sC}, s{sJ}, 1
    s_lshl_b32 s{sW1K}, s{sW}, 10
    s_lshr_b32 s{sTQ}, s{sW}, 1
    s_and_b32 s{sKH}, s{sW}, 1
    s_lshl_b32 s{sC128}, s{sC}, 7
    s_lshl_b32 s{sCrow}, s{sC}, 16
    """)
    g.vR1k, g.vK1k = va.get(), va.get()
    g.vnon = va.get()
    g.srow = va.get(4)
    g.r8, g.pos, g.row = va.get(), va.get(), va.get()
    t, u, f = [va.get() for _ in range(3)]
    k(f"""v_lshrrev_b32 v{g.r8}, 3, v1
    v_and_b32 v{g.pos}, 7, v1
    s_lshl_b32 s{sT+1}, s{sKH}, 2
    v_lshrrev_b32 v{u}, 1, v{g.r8}
    v_or_b32 v{f}, s{sT+1}, v{u}
    v_xor_b32 v{f}, v{f}, v{g.pos}
    v_lshlrev_b32 v{f}, 4, v{f}
    s_lshl_b32 s{sT+2}, s{sW}, 3
    v_add_u32 v{g.row}, s{sT+2}, v{g.r8}        ; 8w+r8
    v_lshl_add_u32 v{g.vR1k}, v{g.row}, 10, v{f}
    s_lshl_b32 s{sT}, s{sJ}, 3
    s_add_u32 s{sT}, s{sT}, s{sT0}
    s_add_u32 s{sA}, s{sT}, s{sW}
    s_lshl_b32 s{sT}, s{sA}, 10
    v_lshlrev_b32 v{t}, 4, v1
    s_mov_b32 s{sT+1}, {WS_NONCE}
    s_waitcnt lgkmcnt(0)
    """)
    srd(k, sX, P_X, 2048 * 1024)
    k(f"buffer_load_dwordx4 {vr(g.srow,4)}, v{t}, s[{sX}:{sX+3}], s{sT} offen")
    srd(k, sWS, P_WS, 0x10000000)
    k(f"buffer_load_dword v{g.vnon}, off, s[{sWS}:{sWS+3}], s{sT+1} sc1")
    if st:
        k("v_writelane_b32 v255, s98, 63\nv_writelane_b32 v255, s100, 61")
    for r in (t, u, f):
        va.put(r)
    k(f"""
    s_cmp_eq_u32 s{sRH}, 0
    s_cbranch_scc1 L_pathM
    s_cmp_ge_u32 s{sJ}, 13
    s_cbranch_scc1 L_pathS0
    """)


def late_consts(c, g):
    k, va = c.k, c.va
    u, f = va.get(), va.get()
    g.vL4, g.vL16, g.vNON = va.get(), va.get(), va.get()
    k(f"""s_mov_b32 s{sI512}, {fhex(1/512)}
    s_mov_b32 s{sK3}, {fhex(-K3)}
    s_mov_b32 s{sONE}, 0x3f803f80
    s_lshl_b32 s{sFL}, s{sG}, 12
    s_add_u32 s{sFL}, s{sFL}, {WS_FL}
    s_getreg_b32 s{sXCC}, hwreg(HW_REG_XCC_ID)
    s_and_b32 s{sXCC}, s{sXCC}, 7
    s_min_u32 s{sJ3B}, s{sJ}, 13
    s_lshl_b32 s{sJ3B}, s{sJ3B}, 8
    v_lshlrev_b32 v{g.vL4}, 2, v1
    v_lshlrev_b32 v{g.vL16}, 4, v1""")
    va.put(u); va.put(f)


def kn_voff(c, g, want35):
    k, va = c.k, c.va
    u, f = va.get(), va.get()
    k(f"""v_bfe_u32 v{u}, v{g.r8}, 1, 1
    v_lshlrev_b32 v{u}, 2, v{u}
    v_bfe_u32 v{f}, v{g.r8}, 2, 1
    v_lshl_add_u32 v{u}, v{f}, 1, v{u}
    v_xor_b32 v{u}, v{u}, v{g.pos}
    v_lshlrev_b32 v{u}, 4, v{u}
    v_lshl_add_u32 v{g.vK1k}, v{g.row}, 10, v{u}""")
    if want35:
        g.vK35 = va.get()
        k(f"""v_mul_u32_u24 v{f}, 3584, v{g.row}
        v_add_u32 v{g.vK35}, v{f}, v{u}""")
    va.put(u); va.put(f)


def warm_mall(c, g):
    if not c.opts.get("warm", 1):
        g.vwarm = None
        return
    k, va = c.k, c.va
    t = va.get()
    g.vwarm = va.get()
    lab = k.label("L_wm")
    k(f"""s_lshl_b32 s{sT}, s{sW}, 8
    s_add_u32 s{sT}, s{sT}, s2
    s_cmp_ge_u32 s{sT}, 640
    s_cbranch_scc1 {lab}""")
    k.region_begin()
    k(f"""s_mov_b32 s{sMI}, s{P_W2}
    s_mov_b32 s{sMI+1}, s{P_W2+1}
    s_mov_b32 s{sMI+2}, {512*1024}
    s_cmp_ge_u32 s{sT}, 64
    s_cselect_b32 s{sMI}, s{P_W3}, s{sMI}
    s_cselect_b32 s{sMI+1}, s{P_W3+1}, s{sMI+1}
    s_cselect_b32 s{sMI+2}, {512*3584}, s{sMI+2}
    s_cselect_b32 s{sT+2}, 64, 0
    s_cmp_ge_u32 s{sT}, 288
    s_cselect_b32 s{sMI}, s{P_CRE}, s{sMI}
    s_cselect_b32 s{sMI+1}, s{P_CRE+1}, s{sMI+1}
    s_cselect_b32 s{sMI+2}, {512*1024}, s{sMI+2}
    s_cselect_b32 s{sT+2}, 288, s{sT+2}
    s_cmp_ge_u32 s{sT}, 352
    s_cselect_b32 s{sMI}, s{P_CIM}, s{sMI}
    s_cselect_b32 s{sMI+1}, s{P_CIM+1}, s{sMI+1}
    s_cselect_b32 s{sT+2}, 352, s{sT+2}
    s_cmp_ge_u32 s{sT}, 416
    s_cselect_b32 s{sMI}, s{P_W4}, s{sMI}
    s_cselect_b32 s{sMI+1}, s{P_W4+1}, s{sMI+1}
    s_cselect_b32 s{sMI+2}, {512*3584}, s{sMI+2}
    s_cselect_b32 s{sT+2}, 416, s{sT+2}
    s_mov_b32 s{sMI+3}, 0x00020000
    s_sub_u32 s{sT}, s{sT}, s{sT+2}
    s_lshl_b32 s{sT}, s{sT}, 13
    v_lshlrev_b32 v{t}, 7, v1
    buffer_load_dword v{g.vwarm}, v{t}, s[{sMI}:{sMI+3}], s{sT} offen""")
    k.region_end()
    k(f"{lab}:")
    va.put(t)


def warm_done(c, g):
    if g.vwarm is not None:
        c.k(f"v_mov_b32 v{g.vwarm}, 0")
        c.va.put(g.vwarm)
        g.vwarm = None


def wave_sum(c, S, x):
    k = c.k
    for m in ("quad_perm:[1,0,3,2]", "quad_perm:[2,3,0,1]", "row_half_mirror", "row_mirror"):
        for s in S:
            k(f"v_add_f32_dpp v{s}, v{s}, v{s} {m} row_mask:0xf bank_mask:0xf")
    for sw in ("v_permlane16_swap_b32", "v_permlane32_swap_b32"):
        for s, xx in zip(S, x):
            k(f"v_mov_b32 v{xx}, v{s}")
        for s, xx in zip(S, x):
            k(f"{sw} v{s}, v{xx}")
        for s, xx in zip(S, x):
            k(f"v_add_f32 v{s}, v{s}, v{xx}")


def stat_publish(c, g):
    k, va = c.k, c.va
    S1, S2 = va.get(), va.get()
    t = va.get(8)
    mean, var, m1, d1, a1, m2, d2, x = range(t, t + 8)
    o = va.get(4)
    k(f"v_mov_b32 v{S1}, 0\nv_mov_b32 v{S2}, 0")
    for i in range(4):
        k(f"v_dot2c_f32_bf16 v{S1}, s{sONE}, v{g.srow+i}\nv_dot2c_f32_bf16 v{S2}, v{g.srow+i}, v{g.srow+i}")
    wave_sum(c, [S1, S2], [mean, var])
    k(f"""v_mul_f32 v{mean}, {fhex(1/512)}, v{S1}
    v_mul_f32 v{x}, v{mean}, v{mean}
    v_fma_f32 v{var}, v{S2}, s{sI512}, -v{x}
    v_max_f32 v{var}, 0, v{var}""")
    c.bf16r(m1, mean)
    c.bf16r(x, var)
    k(f"v_add_f32 v{x}, {fhex(EPS)}, v{x}")
    c.bf16r(x, x)
    k(f"v_sqrt_f32 v{x}, v{x}")
    c.bf16r(d1, x)
    k(f"""v_rcp_f32 v{a1}, v{d1}
    v_sub_f32 v{x}, v{mean}, v{m1}
    v_mul_f32 v{m2}, v{x}, v{a1}
    v_mul_f32 v{x}, v{var}, v{a1}
    v_mul_f32 v{x}, v{x}, v{a1}""")
    c.bf16r(x, x)
    k(f"v_add_f32 v{x}, {fhex(EPS)}, v{x}")
    c.bf16r(x, x)
    k(f"""v_sqrt_f32 v{d2}, v{x}
    v_cvt_pk_bf16_f32 v{o}, v{m1}, v{d1}
    v_cvt_pk_bf16_f32 v{o+2}, v{m2}, v{d2}
    v_readfirstlane_b32 s{sNON}, v{g.vnon}
    s_add_u32 s{sNON}, s{sNON}, 1
    s_lshl_b32 s{sT}, s{sXCC}, 29
    s_xor_b32 s{sT}, s{sT}, s{sNON}
    v_mov_b32 v{o+1}, s{sNON}
    v_mov_b32 v{o+3}, s{sT}
    v_mov_b32 v{g.vNON}, s{sNON}
    s_lshl_b32 s{sT}, s{sA}, 4
    s_add_u32 s{sT}, s{sT}, {WS_RS}
    s_mov_b64 exec, 1
    buffer_store_dwordx4 {vr(o,4)}, off, s[{sWS}:{sWS+3}], s{sT} sc1
    s_mov_b64 exec, -1""")
    va.put(S1); va.put(S2); va.put(t, 8); va.put(o, 4)
    va.put(g.srow, 4); va.put(g.vnon)


def stat_issue(c, g):
    k, va = c.k, c.va
    g.rs = va.get(4)
    g.vrs, g.vrho = va.get(), va.get()
    lab = k.label("L_si")
    k(f"s_cmp_lt_u32 s{sW}, 5\ns_cbranch_scc1 {lab}")
    k.region_begin("SC")
    t = va.get()
    k(f"""s_sub_u32 s{sT}, s{sW}, 5
    s_lshl_b32 s{sT}, s{sT}, 6
    v_add_u32 v{g.vrho}, s{sT}, v1
    v_min_u32 v{g.vrho}, 131, v{g.vrho}
    s_sub_u32 s{sT}, s{sT0}, 2
    v_add_u32 v{t}, s{sT}, v{g.vrho}
    v_max_i32 v{t}, 0, v{t}
    v_min_i32 v{t}, 2047, v{t}
    v_lshlrev_b32 v{g.vrs}, 4, v{t}
    s_mov_b32 s{sT}, {WS_RS}
    buffer_load_dwordx4 {vr(g.rs,4)}, v{g.vrs}, s[{sWS}:{sWS+3}], s{sT} offen sc1""")
    va.put(t)
    k.region_end()
    k(f"{lab}:")


def stat_consume(c, g):
    k, va = c.k, c.va
    rs = g.rs
    lab = k.label("L_sc")
    loop, done = k.label("L_sl"), k.label("L_sd")
    k(f"s_cmp_lt_u32 s{sW}, 5\ns_cbranch_scc1 {lab}")
    k.region_begin("SC")
    t = va.get(8)
    m1, d1, m2, d2, a1, a2, x, y = range(t, t + 8)
    vok = va.get()
    k(f"""v_mov_b32 v{x}, v{rs+1}
    s_mov_b32 s{sT+1}, {SPIN}
    s_mov_b32 s{sT}, {WS_RS}
    {loop}:
    v_xor_b32 v{x}, s{sNON}, v{rs+1}
    v_xor_b32 v{y}, s{sNON}, v{rs+3}
    v_lshlrev_b32 v{a1}, 3, v{y}
    v_or_b32 v{x}, v{x}, v{a1}
    v_cmp_ne_u32 vcc, 0, v{x}
    s_cbranch_vccz {done}""")
    k.region_begin("SC2")
    k(f"""buffer_load_dwordx4 {vr(rs,4)}, v{g.vrs}, s[{sWS}:{sWS+3}], s{sT} offen sc1
    s_waitcnt vmcnt(0)
    s_sub_u32 s{sT+1}, s{sT+1}, 1
    s_cmp_lg_u32 s{sT+1}, 0
    s_cbranch_scc1 {loop}""")
    k.region_begin("SC")
    o = [va.get(2) for _ in range(3)]
    k(f"""{done}:
    v_lshrrev_b32 v{y}, 29, v{y}
    v_subrev_u32 v{x}, 2, v{g.vrho}
    v_cmp_gt_u32 vcc, 128, v{x}
    v_cmp_ne_u32 s[{sT+2}:{sT+3}], s{sXCC}, v{y}
    s_and_b64 vcc, vcc, s[{sT+2}:{sT+3}]
    s_cselect_b32 s{sT+2}, 1, 0
    s_lshl_b32 s{sT+3}, s{sW}, 2
    s_add_u32 s{sT+3}, s{sT+3}, {MODE - 20}
    v_mov_b32 v{x}, s{sT+2}
    v_mov_b32 v{y}, s{sT+3}
    ds_write_b32 v{y}, v{x}
    s_sub_u32 s{sT}, s{sT0}, 2
    v_add_u32 v{x}, s{sT}, v{g.vrho}
    v_cmp_gt_u32 vcc, 2048, v{x}
    v_cndmask_b32 v{vok}, 0, 1.0, vcc
    v_lshlrev_b32 v{m1}, 16, v{rs}
    v_and_b32 v{d1}, 0xffff0000, v{rs}
    v_lshlrev_b32 v{m2}, 16, v{rs+2}
    v_and_b32 v{d2}, 0xffff0000, v{rs+2}
    v_rcp_f32 v{a1}, v{d1}
    v_rcp_f32 v{a2}, v{d2}
    v_mul_f32 v{m1}, v{m1}, v{vok}
    v_mul_f32 v{m2}, v{m2}, v{vok}
    v_mov_b32 v{o[0]}, v{a1}
    v_mul_f32 v{o[0]+1}, v{m1}, v{a1}
    v_mul_f32 v{o[1]}, v{a1}, v{a2}
    v_fma_f32 v{x}, v{m2}, v{d1}, v{m1}
    v_mul_f32 v{o[1]+1}, v{x}, v{o[1]}
    v_mov_b32 v{o[2]}, v{m1}
    v_mov_b32 v{o[2]+1}, v{a1}
    v_lshlrev_b32 v{y}, 3, v{g.vrho}
    v_add_u32 v{y}, {MISC}, v{y}""")
    for oo, st in zip(o, (ST_A, ST_B, ST_C)):
        k(f"ds_write_b64 v{y}, {vr(oo,2)} offset:{st - MISC}")
        va.put(oo, 2)
    va.put(t, 8); va.put(vok)
    k.region_end()
    k(f"{lab}:")
    va.put(rs, 4); va.put(g.vrs); va.put(g.vrho)


def mode_read(c, g):
    k, va = c.k, c.va
    t = va.get(4)
    a = va.get()
    k(f"""v_mov_b32 v{a}, {MODE}
    ds_read_b96 {vr(t,3)}, v{a}
    v_or3_b32 v{t}, v{t}, v{t+1}, v{t+2}
    v_readfirstlane_b32 s{sMODE}, v{t}""")
    va.put(t, 4); va.put(a)


def gelu_many(c, xs):
    k, va = c.k, c.va
    ts = [va.get() for _ in xs]
    kk = va.get()
    k(f"v_mov_b32 v{kk}, {fhex(-K1)}")
    for x, t in zip(xs, ts):
        k(f"v_mul_f32 v{t}, v{x}, v{x}")
    for x, t in zip(xs, ts):
        k(f"v_fma_f32 v{t}, v{t}, s{sK3}, v{kk}")
    for x, t in zip(xs, ts):
        k(f"v_mul_f32 v{t}, v{t}, v{x}")
    for x, t in zip(xs, ts):
        k(f"v_exp_f32 v{t}, v{t}")
    for x, t in zip(xs, ts):
        k(f"v_add_f32 v{t}, 1.0, v{t}")
    for x, t in zip(xs, ts):
        k(f"v_rcp_f32 v{t}, v{t}")
    for x, t in zip(xs, ts):
        k(f"v_mul_f32 v{x}, v{x}, v{t}")
    for t in ts:
        va.put(t)
    va.put(kk)


def cmad(k, dr, di, ar, ai, br, bi, cr, ci):
    assert dr not in (br, bi) and di not in (br, bi)
    k(f"""v_fma_f32 v{dr}, v{ar}, v{br}, v{cr}
    v_fma_f32 v{di}, v{ar}, v{bi}, v{ci}
    v_fma_f32 v{dr}, -v{ai}, v{bi}, v{dr}
    v_fma_f32 v{di}, v{ai}, v{br}, v{di}""")


def cmul(k, dr, di, ar, ai, br, bi):
    assert dr not in (ar, ai, br, bi) and di not in (ar, ai, br, bi)
    k(f"""v_mul_f32 v{dr}, v{ar}, v{br}
    v_mul_f32 v{di}, v{ar}, v{bi}
    v_fma_f32 v{dr}, -v{ai}, v{bi}, v{dr}
    v_fma_f32 v{di}, v{ai}, v{br}, v{di}""")


def csq(k, dr, di, r, i):
    k(f"""v_mul_f32 v{dr}, v{i}, v{i}
    v_mul_f32 v{di}, v{r}, v{i}
    v_fma_f32 v{dr}, v{r}, v{r}, -v{dr}
    v_add_f32 v{di}, v{di}, v{di}""")


def mf16(k, d, a, b, z):
    k(f"v_mfma_f32_16x16x32_bf16 {vr(d,4)}, {vr(a,4)}, {vr(b,4)}, {'0' if z else vr(d,4)}")


def mf32(k, d, a, b, z):
    k(f"v_mfma_f32_32x32x16_bf16 {vr(d,16)}, {vr(a,4)}, {vr(b,4)}, {'0' if z else vr(d,16)}")


def bar(c, lg=True):
    if lg:
        c.k("s_waitcnt lgkmcnt(0)")
    c.k("s_barrier")


def w2_dma(c, g, i):
    c.dma(g.vK1k, sWB, None, U(6 + i), sadd=(sC128, i * 65536), tag=f"w2_{i}")


W3H0 = [14, 15, 16, 17, 0, 1, 2, 3]


def w3_dma(c, g, ph, i):
    u = W3H0[i] if ph == 0 else 6 + i
    c.dma(g.vK35, sWA, None, U(u), sadd=(sJ3B, i * 64 * 3584 + 128 * ph), tag=f"w3_{ph}_{i}")


def xq_load(c, g):
    k, va = c.k, c.va
    g.xq = va.get(4)
    t, u = va.get(), va.get()
    k(f"""v_and_b32 v{t}, 15, v1
    v_lshrrev_b32 v{u}, 4, v1
    v_lshlrev_b32 v{u}, 3, v{u}
    v_lshl_add_u32 v{t}, v{t}, 10, v{u}
    s_lshl_b32 s{sT}, s{sRH}, 6
    s_add_u32 s{sT}, s{sT}, s{sT0}
    s_lshl_b32 s{sT+1}, s{sTQ}, 4
    s_add_u32 s{sT}, s{sT}, s{sT+1}
    s_lshl_b32 s{sT}, s{sT}, 10
    s_add_u32 s{sT}, s{sT}, s{sC128}
    s_lshl_b32 s{sT+1}, s{sKH}, 6
    s_add_u32 s{sT}, s{sT}, s{sT+1}
    buffer_load_dwordx2 {vr(g.xq,2)}, v{t}, s[{sX}:{sX+3}], s{sT} offen
    buffer_load_dwordx2 {vr(g.xq+2,2)}, v{t}, s[{sX}:{sX+3}], s{sT} offen offset:32""")
    va.put(t); va.put(u)


def norm_pairs(c, dst, src, n, ma):
    k, va = c.k, c.va
    lo, hi = va.get(), va.get()
    for i in range(n):
        k(f"""v_lshlrev_b32 v{lo}, 16, v{src+i}
        v_and_b32 v{hi}, 0xffff0000, v{src+i}
        v_sub_f32 v{lo}, v{lo}, v{ma}
        v_sub_f32 v{hi}, v{hi}, v{ma}
        v_cvt_pk_bf16_f32 v{dst+i}, v{lo}, v{hi}
        v_lshlrev_b32 v{lo}, 16, v{dst+i}
        v_and_b32 v{hi}, 0xffff0000, v{dst+i}
        v_mul_f32 v{lo}, v{lo}, v{ma+1}
        v_mul_f32 v{hi}, v{hi}, v{ma+1}
        v_cvt_pk_bf16_f32 v{dst+i}, v{lo}, v{hi}""")
    va.put(lo); va.put(hi)


def xn_prep(c, g):
    k, va = c.k, c.va
    ma = va.get(2)
    t = va.get()
    k(f"""s_lshl_b32 s{sT}, s{sRH}, 6
    s_lshl_b32 s{sT+1}, s{sTQ}, 4
    s_add_u32 s{sT}, s{sT}, s{sT+1}
    s_lshl_b32 s{sT}, s{sT}, 3
    s_add_u32 s{sT}, s{sT}, {ST_C + 16}
    v_and_b32 v{t}, 15, v1
    v_lshl_add_u32 v{t}, v{t}, 3, s{sT}
    ds_read_b64 {vr(ma,2)}, v{t}""")
    norm_pairs(c, g.xq, g.xq, 4, ma)
    va.put(ma, 2); va.put(t)


def p1_M(c, g):
    k, va, o = c.k, c.va, c.opts
    UA = [(14, 15), (16, 17), (0, 1), (6, 7), (8, 9), (10, 11), (12, 13), (2, 3)]
    UB = [4, 5, 18, 14, 15, 16, 17, 0]
    vX0, vX1, vW1 = va.get(), va.get(), va.get()
    t, u, q = va.get(), va.get(), va.get()
    srd(k, sWA, P_W1, 512 * 1024)
    k(f"""s_lshr_b32 s{sT}, s{sC}, 2
    s_add_u32 s{sT}, s{sT}, 1
    s_sub_u32 s{sT+1}, 0, s{sT}
    s_bitcmp1_b32 s{sC}, 1
    s_cselect_b32 s{sB}, s{sT}, s{sT+1}         ; off
    s_add_u32 s{sT}, s{sT0}, s{sB}
    s_lshl_b32 s{sT}, s{sT}, 10
    v_add_u32 v{vX0}, s{sT}, v{g.vR1k}
    v_bfe_u32 v{u}, v{g.r8}, 1, 1
    s_lshl_b32 s{sT+1}, s{sKH}, 1
    v_or_b32 v{u}, s{sT+1}, v{u}
    v_lshlrev_b32 v{u}, 1, v{u}
    v_xor_b32 v{u}, v{u}, v{g.pos}
    v_lshlrev_b32 v{u}, 4, v{u}
    v_lshl_add_u32 v{vW1}, v{g.row}, 10, v{u}
    v_add_u32 v{vX1}, 0x10000, v{vX0}""")

    def issue_a(s):
        c.dma(vX0, sX, 0, U(UA[s][0]), inst=s * 128)
        c.dma(vW1, sWA, None, U(UA[s][1]), sadd=(sC128, s * 65536), tag=f"a{s}")

    def issue_b(s):
        c.dma(vX1, sX, 0, U(UB[s]), inst=s * 128, tag=f"b{s}")
    n0 = o.get("n0", 4)
    for s in range(n0):
        issue_a(s)
    warm_mall(c, g)
    late_consts(c, g)
    c.stamp(0)
    stat_publish(c, g)
    for s in range(n0, 8):
        issue_a(s)
    for s in range(3):
        issue_b(s)
    kn_voff(c, g, True)
    srd(k, sWB, P_W2, 512 * 1024)
    xq_load(c, g)
    stat_issue(c, g)
    for r in (g.r8, g.pos, g.row):
        va.put(r)
    aW = [va.get(), va.get()]
    aX = [va.get(), va.get()]
    vst = va.get()
    k(f"""v_lshrrev_b32 v{q}, 4, v1                   ; gq
    v_bfe_u32 v{t}, v1, 2, 2                    ; r'
    v_lshl_add_u32 v{u}, v{q}, 3, v{t}          ; 8gq+r'
    v_lshlrev_b32 v{aW[0]}, 7, v{u}
    v_lshrrev_b32 v{t}, 1, v{t}
    v_and_b32 v{u}, 1, v{q}
    v_lshl_add_u32 v{t}, v{u}, 1, v{t}
    v_lshlrev_b32 v{t}, 1, v{t}
    v_bfe_u32 v{u}, v1, 1, 1
    s_lshl_b32 s{sT}, s{sKH}, 2
    v_add_u32 v{u}, s{sT}, v{u}
    v_xor_b32 v{u}, v{u}, v{t}
    v_lshl_add_u32 v{aW[0]}, v{u}, 4, v{aW[0]}
    v_and_b32 v{u}, 1, v1
    v_lshl_add_u32 v{aW[0]}, v{u}, 3, v{aW[0]}
    v_xor_b32 v{aW[1]}, 32, v{aW[0]}
    v_and_b32 v{t}, 15, v1
    s_lshl_b32 s{sT}, s{sTQ}, 4
    v_add_u32 v{t}, s{sT}, v{t}
    v_bfe_u32 v{u}, v{t}, 1, 3
    v_xor_b32 v{u}, v{u}, v{q}
    v_lshlrev_b32 v{u}, 4, v{u}
    v_lshl_add_u32 v{aX[0]}, v{t}, 7, v{u}
    v_xor_b32 v{aX[1]}, 64, v{aX[0]}
    s_add_u32 s{sT}, s{sB}, 2
    s_lshl_b32 s{sT}, s{sT}, 3
    s_add_u32 s{sT}, s{sT}, {ST_B}
    v_lshl_add_u32 v{vst}, v{t}, 3, s{sT}
    s_lshr_b32 s{sT}, s{sT0}, 4
    s_add_u32 s{sT}, s{sT}, s{sTQ}
    s_lshl_b32 s{sT}, s{sT}, 4
    s_lshl_b32 s{sT+1}, s{sC}, 1
    s_add_u32 s{sT+1}, s{sT+1}, s{sKH}          ; kb
    s_add_u32 s{sT}, s{sT}, s{sT+1}
    s_lshl_b32 s{sHB}, s{sT}, 10
    s_lshl_b32 s{sT}, s{sTQ}, 4
    s_add_u32 s{sT}, s{sT}, s{sT+1}
    s_lshl_b32 s{sT}, s{sT}, 2
    s_add_u32 s{sUB}, s{sT}, s{sFL}""")
    for a in aW + aX:
        c.pre_hi(a)
    for r in (t, u, q):
        va.put(r)
    wf = va.get(128)
    acc = [va.get(4), va.get(4)]
    cs = [va.get(4), va.get(4)]
    ones = va.get(4)
    for i in range(4):
        k(f"v_mov_b32 v{ones+i}, s{sONE}")
    NB = 3
    fb = [va.get(4) for _ in range(NB)]
    pipe = Pipe()
    for s in range(8):
        c.stamp(16 + s)
        k.waitvm(f"a{s}")
        bar(c)
        todo = {1: [("b", 3), ("b", 4)], 2: [("b", 5), ("b", 6)], 3: [("b", 7), ("w3", 5)],
                4: [("w2", 0), ("w2", 1)], 5: [("w2", 2), ("w2", 3)], 6: [("w2", 4), ("w2", 5)], 7: [("w2", 6), ("w2", 7)]}.get(s, [])
        if s == 3:
            pass
        for ks in range(2):
            i = 2 * s + ks
            for a in range(2):
                for uu in range(2):
                    c.dsr("ds_read_b64_tr_b16", wf + 8 * i + 4 * a + 2 * uu, 2, aW[a], U(UA[s][1]) + (32 * ks + 4 * uu) * 128)
            c.dsr("ds_read_b128", fb[i % NB], 4, aX[ks], U(UA[s][0]))

            def mf(i=i):
                for a in range(2):
                    mf16(k, acc[a], wf + 8 * i + 4 * a, fb[i % NB], i == 0)
                for a in range(2):
                    mf16(k, cs[a], wf + 8 * i + 4 * a, ones, i == 0)
            pipe.push(mf)
            if todo:
                kind, idx = todo.pop(0)
                if kind == "b":
                    issue_b(idx)
                elif kind == "w2":
                    w2_dma(c, g, idx)
                else:
                    srd(k, sWA, P_W3, 512 * 3584)
                    w3_dma(c, g, 0, idx)
            pipe.drain(1)
        if s == 6:
            stat_consume(c, g)
    pipe.drain()
    for a in aW:
        c.free_base(a)
    va.put(ones, 4); va.put(vX0); va.put(vX1); va.put(vW1)
    c.stamp(1)
    mode_read(c, g)

    def epi(half):
        ab = va.get(2)
        t = va.get()
        k(f"ds_read_b64 {vr(ab,2)}, v{vst} offset:{half*512}")
        for a in range(2):
            for r in range(4):
                k(f"""v_mul_f32 v{t}, v{ab+1}, v{cs[a]+r}
                v_fma_f32 v{acc[a]+r}, v{ab}, v{acc[a]+r}, -v{t}""")
        va.put(t); va.put(ab, 2)
        gelu_many(c, [acc[a] + r for a in range(2) for r in range(4)])
        P = va.get(4)
        for a in range(2):
            for i in range(2):
                k(f"v_cvt_pk_bf16_f32 v{P+2*a+i}, v{acc[a]+2*i}, v{acc[a]+2*i+1}")
        if half:
            k(f"s_add_u32 s{sHB}, s{sHB}, 65536")
        c.store(f"buffer_store_dwordx4 {vr(P,4)}, v{g.vL16}, s[{sWS}:{sWS+3}], s{sHB} offen", o.get("phx"), tag=f"hp{half}")
        va.put(P, 4)
    epi(0)
    c.stamp(2)
    k.waitvm("b4")
    bar(c)
    w3_dma(c, g, 0, 6)
    w3_dma(c, g, 0, 7)
    for s in range(8):
        if s == 5:
            k.waitvm("b7")
            bar(c)
            w3_dma(c, g, 0, 0)
            w3_dma(c, g, 0, 1)
        for ks in range(2):
            i = 2 * s + ks
            c.dsr("ds_read_b128", fb[i % NB], 4, aX[ks], U(UB[s]))

            def mf(i=i):
                for a in range(2):
                    mf16(k, acc[a], wf + 8 * i + 4 * a, fb[i % NB], i == 0)
            pipe.push(mf)
            pipe.drain(2 if s not in (4,) or ks == 0 else 2)
        if s == o.get("f0a", 2):
            k.waitvm("hp0")
            c.flag(g, sUB)
    pipe.drain()
    for a in aX:
        c.free_base(a)
    va.put(wf, 128)
    for f in fb:
        va.put(f, 4)
    c.stamp(3)
    epi(1)
    va.put(vst)
    for a in range(2):
        va.put(acc[a], 4); va.put(cs[a], 4)
    warm_done(c, g)

    def after_bar():
        for i in (2, 3, 4):
            w3_dma(c, g, 0, i)

    def mid():
        k.waitvm("hp1")
        k(f"s_add_u32 s{sUB}, s{sUB}, 256")
        c.flag(g, sUB)
    return after_bar, mid


def p1_S(c, g, full):
    k, va, o = c.k, c.va, c.opts
    SL = [(9, 10, 11, 12), (13, 14, 15, 16), (17, 18, 0, 1), (2, 3, 4, 5)]
    vX0, vX1 = va.get(), va.get()
    srd(k, sWA, P_BRE, 512 * 1024)
    srd(k, sWC, P_BIM, 512 * 1024)
    k(f"""s_lshl_b32 s{sT}, s{sT0}, 10
    v_add_u32 v{vX0}, s{sT}, v{g.vR1k}
    v_add_u32 v{vX1}, 0x10000, v{vX0}""")

    def issue(s):
        sl = SL[s % 4]
        return [lambda: c.dma(vX0, sX, 0, U(sl[0]), inst=s * 128),
                lambda: c.dma(vX1, sX, 0, U(sl[1]), inst=s * 128),
                lambda: c.dma(g.vR1k, sWA, f"s{sCrow}", U(sl[2]), inst=s * 128),
                lambda: c.dma(g.vR1k, sWC, f"s{sCrow}", U(sl[3]), inst=s * 128, tag=f"a{s}")]
    n0 = o.get("n0s", 2)
    for s in range(n0):
        for f in issue(s):
            f()
    i32, hf, t, u = va.get(), va.get(), va.get(), va.get()
    lre, lim, ldt = va.get(), va.get(), va.get()
    k(f"""v_and_b32 v{i32}, 31, v1
    v_lshrrev_b32 v{hf}, 5, v1
    s_lshl_b32 s{sT}, s{sKH}, 6
    s_add_u32 s{sT}, s{sT}, s{sC128}
    v_lshlrev_b32 v{t}, 1, v{i32}""")
    for p, d in ((P_LRE, lre), (P_LIM, lim), (P_LDT, ldt)):
        srd(k, sMI, p, 1024)
        k(f"buffer_load_ushort v{d}, v{t}, s[{sMI}:{sMI+3}], s{sT} offen")
    warm_mall(c, g)
    late_consts(c, g)
    c.stamp(0)
    stat_publish(c, g)
    for s in range(n0, 4):
        for f in issue(s):
            f()
    kn_voff(c, g, full)
    srd(k, sWB, P_W2, 512 * 1024)
    for i in range(3):
        w2_dma(c, g, i)
    xq_load(c, g)
    stat_issue(c, g)
    for r in (g.r8, g.pos, g.row):
        va.put(r)
    aA = [va.get() for _ in range(4)]
    aB = [va.get() for _ in range(4)]
    k(f"""v_lshrrev_b32 v{t}, 2, v{i32}
    v_and_b32 v{t}, 1, v{t}
    v_lshlrev_b32 v{t}, 4, v{t}
    v_lshrrev_b32 v{u}, 3, v{i32}
    v_lshl_add_u32 v{t}, v{u}, 2, v{t}
    v_and_b32 v{u}, 3, v{i32}
    v_add_u32 v{t}, v{t}, v{u}               ; tau
    v_bfe_u32 v{u}, v{t}, 1, 3
    v_xor_b32 v{u}, v{u}, v{hf}
    v_lshlrev_b32 v{u}, 4, v{u}
    v_lshl_add_u32 v{aA[0]}, v{t}, 7, v{u}
    s_lshl_b32 s{sT}, s{sTQ}, 12
    v_add_u32 v{aA[0]}, s{sT}, v{aA[0]}
    v_bfe_u32 v{u}, v{i32}, 1, 3
    v_xor_b32 v{u}, v{u}, v{hf}
    v_lshlrev_b32 v{u}, 4, v{u}
    v_lshl_add_u32 v{aB[0]}, v{i32}, 7, v{u}
    s_lshl_b32 s{sT}, s{sKH}, 12
    v_add_u32 v{aB[0]}, s{sT}, v{aB[0]}
    s_lshl_b32 s{sT}, s{sTQ}, 5
    v_xor_b32 v{aA[0]}, s{sT}, v{aA[0]}
    v_xor_b32 v{aB[0]}, s{sT}, v{aB[0]}""")
    for i in range(1, 4):
        k(f"v_xor_b32 v{aA[i]}, {i*32}, v{aA[0]}\nv_xor_b32 v{aB[i]}, {i*32}, v{aB[0]}")
    for a in aA:
        c.pre_hi(a, (1, 2))
    for a in aB:
        c.pre_hi(a, (1, 2))
    accr, acci = va.get(16), va.get(16)
    csr, csi = va.get(), va.get()
    k(f"v_mov_b32 v{csr}, 0\nv_mov_b32 v{csi}, 0")
    NB = 3
    fa = [va.get(4) for _ in range(NB)]
    fr = [va.get(4) for _ in range(NB)]
    fi = [va.get(4) for _ in range(NB)]
    lr, li, kr, ki = [va.get() for _ in range(4)]
    pw = [va.get(2), va.get(2)]
    l16, l128, fs, fe = [va.get(2) for _ in range(4)]
    dt, e, x2 = va.get(), va.get(), va.get()

    def params():
        k = c.k
        k(f"""v_lshlrev_b32 v{lre}, 16, v{lre}
        v_lshlrev_b32 v{lim}, 16, v{lim}
        v_lshlrev_b32 v{ldt}, 16, v{ldt}
        v_mul_f32 v{dt}, {fhex(LOG2E)}, v{ldt}
        v_exp_f32 v{dt}, v{dt}""")
        c.bf16r(dt, dt)
        k(f"""v_mul_f32 v{e}, v{dt}, v{lre}
        v_mul_f32 v{e}, {fhex(LOG2E)}, v{e}
        v_exp_f32 v{e}, v{e}
        v_mul_f32 v{x2}, v{dt}, v{lim}
        v_mul_f32 v{x2}, {fhex(0.15915494309189535)}, v{x2}
        v_cos_f32 v{lr}, v{x2}
        v_sin_f32 v{li}, v{x2}
        v_mul_f32 v{lr}, v{lr}, v{e}
        v_mul_f32 v{li}, v{li}, v{e}
        v_mul_f32 v{e}, v{lre}, v{lre}
        v_fma_f32 v{e}, v{lim}, v{lim}, v{e}
        v_rcp_f32 v{e}, v{e}
        v_add_f32 v{x2}, -1.0, v{lr}
        v_mul_f32 v{kr}, v{x2}, v{lre}
        v_fma_f32 v{kr}, v{li}, v{lim}, v{kr}
        v_mul_f32 v{ki}, v{li}, v{lre}
        v_fma_f32 v{ki}, -v{x2}, v{lim}, v{ki}
        v_add_f32 v{e}, v{e}, v{e}
        v_mul_f32 v{kr}, v{kr}, v{e}
        v_mul_f32 v{ki}, v{ki}, v{e}""")
        csq(k, pw[0], pw[0] + 1, lr, li)
        csq(k, pw[1], pw[1] + 1, pw[0], pw[0] + 1)
        csq(k, pw[0], pw[0] + 1, pw[1], pw[1] + 1)
        csq(k, l16, l16 + 1, pw[0], pw[0] + 1)

        def factor(dst, base):
            k(f"""v_cmp_eq_u32 vcc, 1, v{hf}
            v_cndmask_b32 v{dst}, 1.0, v{base}, vcc
            v_cndmask_b32 v{dst+1}, 0, v{base+1}, vcc""")
            cur = base
            for b in range(2):
                nx = pw[b]
                csq(k, nx, nx + 1, cur, cur + 1)
                cmul(k, e, x2, dst, dst + 1, nx, nx + 1)
                k(f"""s_bitcmp1_b32 s{sTQ}, {b}
                s_cselect_b64 vcc, -1, 0
                v_cndmask_b32 v{dst}, v{dst}, v{e}, vcc
                v_cndmask_b32 v{dst+1}, v{dst+1}, v{x2}, vcc""")
                cur = nx
            return cur
        p4 = factor(fs, l16)
        csq(k, l128, l128 + 1, p4, p4 + 1)
        csq(k, l256, l256 + 1, l128, l128 + 1)
        factor(fe, l256)
    l256 = va.get(2)
    params()
    for r in (lre, lim, ldt, dt, e, x2):
        va.put(r)
    va.put(l256, 2); va.put(pw[0], 2); va.put(pw[1], 2)
    pipe = Pipe()
    npre = o.get("s3pre", 2)
    g.w3rest = list(range(npre, 8))
    for s in range(8):
        c.stamp(16 + s)
        k.waitvm(f"a{s}")
        bar(c)
        todo = []
        if 1 <= s <= 4:
            todo = issue(s + 3)
        elif s == 5:
            todo = [lambda i=i: w2_dma(c, g, i) for i in (3, 4, 5, 6)]
        elif s == 6:
            todo = [lambda: w2_dma(c, g, 7)]
            if full:
                srd(k, sWA, P_W3, 512 * 3584)
                todo += [lambda i=i: w3_dma(c, g, 0, i) for i in (0, 1, 2) if i < npre]
        elif s == 7 and full:
            todo = [lambda i=i: w3_dma(c, g, 0, i) for i in (3, 4, 5) if i < npre]
        sl = SL[s % 4]
        assert sl[1] == sl[0] + 1
        for i in range(4):
            n = 4 * s + i
            b = n % NB
            c.dsr("ds_read_b128", fa[b], 4, aA[i], U(sl[0]))
            c.dsr("ds_read_b128", fr[b], 4, aB[i], U(sl[2]))
            c.dsr("ds_read_b128", fi[b], 4, aB[i], U(sl[3]))

            def mf(n=n, b=b, i=i):
                mf32(k, accr, fa[b], fr[b], n == 0)
                if i == 0:
                    for r in range(4):
                        k(f"v_dot2c_f32_bf16 v{csr}, s{sONE}, v{fr[b]+r}")
                mf32(k, acci, fa[b], fi[b], n == 0)
                if i == 0:
                    for r in range(4):
                        k(f"v_dot2c_f32_bf16 v{csi}, s{sONE}, v{fi[b]+r}")
            pipe.push(mf)
            pipe.drain(1)
            if todo:
                todo.pop(0)()
        if s == 6:
            stat_consume(c, g)
    pipe.drain()
    for a in aA + aB:
        c.free_base(a)
    for f in fa + fr + fi:
        va.put(f, 4)
    va.put(vX0); va.put(vX1)
    c.stamp(1)
    k(f"""v_permlane32_swap_b32 v{csr}, v{csi}
    v_add_f32 v{csr}, v{csr}, v{csi}
    s_lshl_b32 s{sT}, s{sKH}, 10
    s_add_u32 s{sT}, s{sT}, {CSB}
    v_lshl_add_u32 v{t}, v{i32}, 5, s{sT}
    v_lshl_add_u32 v{u}, v{hf}, 2, v{t}
    s_lshl_b32 s{sT}, s{sTQ}, 3
    v_add_u32 v{u}, s{sT}, v{u}
    ds_write_b32 v{u}, v{csr}""")
    st = va.get(32)
    k(f"""s_lshl_b32 s{sT}, s{sTQ}, 8
    s_add_u32 s{sT}, s{sT}, {ST_A + 16}
    v_lshl_add_u32 v{u}, v{hf}, 7, s{sT}""")
    for i in range(8):
        k(f"ds_read_b128 {vr(st+4*i,4)}, v{u} offset:{16*i}")
    mode_read(c, g)
    warm_done(c, g)
    t1, t2 = va.get(), va.get()
    for r in range(16):
        k(f"""v_mul_f32 v{t1}, v{kr}, v{accr+r}
        v_mul_f32 v{t2}, v{kr}, v{acci+r}
        v_fma_f32 v{t1}, -v{ki}, v{acci+r}, v{t1}
        v_fma_f32 v{acci+r}, v{ki}, v{accr+r}, v{t2}
        v_mul_f32 v{accr+r}, v{st+2*r}, v{t1}
        v_mul_f32 v{acci+r}, v{st+2*r}, v{acci+r}""")
    bar(c)
    cs = va.get(8)
    k(f"""ds_read_b128 {vr(cs,4)}, v{t}
    ds_read_b128 {vr(cs+4,4)}, v{t} offset:16
    v_add_f32 v{csr}, v{cs}, v{cs+2}
    v_add_f32 v{csi}, v{cs+1}, v{cs+3}
    v_add_f32 v{cs+4}, v{cs+4}, v{cs+6}
    v_add_f32 v{cs+5}, v{cs+5}, v{cs+7}
    v_add_f32 v{csr}, v{csr}, v{cs+4}
    v_add_f32 v{csi}, v{csi}, v{cs+5}""")
    cmul(k, cs, cs + 1, kr, ki, csr, csi)
    for r in range(16):
        k(f"""v_fma_f32 v{accr+r}, -v{st+2*r+1}, v{cs}, v{accr+r}
        v_fma_f32 v{acci+r}, -v{st+2*r+1}, v{cs+1}, v{acci+r}""")
    va.put(cs, 8); va.put(st, 32)
    for r in (csr, csi, t1, t2, kr, ki):
        va.put(r)
    h = [va.get(2), va.get(2)]
    cur = (accr, acci)
    for r in range(1, 16):
        d = h[r & 1]
        cmad(k, d, d + 1, lr, li, cur[0], cur[1], accr + r, acci + r)
        cur = (d, d + 1)
    SEG = U(18)
    k(f"""s_lshl_b32 s{sT}, s{sKH}, 8
    s_add_u32 s{sT}, s{sT}, {SEG}
    v_lshl_add_u32 v{t}, v{i32}, 3, s{sT}       ; SEG + p*8
    v_lshl_add_u32 v{u}, v{hf}, 9, v{t}
    s_lshl_b32 s{sT}, s{sTQ}, 10
    v_add_u32 v{u}, s{sT}, v{u}
    ds_write_b64 v{u}, {vr(cur[0],2)}""")
    k.waitvm("w2_7")
    bar(c)
    c.stamp(2)
    es = va.get(16)
    for s in range(8):
        k(f"ds_read_b64 {vr(es+2*s,2)}, v{t} offset:{512*s}")
    pre = va.get(2)
    k(f"""s_lshl_b32 s{sT}, s{sTQ}, 1
    v_add_u32 v{u}, s{sT}, v{hf}
    v_mov_b32 v{pre}, 0
    v_mov_b32 v{pre+1}, 0""")
    cur = (es, es + 1)
    for s in range(1, 8):
        d = h[s & 1]
        k(f"""v_cmp_eq_u32 vcc, {s}, v{u}
        v_cndmask_b32 v{pre}, v{pre}, v{cur[0]}, vcc
        v_cndmask_b32 v{pre+1}, v{pre+1}, v{cur[1]}, vcc""")
        cmad(k, d, d + 1, l16, l16 + 1, cur[0], cur[1], es + 2 * s, es + 2 * s + 1)
        cur = (d, d + 1)
    g4 = es
    lab = k.label("L_es")
    k(f"s_cmp_lg_u32 s{sTQ}, 0\ns_cbranch_scc1 {lab}")
    k.region_begin()
    k(f"""v_mov_b32 v{g4}, v{cur[0]}
    v_mov_b32 v{g4+1}, s{sNON}
    v_mov_b32 v{g4+2}, v{cur[1]}
    v_mov_b32 v{g4+3}, s{sNON}
    s_lshl_b32 s{sT}, s{sG}, 13
    s_lshl_b32 s{sT+1}, s{sC}, 10
    s_add_u32 s{sT}, s{sT}, s{sT+1}
    s_lshl_b32 s{sT+1}, s{sKH}, 9
    s_add_u32 s{sT}, s{sT}, s{sT+1}
    s_add_u32 s{sT}, s{sT}, {WS_E}
    s_mov_b64 exec, 0xffffffff
    buffer_store_dwordx4 {vr(g4,4)}, v{g.vL16}, s[{sWS}:{sWS+3}], s{sT} offen sc1
    s_mov_b64 exec, -1""")
    k.region_end()
    k(f"{lab}:")
    va.put(es, 16); va.put(h[0], 2); va.put(h[1], 2); va.put(l16, 2); va.put(t); va.put(u)
    c.stamp(3)
    g.scan = dict(accr=accr, acci=acci, lr=lr, li=li, l128=l128, fs=fs, fe=fe, pre=pre, i32=i32, hf=hf)


def build(opts):
    import mk3b
    g0 = G()
    P = Ctx("pro", opts, VA(2, 255))
    prologue(P, g0)
    body = P.k.finalize()
    import copy
    for kind, lab in (("S3", None), ("M", "L_pathM"), ("S0", "L_pathS0")):
        g = copy.copy(g0)
        C = Ctx(kind, opts, P.va.clone())
        mk3b.path(C, g, kind)
        C.stamp_flush()
        C.k("s_waitcnt vmcnt(0) lgkmcnt(0)\ns_endpgm")
        if lab:
            body += lab + ":\n"
        body += C.k.finalize(init_vm=P.k.final_vm)
        print(kind, "peak vgpr", C.va.peak + 2, file=sys.stderr)
    body += "L_exit:\n  s_endpgm\n"
    n = NAME + "_kernel"
    hdr = f"""; fused S5-SSM + shift-MLP kernel (generated by dev/mk3.py)
; @launch grid=(256,1,1) block=(512,1,1) lds={LDS_BYTES}
.amdgcn_target "amdgcn-amd-amdhsa--gfx950"
.text
.globl {n}
.p2align 8
.type {n},@function
{n}:
"""
    tail = f""".section .rodata,"a"
.p2align 6
.amdhsa_kernel {n}
  .amdhsa_next_free_vgpr 256
  .amdhsa_next_free_sgpr 102
  .amdhsa_accum_offset 256
  .amdhsa_group_segment_fixed_size 0
  .amdhsa_kernarg_size 136
  .amdhsa_user_sgpr_count 2
  .amdhsa_user_sgpr_kernarg_segment_ptr 1
  .amdhsa_system_sgpr_workgroup_id_x 1
.end_amdhsa_kernel
"""
    return hdr + body + tail


if __name__ == "__main__":
    import argparse
    ap = argparse.ArgumentParser()
    ap.add_argument("-o", default="v3.s")
    ap.add_argument("--stop", type=int, default=99)
    ap.add_argument("--stamps", action="store_true")
    ap.add_argument("--opt", action="append", default=[])
    a = ap.parse_args()
    opts = dict(stop=a.stop, stamps=a.stamps)
    for o in a.opt:
        kk, _, vv = o.partition("=")
        opts[kk] = int(vv) if vv else 1
    txt = build(opts)
    open(a.o, "w").write(txt)
    print("wrote", a.o, len(txt), "bytes", txt.count("\n"), "lines")
```

```python
from mk4 import *

XR = [4, 5, 18, 17]


class Sched:
    def __init__(self, c, g):
        self.c, self.g = c, g
        self.free = set()
        self.items = [("C", r) for r in range(8)] + [("W", n) for n in range(28)]
        self.unit = {}

    def release(self, us):
        for u in us:
            assert u not in self.free
            self.free.add(u)

    def units(self, it):
        u = self.unit[it]
        return [u, u + 1] if it[0] == "C" else [u]

    def next(self, maxn=99):
        c, g = self.c, self.g
        out = []
        for it in self.items:
            if it in self.unit:
                continue
            if len(out) >= maxn:
                break
            fr = sorted(self.free)
            pairs = [u for u in fr if u + 1 in self.free]
            if it[0] == "C":
                if not pairs:
                    continue
                u = pairs[0]
                self.free -= {u, u + 1}
                self.unit[it] = u
                r = it[1]
                out.append(lambda u=u, r=r: c.dma(g.vR1k, sWC, None, U(u), pre=rotk(r, 0, sCrow, sRC)))
                out.append(lambda u=u, r=r: c.dma(g.vR1k, sWD, None, U(u + 1), pre=rotk(r, 0, sCrow, sRC), tag=f"C{r}"))
            else:
                if not fr:
                    break
                u = fr[0]
                self.free.discard(u)
                self.unit[it] = u
                n = it[1]
                ph, j3 = n // 14, n % 14
                out.append(lambda u=u, n=n, ph=ph, j3=j3: c.dma(g.vK1k, sWB, None, U(u), tag=f"W{n}", pre=f"""s_add_u32 s{sT+8}, s{sRW}, {(2 * j3 + ph) * 65536}
                    s_sub_u32 s{sT+7}, s{sT+8}, {14*131072}
                    s_min_u32 s{sT+8}, s{sT+8}, s{sT+7}"""))
        return out


def sel(k, dst, sidx, vals):
    k(f"s_mov_b32 s{dst}, {vals[0]}")
    for i in range(1, len(vals)):
        k(f"s_cmp_eq_u32 s{sidx}, {i}\ns_cselect_b32 s{dst}, {vals[i]}, s{dst}")


def late_rot(c):
    k = c.k
    rot = c.opts.get("rot", ROT)
    k(f"s_lshr_b32 s{sT}, s2, 7")
    if rot & 4:
        k(f"""s_lshl_b32 s{sRC}, s{sT}, 1
        s_add_u32 s{sRC}, s{sRC}, s{sRH}
        s_lshl_b32 s{sRC}, s{sRC}, 1
        s_add_u32 s{sRC}, s{sRC}, s{sC}
        s_lshl_b32 s{sRC}, s{sRC}, 7""")
    else:
        k(f"s_mov_b32 s{sRC}, 0")
    if rot & 8:
        k(f"""s_mul_i32 s{sT}, s{sT}, 7
        s_mul_i32 s{sT+1}, s{sRH}, 3
        s_add_u32 s{sT}, s{sT}, s{sT+1}
        s_lshl_b32 s{sT+1}, s{sC}, 1
        s_add_u32 s{sT}, s{sT}, s{sT+1}
        s_sub_u32 s{sT+1}, s{sT}, 14
        s_min_u32 s{sT}, s{sT}, s{sT+1}""")
    else:
        k(f"s_mov_b32 s{sT}, 0")
    k(f"""s_lshl_b32 s{sRU}, s{sT}, 13
    s_lshl_b32 s{sRW}, s{sT}, 17
    s_add_u32 s{sRW}, s{sRW}, s{sC128}""")


def late_srds(c):
    k = c.k
    late_rot(c)
    srd(k, sWB, P_W4, 1792 * 1024)
    srd(k, sWC, P_CRE, 512 * 1024)
    srd(k, sWD, P_CIM, 512 * 1024)


def w3d(c, g, ph, i):
    u = W3H0[i] if ph == 0 else 6 + i
    c.dma(g.vK35, sWD, None, U(u), sadd=(sJ3Bp if i < 4 else sJ3Bm, i * 64 * 3584 + 128 * ph), tag=f"w3_{ph}_{i}")


class Queue:
    def __init__(self):
        self.q = []
    def add(self, ms, fn):
        self.q.append((ms, fn))
    def pop(self, s, n):
        while n > 0 and self.q and self.q[0][0] <= s:
            self.q.pop(0)[1]()
            n -= 1
    def flush(self):
        while self.q:
            self.q.pop(0)[1]()


def digits(x):
    return [int(ch) for ch in str(x)]


def exec_sel(k):
    k("s_mov_b32 exec_lo, 0x30003\ns_mov_b32 exec_hi, 0x30003")


def m_path(c, g):
    k, va, o = c.k, c.va, c.opts
    stop = o.get("stop", 99)
    UA = [(14, 15), (16, 17), (0, 1), (6, 7), (8, 9), (10, 11), (12, 13), (2, 3)]
    UB = [4, 5, 18, 14, 15, 16, 17, 0]
    vX0, vX1, vW1 = va.get(), va.get(), va.get()
    t, u, q = va.get(), va.get(), va.get()
    srd(k, sWA, P_W1, 512 * 1024)
    k(f"""s_lshr_b32 s{sT}, s{sC}, 2
    s_add_u32 s{sT}, s{sT}, 1
    s_sub_u32 s{sT+1}, 0, s{sT}
    s_bitcmp1_b32 s{sC}, 1
    s_cselect_b32 s{sB}, s{sT}, s{sT+1}         ; off
    s_add_u32 s{sT}, s{sT0}, s{sB}
    s_lshl_b32 s{sT}, s{sT}, 10
    v_add_u32 v{vX0}, s{sT}, v{g.vR1k}
    v_bfe_u32 v{u}, v{g.r8}, 1, 1
    s_lshl_b32 s{sT+1}, s{sKH}, 1
    v_or_b32 v{u}, s{sT+1}, v{u}
    v_lshlrev_b32 v{u}, 1, v{u}
    v_xor_b32 v{u}, v{u}, v{g.pos}
    v_lshlrev_b32 v{u}, 4, v{u}
    v_lshl_add_u32 v{vW1}, v{g.row}, 10, v{u}
    v_add_u32 v{vX1}, 0x10000, v{vX0}""")

    def ia(s, h):
        if h == 0:
            c.dma(vX0, sX, None, U(UA[s][0]), pre=rotk(s))
        else:
            c.dma(vW1, sWA, None, U(UA[s][1]), pre=rotk(s, 9, sC128), tag=f"a{s}")

    def ib(s):
        c.dma(vX1, sX, None, U(UB[s]), pre=rotk(s), tag=f"b{s}")
    n0 = o.get("n0", 4)
    c.stamp(56)
    for s in range(n0):
        ia(s, 0); ia(s, 1)
        if s == 0:
            c.stamp(57)
        if s == n0 - 1:
            c.stamp(58)
        if s + 1 == o.get("tch", 2):
            touch(c, g, 0)
    Q = Queue()
    for s in range(n0, 8):
        Q.add(0, lambda s=s: ia(s, 0))
        Q.add(0, lambda s=s: ia(s, 1))
    for s, ms in enumerate([0, 0, 0, 1, 1, 2, 2, 3]):
        Q.add(ms, lambda s=s: ib(s))
    for i in range(8):
        Q.add(4 + i // 2, lambda i=i: w2_dma(c, g, i))
    Q.add(3, lambda: w3d(c, g, 0, 5))
    late_consts(c, g)
    kn_voff(c, g, True)
    srd(k, sWB, P_W2, 512 * 1024)
    srd(k, sWD, P_W3, 512 * 3584)
    for r in (g.r8, g.pos, g.row):
        va.put(r)
    aW = [va.get(), va.get()]
    aX = [va.get(), va.get()]
    vst = va.get()
    k(f"""v_lshrrev_b32 v{q}, 4, v1                   ; gq
    v_bfe_u32 v{t}, v1, 2, 2                    ; r'
    v_lshl_add_u32 v{u}, v{q}, 3, v{t}          ; 8gq+r'
    v_lshlrev_b32 v{aW[0]}, 7, v{u}
    v_lshrrev_b32 v{t}, 1, v{t}
    v_and_b32 v{u}, 1, v{q}
    v_lshl_add_u32 v{t}, v{u}, 1, v{t}
    v_lshlrev_b32 v{t}, 1, v{t}
    v_bfe_u32 v{u}, v1, 1, 1
    s_lshl_b32 s{sT}, s{sKH}, 2
    v_add_u32 v{u}, s{sT}, v{u}
    v_xor_b32 v{u}, v{u}, v{t}
    v_lshl_add_u32 v{aW[0]}, v{u}, 4, v{aW[0]}
    v_and_b32 v{u}, 1, v1
    v_lshl_add_u32 v{aW[0]}, v{u}, 3, v{aW[0]}
    v_xor_b32 v{aW[1]}, 32, v{aW[0]}
    v_and_b32 v{t}, 15, v1
    s_lshl_b32 s{sT}, s{sTQ}, 4
    v_add_u32 v{t}, s{sT}, v{t}
    v_bfe_u32 v{u}, v{t}, 1, 3
    v_xor_b32 v{u}, v{u}, v{q}
    v_lshlrev_b32 v{u}, 4, v{u}
    v_lshl_add_u32 v{aX[0]}, v{t}, 7, v{u}
    v_xor_b32 v{aX[1]}, 64, v{aX[0]}
    s_add_u32 s{sT}, s{sB}, 2
    s_lshl_b32 s{sT}, s{sT}, 3
    s_add_u32 s{sT}, s{sT}, {ST_B}
    v_lshl_add_u32 v{vst}, v{t}, 3, s{sT}
    s_lshr_b32 s{sT}, s{sT0}, 4
    s_add_u32 s{sT}, s{sT}, s{sTQ}
    s_lshl_b32 s{sT}, s{sT}, 4
    s_lshl_b32 s{sT+1}, s{sC}, 1
    s_add_u32 s{sT+1}, s{sT+1}, s{sKH}          ; kb
    s_add_u32 s{sT}, s{sT}, s{sT+1}
    s_lshl_b32 s{sHB}, s{sT}, 10
    s_lshl_b32 s{sT}, s{sTQ}, 4
    s_add_u32 s{sT}, s{sT}, s{sT+1}
    s_lshl_b32 s{sT}, s{sT}, 2
    s_add_u32 s{sUB}, s{sT}, s{sFL}
    s_lshl_b32 s{sT+1}, s{sW}, 5
    s_add_u32 s{sD}, s{sT+1}, s{sFL}""")
    for a in aW + aX:
        c.pre_hi(a)
    for r in (t, u, q):
        va.put(r)
    wf = va.get(128)
    acc = [va.get(4), va.get(4)]
    cs = [va.get(4), va.get(4)]
    ones = va.get(4)
    for i in range(4):
        k(f"v_mov_b32 v{ones+i}, s{sONE}")
    c.stamp(0)
    Q.pop(0, o.get("n1a", 0))
    stat_publish(c, g)
    touch(c, g, 1)
    Q.pop(0, o.get("n1", 0))
    c.stamp(51)
    NB = 3
    fb = [va.get(4) for _ in range(NB)]
    pipe = Pipe()
    mq = digits(o.get("mq", 43333333))
    g.vwarm = None
    for s in range(8):
        c.stamp(16 + s)
        k.waitvm(f"a{s}")
        bar(c)
        for ks in range(2):
            i = 2 * s + ks
            for a in range(2):
                for uu in range(2):
                    c.dsr("ds_read_b64_tr_b16", wf + 8 * i + 4 * a + 2 * uu, 2, aW[a], U(UA[s][1]) + (32 * ks + 4 * uu) * 128)
            c.dsr("ds_read_b128", fb[i % NB], 4, aX[ks], U(UA[s][0]))

            def mf(i=i):
                for a in range(2):
                    mf16(k, acc[a], wf + 8 * i + 4 * a, fb[i % NB], i == 0)
                for a in range(2):
                    mf16(k, cs[a], wf + 8 * i + 4 * a, ones, i == 0)
            pipe.push(mf)
            n = (mq[s] + 1 - ks) // 2
            Q.pop(s, (n + 1) // 2)
            pipe.drain(1)
            Q.pop(s, n // 2)
        if s == o.get("sis", 3):
            stat_issue(c, g)
        if s == o.get("xqs", 7):
            xq_load(c, g)
        if s == 6:
            stat_consume(c, g)
    pipe.drain()
    c.stamp(52)
    Q.flush()
    for a in aW:
        c.free_base(a)
    va.put(ones, 4); va.put(vX0); va.put(vX1); va.put(vW1)
    c.stamp(1)
    mode_read(c, g)

    def epi(half):
        k = c.k
        ab = va.get(2)
        t = va.get()
        k(f"ds_read_b64 {vr(ab,2)}, v{vst} offset:{half*512}")
        for a in range(2):
            for r in range(4):
                k(f"""v_mul_f32 v{t}, v{ab+1}, v{cs[a]+r}
                v_fma_f32 v{acc[a]+r}, v{ab}, v{acc[a]+r}, -v{t}""")
        va.put(t); va.put(ab, 2)
        gelu_many(c, [acc[a] + r for a in range(2) for r in range(4)])
        P = va.get(4)
        for a in range(2):
            for i in range(2):
                k(f"v_cvt_pk_bf16_f32 v{P+2*a+i}, v{acc[a]+2*i}, v{acc[a]+2*i+1}")
        if half:
            k(f"s_add_u32 s{sHB}, s{sHB}, 65536")
        c.store(f"buffer_store_dwordx4 {vr(P,4)}, v{g.vL16}, s[{sWS}:{sWS+3}], s{sHB} offen", o.get("phx"), tag=f"hp{half}")
        va.put(P, 4)
    epi(0)
    c.stamp(2)
    aG = [va.get() for _ in range(4)]
    vx1, vex = va.get(), va.get()
    held = [va.get() for _ in range(8)]

    def prep():
        k = c.k
        t, u, q = held[:3]
        k(f"""v_lshrrev_b32 v{q}, 4, v1
        v_bfe_u32 v{t}, v1, 2, 2
        v_lshl_add_u32 v{u}, v{q}, 2, v{t}          ; 4q+r'
        v_lshlrev_b32 v{aG[0]}, 7, v{u}
        v_lshrrev_b32 v{t}, 1, v{t}
        v_lshlrev_b32 v{t}, 2, v{t}
        v_and_b32 v{u}, 1, v{q}
        v_lshl_add_u32 v{t}, v{u}, 1, v{t}          ; swz
        v_bfe_u32 v{u}, v1, 1, 1
        s_lshl_b32 s{sT}, s{sKH}, 2
        v_add_u32 v{u}, s{sT}, v{u}
        v_xor_b32 v{u}, v{u}, v{t}
        v_lshl_add_u32 v{aG[0]}, v{u}, 4, v{aG[0]}
        v_and_b32 v{u}, 1, v1
        v_lshl_add_u32 v{aG[0]}, v{u}, 3, v{aG[0]}
        s_lshl_b32 s{sT}, s{sKHP}, 15
        s_add_u32 s{sT}, s{sT}, {U(6)}
        v_add_u32 v{aG[0]}, s{sT}, v{aG[0]}""")
        for a in range(1, 4):
            k(f"v_xor_b32 v{aG[a]}, {a*32}, v{aG[0]}")
        k(f"""v_and_b32 v{t}, 15, v1
        v_and_b32 v{u}, 1, v{q}
        v_lshl_add_u32 v{t}, v{u}, 5, v{t}
        v_lshlrev_b32 v{t}, 4, v{t}
        v_lshrrev_b32 v{u}, 1, v{q}
        v_lshl_add_u32 v{vx1}, v{u}, 10, v{t}
        s_lshl_b32 s{sT}, s{sW}, 11
        s_add_u32 s{sT}, s{sT}, {U(4)}
        v_add_u32 v{vex}, s{sT}, v{g.vL16}
        s_lshr_b32 s{sT}, s{sT0}, 5
        s_lshr_b32 s{sT+1}, s{sW}, 2
        s_add_u32 s{sT}, s{sT}, s{sT+1}             ; t32
        s_lshl_b32 s{sT+2}, s{sC}, 1
        s_add_u32 s{sT+2}, s{sT+2}, s{sKH}          ; slice
        s_and_b32 s{sT+3}, s{sTQ}, 1
        s_lshl_b32 s{sT}, s{sT}, 4
        s_add_u32 s{sT}, s{sT}, s{sT+2}             ; t32*16+slice
        s_lshl_b32 s{sT}, s{sT}, 1
        s_add_u32 s{sT}, s{sT}, s{sT+3}
        s_lshl_b32 s{sB}, s{sT}, 7
        s_lshl_b32 s{sT+1}, s{sT+1}, 5
        s_lshl_b32 s{sT+3}, s{sT+3}, 4
        s_add_u32 s{sT+1}, s{sT+1}, s{sT+3}
        s_add_u32 s{sT+1}, s{sT+1}, s{sT+2}
        s_lshl_b32 s{sT+1}, s{sT+1}, 2
        s_add_u32 s{sT+1}, s{sT+1}, s{sFL}
        s_add_u32 s{sA}, s{sT+1}, 1024""")
        xn_prep(c, g, 0)
        xn_prep(c, g, 1)
    for r in held[3:]:
        va.put(r)
    fill = capture(c, prep)
    blk = [va.get() for _ in range(5)]

    def g1b():
        k = c.k
        pipe = Pipe()
        k.waitvm("b4")
        bar(c)
        c.stamp(59)
        for s in range(8):
            if s == 5:
                c.stamp(15)
                k.waitvm("b7")
                bar(c)
                c.stamp(14)
            for ks in range(2):
                i = 2 * s + ks
                c.dsr("ds_read_b128", fb[i % NB], 4, aX[ks], U(UB[s]))

                def mf(i=i):
                    for a in range(2):
                        mf16(k, acc[a], wf + 8 * i + 4 * a, fb[i % NB], i == 0)
                pipe.push(mf)
                pipe.drain(2)
            if s in (0, 1):
                w3d(c, g, 0, 6 + s)
            if s in (5, 6):
                w3d(c, g, 0, s - 5)
            if s == o.get("f0a", 2):
                c.stamp(49)
                k.waitvm("hp0")
                c.stamp(60)
                c.flag(g, sUB)
            if s == o.get("p0a", 6) and stop >= 2:
                g.p0 = c.poll_issue(g, sD, 8)
        pipe.drain()
    main = capture(c, g1b)
    splice(k, main, fill, o.get("per1", 4))
    for r in held[:3] + blk:
        va.put(r)
    for a in aX:
        c.free_base(a)
    for f in fb:
        va.put(f, 4)
    c.stamp(3)
    hp = va.get(32)

    def hp_loads(half):
        k(f"""s_lshl_b32 s{sT}, s{sT0}, 10
        s_lshl_b32 s{sT+1}, s{sW}, 13
        s_add_u32 s{sT}, s{sT}, s{sT+1}
        s_add_u32 s{sT}, s{sT}, {65536*half}
        s_add_u32 s{sT+1}, s{sT}, 4096""")
        for i in range(8):
            k(f"buffer_load_dwordx4 {vr(hp+4*i,4)}, v{g.vL16}, s[{sWS}:{sWS+3}], s{sT+(i>>2)} offen offset:{(i&3)*1024} sc1")
    if stop >= 2:
        c.poll_check(g, g.p0)
        hp_loads(0)
    c.stamp(4)
    epi(1)
    va.put(vst)
    for a in range(2):
        va.put(acc[a], 4); va.put(cs[a], 4)
    warm_done(c, g)
    k(f"s_add_u32 s{sUB}, s{sUB}, 256\ns_add_u32 s{sD}, s{sD}, 256")
    if stop < 2:
        k.waitvm("hp1")
        c.flag(g, sUB)
        return
    k(f"""s_lshl_b32 s{sT}, s{sB}, 3
    s_and_b32 s{sT}, s{sT}, 0xfffff800
    s_and_b32 s{sT+1}, s{sB}, 128
    s_lshl_b32 s{sT+1}, s{sT+1}, 1
    s_add_u32 s{sT}, s{sT}, s{sT+1}
    s_add_u32 s{sHB}, s{sT}, {WS_X1}
    s_add_u32 s{sB}, s{sB}, {WS_PS}""")
    k.waitvm("w2_7")
    bar(c)
    c.stamp(5)
    acc = [va.get(4) for _ in range(4)]
    pipe = Pipe()

    def mfg(i):
        for a in (2, 3, 0, 1):
            mf16(k, acc[a], wf + 16 * i + 4 * a, hp + 4 * i, i == 0)
    for i in range(8):
        for a in range(4):
            for uu in range(2):
                k(f"ds_read_b64_tr_b16 {vr(wf+16*i+4*a+2*uu,2)}, v{aG[a]} offset:{(i>>1)*8192 + (32*(i&1)+16*uu)*128}")
        pipe.push(lambda i=i: mfg(i))
        pipe.drain(2)
        if i in (1, 2, 3):
            w3d(c, g, 0, i + 1)
        if i == o.get("f0b", 4):
            k.waitvm("hp1")
            c.flag(g, sUB)
        if i == o.get("p0b", 7):
            g.p0 = c.poll_issue(g, sD, 8)
    pipe.drain()
    for a in aG:
        va.put(a)

    def xwrite():
        for i in range(2):
            k(f"ds_write_b128 v{vex}, {vr(acc[2+i],4)} offset:{1024*i}")
        k(f"v_xor_b32 v{vex}, 2048, v{vex}")

    def x1_epi(half):
        for i in range(2):
            k(f"ds_read_b128 {vr(acc[2+i],4)}, v{vex} offset:{1024*i}")
        lo, hi = va.get(), va.get()
        x1 = va.get(4)
        for i in range(4):
            a = acc[i >> 1] + 2 * (i & 1)
            b = acc[2 + (i >> 1)] + 2 * (i & 1)
            k(f"""v_lshlrev_b32 v{lo}, 16, v{g.xq+4*half+i}
            v_and_b32 v{hi}, 0xffff0000, v{g.xq+4*half+i}
            v_add_f32 v{a}, v{a}, v{b}
            v_add_f32 v{a+1}, v{a+1}, v{b+1}
            v_add_f32 v{lo}, v{lo}, v{a}
            v_add_f32 v{hi}, v{hi}, v{a+1}
            v_cvt_pk_bf16_f32 v{x1+i}, v{lo}, v{hi}""")
        c.store(f"buffer_store_dwordx4 {vr(x1,4)}, v{vx1}, s[{sWS}:{sWS+3}], s{sHB} offen", o.get("phx"))
        s12 = va.get(2)
        S1, S2 = s12, s12 + 1
        k(f"v_mov_b32 v{S1}, 0\nv_mov_b32 v{S2}, 0")
        for i in range(4):
            k(f"v_dot2c_f32_bf16 v{S1}, s{sONE}, v{x1+i}\nv_dot2c_f32_bf16 v{S2}, v{x1+i}, v{x1+i}")
        k(f"""v_permlane32_swap_b32 v{S1}, v{S2}
        v_add_f32 v{S1}, v{S1}, v{S2}
        v_mov_b32 v{S2}, v{S1}
        v_permlane16_swap_b32 v{S1}, v{S2}
        v_add_f32 v{S1}, v{S1}, v{S2}
        v_mov_b32 v{S2}, v{S1}
        v_permlane32_swap_b32 v{S1}, v{S2}
        v_lshlrev_b32 v{lo}, 3, v1
        s_mov_b64 exec, 0xffff""")
        c.store(f"buffer_store_dwordx2 {vr(s12,2)}, v{lo}, s[{sWS}:{sWS+3}], s{sB} offen", o.get("phx"), tag=f"x1st{half}")
        k("s_mov_b64 exec, -1")
        va.put(s12, 2); va.put(x1, 4); va.put(lo); va.put(hi)
    xwrite()
    bar(c)
    c.stamp(6)
    c.poll_check(g, g.p0)
    hp_loads(1)
    c.stamp(7)
    x1_epi(0)
    k(f"s_add_u32 s{sHB}, s{sHB}, 65536\ns_add_u32 s{sB}, s{sB}, 8192")
    c.stamp(8)
    for i in range(8):
        if stop >= 4:
            w3d(c, g, 1, i)
        mfg(i)
        if i == o.get("f1a", 5):
            k.waitvm("x1st0")
            c.flag(g, sA)
    va.put(wf, 128); va.put(hp, 32)
    xwrite()
    bar(c)
    c.stamp(53)
    x1_epi(1)
    for a in acc:
        va.put(a, 4)
    va.put(g.xq, 8); va.put(vx1); va.put(vex)
    k(f"s_add_u32 s{sA}, s{sA}, 256")
    c.stamp(54)

    def f1():
        c.k.waitvm("x1st1")
        c.flag(g, sA)
        if stop >= 4:
            f1_issue(c, g)
    return f1


SL = [(9, 10, 11, 12), (13, 14, 15, 16), (17, 18, 0, 1), (2, 3, 4, 5)]


def s_issue(c, g, s):
    sl = SL[s % 4]
    return [lambda: c.dma(g.vX0, sX, None, U(sl[0]), pre=rotk(s)),
            lambda: c.dma(g.vX1, sX, None, U(sl[1]), pre=rotk(s)),
            lambda: c.dma(g.vR1k, sWA, None, U(sl[2]), pre=rotk(s, 0, sCrow)),
            lambda: c.dma(g.vR1k, sWB, None, U(sl[3]), pre=rotk(s, 0, sCrow), tag=f"a{s}")]


def s_start(c, g):
    k, va, o = c.k, c.va, c.opts
    g.vX0, g.vX1 = va.get(), va.get()
    srd(k, sWA, P_BRE, 512 * 1024)
    srd(k, sWB, P_BIM, 512 * 1024)
    k(f"""s_lshl_b32 s{sT}, s{sT0}, 10
    v_add_u32 v{g.vX0}, s{sT}, v{g.vR1k}
    v_add_u32 v{g.vX1}, 0x10000, v{g.vX0}""")
    c.stamp(56)
    for s in range(o.get("n0t", 1)):
        for f in s_issue(c, g, s):
            f()
    if o.get("hs", 3) & 1:
        k(f"""s_cmp_lg_u32 s{sW}, {o.get("hsw", 6)}
        s_cbranch_scc1 L_hs""")
        k.region_begin()
        k(f"s_lshr_b32 s{sT}, s2, 4")
        touch2(c, g, sT, [(P_W1, 8, 512 * 1024, -1024, 384), (P_W2, 8, 512 * 1024, -1024, 384)])
        k.region_end()
        k("L_hs:")
    c.stamp(57)
    k(f"""s_cmp_ge_u32 s{sJ}, 13
    s_cbranch_scc1 L_pathS0
    s_branch L_pathS3""")


def p1_S(c, g, full, sc):
    k, va, o = c.k, c.va, c.opts
    stop = o.get("stop", 99)
    vX0, vX1 = g.vX0, g.vX1
    issue = lambda s: s_issue(c, g, s)
    n0 = o.get("n0s", 2)
    c.stamp(58)
    hs = o.get("hs", 3)
    for s in range(o.get("n0t", 1), n0):
        for f in issue(s):
            f()
    touch(c, g, 0)
    Q = Queue()
    for s in range(n0, 8):
        for f in issue(s):
            Q.add(max(0, s - 3), f)
    i32, hf, t, u = va.get(), va.get(), va.get(), va.get()
    lre, lim, ldt = va.get(), va.get(), va.get()
    k(f"""v_and_b32 v{i32}, 31, v1
    v_lshrrev_b32 v{hf}, 5, v1
    s_lshl_b32 s{sT}, s{sKH}, 6
    s_add_u32 s{sT}, s{sT}, s{sC128}
    v_lshlrev_b32 v{t}, 1, v{i32}""")
    for p, d in ((P_LRE, lre), (P_LIM, lim), (P_LDT, ldt)):
        srd(k, sMI, p, 1024)
        k(f"buffer_load_ushort v{d}, v{t}, s[{sMI}:{sMI+3}], s{sT} offen")
    late_consts(c, g)
    kn_voff(c, g, full)
    late = stop >= (4 if full else 5)
    if full:
        srd(k, sWD, P_W3, 512 * 3584)
        if late:
            for ph, i, ms in [(1, 0, 0), (1, 1, 0), (1, 2, 0), (1, 3, 5), (1, 4, 5), (1, 5, 5), (1, 6, 5), (1, 7, 6),
                              (0, 0, 6), (0, 1, 6), (0, 2, 6), (0, 3, 7), (0, 4, 7), (0, 5, 7), (0, 6, 8), (0, 7, 8)]:
                Q.add(ms, lambda ph=ph, i=i: w3d(c, g, ph, i))
    else:
        srd(k, sWC, P_CRE, 512 * 1024)
        srd(k, sWD, P_CIM, 512 * 1024)
        if late:
            Q.add(0, lambda: (srd(c.k, sWB, P_W4, 1792 * 1024), late_rot(c)))
            for us, ms in [((6, 7, 8), 0), ((9, 10, 11, 12), 5), ((13, 14, 15, 16), 6), ((17, 0, 1), 7), ((2, 3), 8)]:
                sc.release(us)
                for f in sc.next():
                    Q.add(ms, f)
    for r in (g.r8, g.pos, g.row):
        va.put(r)
    aA = [va.get() for _ in range(4)]
    aB = [va.get() for _ in range(4)]
    k(f"""v_lshrrev_b32 v{t}, 2, v{i32}
    v_and_b32 v{t}, 1, v{t}
    v_lshlrev_b32 v{t}, 4, v{t}
    v_lshrrev_b32 v{u}, 3, v{i32}
    v_lshl_add_u32 v{t}, v{u}, 2, v{t}
    v_and_b32 v{u}, 3, v{i32}
    v_add_u32 v{t}, v{t}, v{u}               ; tau
    v_bfe_u32 v{u}, v{t}, 1, 3
    v_xor_b32 v{u}, v{u}, v{hf}
    v_lshlrev_b32 v{u}, 4, v{u}
    v_lshl_add_u32 v{aA[0]}, v{t}, 7, v{u}
    s_lshl_b32 s{sT}, s{sTQ}, 12
    v_add_u32 v{aA[0]}, s{sT}, v{aA[0]}
    v_bfe_u32 v{u}, v{i32}, 1, 3
    v_xor_b32 v{u}, v{u}, v{hf}
    v_lshlrev_b32 v{u}, 4, v{u}
    v_lshl_add_u32 v{aB[0]}, v{i32}, 7, v{u}
    s_lshl_b32 s{sT}, s{sKH}, 12
    v_add_u32 v{aB[0]}, s{sT}, v{aB[0]}
    s_lshl_b32 s{sT}, s{sTQ}, 5
    v_xor_b32 v{aA[0]}, s{sT}, v{aA[0]}
    v_xor_b32 v{aB[0]}, s{sT}, v{aB[0]}""")
    for i in range(1, 4):
        k(f"v_xor_b32 v{aA[i]}, {i*32}, v{aA[0]}\nv_xor_b32 v{aB[i]}, {i*32}, v{aB[0]}")
    for a in aA:
        c.pre_hi(a, (1, 2))
    for a in aB:
        c.pre_hi(a, (1, 2))
    s4 = sel_make(c)
    c.stamp(0)
    Q.pop(0, o.get("n1sa", 0))
    stat_publish(c, g)
    touch(c, g, 1)
    Q.pop(0, o.get("n1s", 0))
    c.stamp(51)
    accr, acci = va.get(16), va.get(16)
    csr, csi = va.get(4), va.get(4)
    NB = 3
    fa = [va.get(4) for _ in range(NB)]
    fr = [va.get(4) for _ in range(NB)]
    fi = [va.get(4) for _ in range(NB)]
    lr, li, kr, ki = [va.get() for _ in range(4)]
    pw = [va.get(2), va.get(2)]
    l16, l128, fs, fe = [va.get(2) for _ in range(4)]
    dt, e, x2 = va.get(), va.get(), va.get()
    l256 = va.get(2)

    def params():
        k = c.k
        k(f"""v_lshlrev_b32 v{lre}, 16, v{lre}
        v_lshlrev_b32 v{lim}, 16, v{lim}
        v_lshlrev_b32 v{ldt}, 16, v{ldt}
        v_mul_f32 v{dt}, {fhex(LOG2E)}, v{ldt}
        v_exp_f32 v{dt}, v{dt}""")
        c.bf16r(dt, dt)
        k(f"""v_mul_f32 v{e}, v{dt}, v{lre}
        v_mul_f32 v{e}, {fhex(LOG2E)}, v{e}
        v_exp_f32 v{e}, v{e}
        v_mul_f32 v{x2}, v{dt}, v{lim}
        v_mul_f32 v{x2}, {fhex(0.15915494309189535)}, v{x2}
        v_cos_f32 v{lr}, v{x2}
        v_sin_f32 v{li}, v{x2}
        v_mul_f32 v{lr}, v{lr}, v{e}
        v_mul_f32 v{li}, v{li}, v{e}
        v_mul_f32 v{e}, v{lre}, v{lre}
        v_fma_f32 v{e}, v{lim}, v{lim}, v{e}
        v_rcp_f32 v{e}, v{e}
        v_add_f32 v{x2}, -1.0, v{lr}
        v_mul_f32 v{kr}, v{x2}, v{lre}
        v_fma_f32 v{kr}, v{li}, v{lim}, v{kr}
        v_mul_f32 v{ki}, v{li}, v{lre}
        v_fma_f32 v{ki}, -v{x2}, v{lim}, v{ki}
        v_add_f32 v{e}, v{e}, v{e}
        v_mul_f32 v{kr}, v{kr}, v{e}
        v_mul_f32 v{ki}, v{ki}, v{e}""")
        csq(k, pw[0], pw[0] + 1, lr, li)
        csq(k, pw[1], pw[1] + 1, pw[0], pw[0] + 1)
        csq(k, pw[0], pw[0] + 1, pw[1], pw[1] + 1)
        csq(k, l16, l16 + 1, pw[0], pw[0] + 1)

        def factor(dst, base):
            k(f"""v_cndmask_b32 v{dst}, 1.0, v{base}, s[4:5]
            v_cndmask_b32 v{dst+1}, 0, v{base+1}, s[4:5]""")
            cur = base
            for b in range(2):
                nx = pw[b]
                csq(k, nx, nx + 1, cur, cur + 1)
                cmul(k, e, x2, dst, dst + 1, nx, nx + 1)
                k(f"""v_cndmask_b32 v{dst}, v{dst}, v{e}, s[{6+2*b}:{7+2*b}]
                v_cndmask_b32 v{dst+1}, v{dst+1}, v{x2}, s[{6+2*b}:{7+2*b}]""")
                cur = nx
            return cur
        p4 = factor(fs, l16)
        csq(k, l128, l128 + 1, p4, p4 + 1)
        csq(k, l256, l256 + 1, l128, l128 + 1)
        factor(fe, l256)
    k(f"""s_mov_b32 s4, 0
    s_mov_b32 s5, -1
    s_bitcmp1_b32 s{sTQ}, 0
    s_cselect_b64 s[6:7], -1, 0
    s_bitcmp1_b32 s{sTQ}, 1
    s_cselect_b64 s[8:9], -1, 0""")
    fill = capture(c, params)
    sq = digits(o.get("sq", 65444444))
    g.vwarm = None

    def steps():
        k = c.k
        pipe = Pipe()
        for s in range(8):
            c.stamp(16 + s)
            k.waitvm(f"a{s}")
            bar(c)
            sl = SL[s % 4]
            assert sl[1] == sl[0] + 1
            for i in range(4):
                n = 4 * s + i
                b = n % NB
                c.dsr("ds_read_b128", fa[b], 4, aA[i], U(sl[0]))
                c.dsr("ds_read_b128", fr[b], 4, aB[i], U(sl[2]))
                c.dsr("ds_read_b128", fi[b], 4, aB[i], U(sl[3]))

                def mf(n=n, b=b, i=i):
                    mf32(k, accr, fa[b], fr[b], n == 0)
                    mf32(k, acci, fa[b], fi[b], n == 0)
                    if i == 0:
                        mf16(k, csr, fr[b], s4, n == 0)
                        mf16(k, csi, fi[b], s4, n == 0)
                pipe.push(mf)
                pipe.drain(1)
                Q.pop(s, (sq[s] + 3 - i) // 4)
            if s == o.get("sis", 3):
                stat_issue(c, g)
            if s == o.get("wmss", 5):
                warm_mall(c, g)
            if hs & 2 and s == o.get("hl0", 5):
                lab = k.label("L_hl")
                k(f"""s_sub_u32 s{sT}, s{sW}, 3
                s_cmp_ge_u32 s{sT}, 2
                s_cbranch_scc1 {lab}""")
                k.region_begin()
                k(f"""s_lshl_b32 s{sT}, s{sT}, 4
                s_lshr_b32 s{sT+1}, s2, 4
                s_add_u32 s{sT}, s{sT}, s{sT+1}""")
                touch2(c, g, sT, [(P_W4, 28, 1792 * 1024, -1024, 384)])
                k.region_end()
                k(f"{lab}:")
            if s == 6:
                stat_consume(c, g)
        pipe.drain()
    main = capture(c, steps)
    splice(k, main, fill, o.get("pers", 3))
    for r in (lre, lim, ldt, dt, e, x2):
        va.put(r)
    va.put(l256, 2); va.put(pw[0], 2); va.put(pw[1], 2)
    for a in aA + aB:
        c.free_base(a)
    for f in fa + fr + fi:
        va.put(f, 4)
    va.put(vX0); va.put(vX1); va.put(s4, 4)
    Q.pop(7, 99)
    c.stamp(1)
    k(f"""v_lshrrev_b32 v{t}, 4, v1
    v_and_b32 v{u}, 1, v1
    v_lshl_add_u32 v{t}, v{u}, 2, v{t}
    s_lshl_b32 s{sT}, s{sKH}, 10
    s_add_u32 s{sT}, s{sT}, {CSB}
    s_lshl_b32 s{sT+1}, s{sTQ}, 3
    s_add_u32 s{sT+1}, s{sT+1}, s{sT}
    v_lshl_add_u32 v{u}, v{t}, 7, s{sT+1}
    v_lshl_add_u32 v{t}, v{i32}, 5, s{sT}""")
    exec_sel(k)
    for r in range(4):
        k(f"ds_write2_b32 v{u}, v{csr+r}, v{csi+r} offset0:{8*r} offset1:{8*r+1}")
    k("s_mov_b64 exec, -1")
    st = va.get(32)
    k(f"""s_lshl_b32 s{sT}, s{sTQ}, 8
    s_add_u32 s{sT}, s{sT}, {ST_A + 16}
    v_lshl_add_u32 v{u}, v{hf}, 7, s{sT}""")
    for i in range(8):
        k(f"ds_read_b128 {vr(st+4*i,4)}, v{u} offset:{16*i}")
    mode_read(c, g)
    warm_done(c, g)
    t1, t2 = va.get(), va.get()
    for r in range(16):
        k(f"""v_mul_f32 v{t1}, v{kr}, v{accr+r}
        v_mul_f32 v{t2}, v{kr}, v{acci+r}
        v_fma_f32 v{t1}, -v{ki}, v{acci+r}, v{t1}
        v_fma_f32 v{acci+r}, v{ki}, v{accr+r}, v{t2}
        v_mul_f32 v{accr+r}, v{st+2*r}, v{t1}
        v_mul_f32 v{acci+r}, v{st+2*r}, v{acci+r}""")
    bar(c)
    Q.flush()
    cs = va.get(8)
    k(f"""ds_read_b128 {vr(cs,4)}, v{t}
    ds_read_b128 {vr(cs+4,4)}, v{t} offset:16
    v_add_f32 v{csr}, v{cs}, v{cs+2}
    v_add_f32 v{csi}, v{cs+1}, v{cs+3}
    v_add_f32 v{cs+4}, v{cs+4}, v{cs+6}
    v_add_f32 v{cs+5}, v{cs+5}, v{cs+7}
    v_add_f32 v{csr}, v{csr}, v{cs+4}
    v_add_f32 v{csi}, v{csi}, v{cs+5}""")
    cmul(k, cs, cs + 1, kr, ki, csr, csi)
    for r in range(16):
        k(f"""v_fma_f32 v{accr+r}, -v{st+2*r+1}, v{cs}, v{accr+r}
        v_fma_f32 v{acci+r}, -v{st+2*r+1}, v{cs+1}, v{acci+r}""")
    va.put(cs, 8); va.put(st, 32); va.put(csr, 4); va.put(csi, 4)
    for r in (t1, t2, kr, ki):
        va.put(r)
    h = [va.get(2), va.get(2)]
    cur = (accr, acci)
    for r in range(1, 16):
        d = h[r & 1]
        cmad(k, d, d + 1, lr, li, cur[0], cur[1], accr + r, acci + r)
        cur = (d, d + 1)
    SEG = U(18)
    k(f"""s_lshl_b32 s{sT}, s{sKH}, 8
    s_add_u32 s{sT}, s{sT}, {SEG}
    v_lshl_add_u32 v{t}, v{i32}, 3, s{sT}       ; SEG + p*8
    v_lshl_add_u32 v{u}, v{hf}, 9, v{t}
    s_lshl_b32 s{sT}, s{sTQ}, 10
    v_add_u32 v{u}, s{sT}, v{u}
    ds_write_b64 v{u}, {vr(cur[0],2)}""")
    g.eg = va.get(8)
    g.veb = va.get(2)
    k(f"""s_lshl_b32 s{sT}, s{sTQ}, 2
    s_sub_u32 s{sT}, s{sG}, s{sT}
    s_sub_u32 s{sT}, s{sT}, 1
    s_lshl_b32 s{sT}, s{sT}, 13
    s_lshl_b32 s{sT+1}, s{sC}, 10
    s_add_u32 s{sT}, s{sT}, s{sT+1}
    s_lshl_b32 s{sT+1}, s{sKH}, 9
    s_add_u32 s{sT}, s{sT}, s{sT+1}
    v_lshl_add_u32 v{g.veb}, v{i32}, 4, s{sT}
    v_lshlrev_b32 v{g.veb+1}, 14, v{hf}
    v_sub_u32 v{g.veb}, v{g.veb}, v{g.veb+1}
    v_subrev_u32 v{g.veb+1}, 8192, v{g.veb}""")
    bar(c)
    c.stamp(2)
    es = va.get(16)
    for s in range(8):
        k(f"ds_read_b64 {vr(es+2*s,2)}, v{t} offset:{512*s}")
    pre = va.get(2)
    k(f"""s_lshl_b32 s{sT}, s{sTQ}, 1
    v_add_u32 v{u}, s{sT}, v{hf}
    v_mov_b32 v{pre}, 0
    v_mov_b32 v{pre+1}, 0""")
    cur = (es, es + 1)
    for s in range(1, 8):
        d = h[s & 1]
        k(f"""v_cmp_eq_u32 vcc, {s}, v{u}
        v_cndmask_b32 v{pre}, v{pre}, v{cur[0]}, vcc
        v_cndmask_b32 v{pre+1}, v{pre+1}, v{cur[1]}, vcc""")
        cmad(k, d, d + 1, l16, l16 + 1, cur[0], cur[1], es + 2 * s, es + 2 * s + 1)
        cur = (d, d + 1)
    g4 = es
    lab = k.label("L_es")
    k(f"s_cmp_lg_u32 s{sTQ}, 0\ns_cbranch_scc1 {lab}")
    k.region_begin()
    k(f"""v_mov_b32 v{g4}, v{cur[0]}
    v_mov_b32 v{g4+1}, s{sNON}
    v_mov_b32 v{g4+2}, v{cur[1]}
    v_mov_b32 v{g4+3}, s{sNON}
    s_lshl_b32 s{sT}, s{sG}, 13
    s_lshl_b32 s{sT+1}, s{sC}, 10
    s_add_u32 s{sT}, s{sT}, s{sT+1}
    s_lshl_b32 s{sT+1}, s{sKH}, 9
    s_add_u32 s{sT}, s{sT}, s{sT+1}
    s_add_u32 s{sT}, s{sT}, {WS_E}
    s_mov_b64 exec, 0xffffffff
    buffer_store_dwordx4 {vr(g4,4)}, v{g.vL16}, s[{sWS}:{sWS+3}], s{sT} offen sc1
    s_mov_b64 exec, -1""")
    k.region_end()
    k(f"{lab}:")
    va.put(es, 16); va.put(h[0], 2); va.put(h[1], 2); va.put(l16, 2); va.put(t); va.put(u)
    c.stamp(3)
    g.scan = dict(accr=accr, acci=acci, lr=lr, li=li, l128=l128, fs=fs, fe=fe, pre=pre, i32=i32, hf=hf)


def e_loads(c, g):
    k = c.k
    k(f"""s_add_u32 s{sMI}, s{P_WS}, {WS_E}
    s_addc_u32 s{sMI+1}, s{P_WS+1}, 0
    s_mov_b32 s{sMI+2}, 131072
    s_mov_b32 s{sMI+3}, 0x00020000""")
    for ii in range(2):
        k(f"buffer_load_dwordx4 {vr(g.eg+4*ii,4)}, v{g.veb+ii}, s[{sMI}:{sMI+3}], 0 offen sc1")


def scan2a(c, g):
    k, va = c.k, c.va
    S = g.scan
    eg = g.eg
    loop, done = k.label("L_el"), k.label("L_ed")
    bad, e_, x_, y_ = [va.get() for _ in range(4)]
    k(f"""v_mov_b32 v{bad}, v{eg+7}
    s_mov_b32 s{sT+1}, {SPIN}
    {loop}:
    v_mov_b32 v{bad}, 0""")
    for ii in range(2):
        k(f"""v_cmp_le_i32 vcc, 0, v{g.veb+ii}
        v_cndmask_b32 v{e_}, 0, v{g.vNON}, vcc
        v_xor_b32 v{x_}, v{e_}, v{eg+4*ii+1}
        v_xor_b32 v{y_}, v{e_}, v{eg+4*ii+3}
        v_or3_b32 v{bad}, v{bad}, v{x_}, v{y_}""")
    k(f"""v_cmp_ne_u32 vcc, 0, v{bad}
    s_cbranch_vccz {done}""")
    k.region_begin()
    e_loads(c, g)
    k(f"""s_waitcnt vmcnt(0)
    s_sub_u32 s{sT+1}, s{sT+1}, 1
    s_cmp_lg_u32 s{sT+1}, 0
    s_cbranch_scc1 {loop}""")
    k.region_end()
    k(f"{done}:")
    d = va.get(2)
    cmad(k, x_, y_, S["l128"], S["l128"] + 1, eg + 4, eg + 6, eg, eg + 2)
    cmul(k, d, d + 1, S["fe"], S["fe"] + 1, x_, y_)
    k(f"""v_mov_b32 v{x_}, v{d}
    v_mov_b32 v{y_}, v{d+1}
    v_permlane32_swap_b32 v{d}, v{x_}
    v_permlane32_swap_b32 v{d+1}, v{y_}
    v_add_f32 v{d}, v{d}, v{x_}
    v_add_f32 v{d+1}, v{d+1}, v{y_}
    s_lshl_b32 s{sT}, s{sKH}, 8
    s_add_u32 s{sT}, s{sT}, {CSB}
    v_lshl_add_u32 v{e_}, v{S['i32']}, 3, s{sT}
    s_lshl_b32 s{sT}, s{sTQ}, 9
    v_add_u32 v{bad}, s{sT}, v{e_}
    ds_write_b64 v{bad}, {vr(d,2)}""")
    g.vep = e_
    for r in (bad, x_, y_):
        va.put(r)
    va.put(d, 2); va.put(eg, 8); va.put(g.veb, 2); va.put(S["l128"], 2); va.put(S["fe"], 2)


def scan2b(c, g, hooks):
    k, va = c.k, c.va
    S = g.scan
    ep = va.get(8)
    for i in range(4):
        k(f"ds_read_b64 {vr(ep+2*i,2)}, v{g.vep} offset:{512*i}")
    va.put(g.vep)
    wr, rd, vho, t = [va.get() for _ in range(4)]
    k(f"""s_xor_b32 s{sT}, s{sW}, 1
    s_lshl_b32 s{sT}, s{sT}, 11
    s_add_u32 s{sT}, s{sT}, {U(4)}
    v_lshl_add_u32 v{wr}, v{S['i32']}, 5, s{sT}
    v_lshl_add_u32 v{wr}, v{S['hf']}, 4, v{wr}
    v_lshl_add_u32 v{rd}, v{S['hf']}, 10, s{sT}
    v_bfe_u32 v{t}, v1, 4, 1
    v_lshl_add_u32 v{rd}, v{t}, 8, v{rd}
    v_lshlrev_b32 v{vho}, 10, v{t}
    v_and_b32 v{t}, 15, v1
    v_lshl_add_u32 v{rd}, v{t}, 3, v{rd}        ; r'*32 + c4*8
    v_lshl_add_u32 v{vho}, v{S['hf']}, 9, v{vho}
    v_bfe_u32 v{t}, v1, 3, 1
    v_lshl_add_u32 v{vho}, v{t}, 8, v{vho}
    v_and_b32 v{t}, 7, v1
    v_lshl_add_u32 v{vho}, v{t}, 4, v{vho}
    s_lshr_b32 s{sT}, s{sT0}, 5
    s_add_u32 s{sT}, s{sT}, s{sTQ}
    s_lshl_b32 s{sT}, s{sT}, 16
    s_lshl_b32 s{sT+1}, s{sC}, 13
    s_add_u32 s{sT}, s{sT}, s{sT+1}
    s_lshl_b32 s{sT+1}, s{sKH}, 12
    s_add_u32 s{sT}, s{sT}, s{sT+1}
    s_add_u32 s{sHB}, s{sT}, {WS_H}
    s_lshl_b32 s{sT}, s{sW}, 3
    s_add_u32 s{sT}, s{sT}, s{sC}
    s_lshl_b32 s{sT}, s{sT}, 2
    s_add_u32 s{sT}, s{sT}, s{sFL}
    s_add_u32 s{sUB}, s{sT}, 2048
    v_add_f32 v{ep}, v{ep}, v{ep+2}
    v_add_f32 v{ep+1}, v{ep+1}, v{ep+3}
    v_add_f32 v{ep+4}, v{ep+4}, v{ep+6}
    v_add_f32 v{ep+5}, v{ep+5}, v{ep+7}
    v_add_f32 v{ep}, v{ep}, v{ep+4}
    v_add_f32 v{ep+1}, v{ep+1}, v{ep+5}""")
    cin = ep + 2
    cmad(k, cin, cin + 1, S["fs"], S["fs"] + 1, ep, ep + 1, S["pre"], S["pre"] + 1)
    pk = [va.get(4), va.get(4)]
    ob = [va.get(4) for _ in range(4)]
    cur = (cin, cin + 1)
    for r in range(16):
        hr, hi_ = S["accr"] + r, S["acci"] + r
        cmad(k, hr, hi_, S["lr"], S["li"], cur[0], cur[1], hr, hi_)
        cur = (hr, hi_)
        if r & 1:
            j = (r >> 1) & 3
            k(f"""v_cvt_pk_bf16_f32 v{pk[0]+j}, v{hr-1}, v{hr}
            v_cvt_pk_bf16_f32 v{pk[1]+j}, -v{hi_-1}, -v{hi_}""")
        if r & 7 == 7:
            rho = r >> 3
            k(f"""ds_write_b128 v{wr}, {vr(pk[0],4)}
            ds_write_b128 v{wr}, {vr(pk[1],4)} offset:1024""")
            for kk in range(2):
                for uu in range(2):
                    k(f"ds_read_b64_tr_b16 {vr(ob[2*rho+kk]+2*uu,2)}, v{rd} offset:{512*kk+128*uu}")
        if r == 11 or r == 15:
            rho = (r >> 2) & 1
            for kk in range(2):
                k(f"buffer_store_dwordx4 {vr(ob[2*rho+kk],4)}, v{vho}, s[{sWS}:{sWS+3}], s{sHB} offen offset:{2048*kk+128*rho} sc1",
                  tag="hst")
        if r in hooks:
            hooks[r]()
    for r in (wr, rd, vho, t):
        va.put(r)
    for f in pk + ob:
        va.put(f, 4)
    va.put(ep, 8)
    va.put(S["accr"], 16); va.put(S["acci"], 16)
    for n_ in ("lr", "li", "i32", "hf"):
        va.put(S[n_])
    va.put(S["fs"], 2); va.put(S["pre"], 2)


def tr32_lane(c, dst, tile_sgpr):
    k, va = c.k, c.va
    t, u, h = va.get(), va.get(), va.get()
    k(f"""v_lshrrev_b32 v{h}, 5, v1
    v_bfe_u32 v{t}, v1, 2, 2
    v_lshl_add_u32 v{u}, v{h}, 2, v{t}
    v_lshlrev_b32 v{dst}, 7, v{u}
    v_lshrrev_b32 v{t}, 1, v{t}
    v_lshlrev_b32 v{t}, 2, v{t}
    v_lshl_add_u32 v{t}, v{h}, 1, v{t}          ; swz
    v_bfe_u32 v{u}, v1, 4, 1
    v_bfe_u32 v{h}, v1, 1, 1
    v_lshl_add_u32 v{u}, v{u}, 1, v{h}""")
    if tile_sgpr is not None:
        k(f"s_lshl_b32 s{sT}, s{tile_sgpr}, 2\nv_add_u32 v{u}, s{sT}, v{u}")
    k(f"""v_xor_b32 v{u}, v{u}, v{t}
    v_lshl_add_u32 v{dst}, v{u}, 4, v{dst}
    v_and_b32 v{u}, 1, v1
    v_lshl_add_u32 v{dst}, v{u}, 3, v{dst}""")
    for r in (t, u, h):
        va.put(r)


def g46_scalars(c):
    c.k(f"""s_lshr_b32 s{sT}, s{sT0}, 5
    s_lshl_b32 s{sT+1}, s{sRH}, 1
    s_add_u32 s{sT+1}, s{sT+1}, s{sKH}          ; tb'
    s_add_u32 s{sT}, s{sT}, s{sT+1}             ; t32
    s_lshl_b32 s{sT+2}, s{sT}, 16
    s_lshl_b32 s{sT+3}, s{sTQ}, 11
    s_add_u32 s{sT+2}, s{sT+2}, s{sT+3}
    s_add_u32 s{sHB}, s{sT+2}, {WS_H}
    s_lshl_b32 s{sT+1}, s{sT+1}, 1
    s_lshr_b32 s{sT+3}, s{sW}, 2
    s_add_u32 s{sT+1}, s{sT+1}, s{sT+3}
    s_lshl_b32 s{sT+3}, s{sT+1}, 5
    s_add_u32 s{sT+3}, s{sT+3}, s{sFL}
    s_add_u32 s{sA}, s{sT+3}, 2048
    s_lshl_b32 s{sT+3}, s{sT+1}, 6
    s_add_u32 s{sT+3}, s{sT+3}, s{sFL}
    s_add_u32 s{sB}, s{sT+3}, 3072""")


def h_load(c, g, dst, n):
    r, b = n >> 1, n & 1
    c.k(rotk(r, 6, sHB, sRC) + f"""buffer_load_dwordx4 {vr(dst,4)}, v{g.vL16}, s[{sWS}:{sWS+3}], s{sT+8} offen offset:{b*1024} sc1""")


def f1_issue(c, g):
    c.k(f"""s_lshl_b32 s{sT}, s{sTQ}, 7
    s_add_u32 s{sT}, s{sT}, s{sFL}
    s_add_u32 s{sA}, s{sT}, 1024""")
    g.p1 = c.poll_issue(g, sA, 32)


def g3(c, g, sc, pre_poll, f2flag):
    k, va, o = c.k, c.va, c.opts
    stop = o.get("stop", 99)
    xf = va.get(64)
    ps = va.get(8)
    a3 = [[va.get() for j in range(4)] for a in range(2)]
    vps = va.get()
    tr32_lane(c, a3[0][0], sKH)
    fx = lambda x: ((x >> 1) << 12) | ((x & 1) << 10)
    k(f"""s_lshr_b32 s{sT}, s{sTQ}, 1
    s_lshl_b32 s{sT}, s{sT}, 12
    s_and_b32 s{sT+1}, s{sTQ}, 1
    s_lshl_b32 s{sT+1}, s{sT+1}, 10
    s_or_b32 s{sT}, s{sT}, s{sT+1}
    s_mov_b32 s{sB}, {U(10)}
    s_cmp_eq_u32 s{sKHP}, 0
    s_cselect_b32 s{sT+1}, {U(14)}, {U(0)}
    s_cselect_b32 s{sB}, {(U(6) - U(14)) & 0xffffffff}, s{sB}
    s_add_u32 s{sT}, s{sT}, s{sT+1}
    v_add_u32 v{a3[0][0]}, s{sT}, v{a3[0][0]}
    v_xor_b32 v{a3[1][0]}, 64, v{a3[0][0]}
    v_and_b32 v{vps}, 31, v1
    v_lshrrev_b32 v{ps}, 5, v1
    v_lshlrev_b32 v{ps}, 10, v{ps}
    v_lshl_add_u32 v{vps}, v{vps}, 3, v{ps}
    s_lshr_b32 s{sT}, s{sT0}, 5
    s_add_u32 s{sT}, s{sT}, s{sTQ}              ; t32
    s_mul_i32 s{sUB}, s{sT}, {112*1024}
    s_lshl_b32 s{sT+1}, s{sJ3B}, 5
    s_add_u32 s{sUB}, s{sUB}, s{sT+1}
    s_lshl_b32 s{sT+1}, s{sKH}, 11
    s_add_u32 s{sUB}, s{sUB}, s{sT+1}
    s_add_u32 s{sUB}, s{sUB}, {WS_U}
    s_lshl_b32 s{sT}, s{sT}, 1
    s_add_u32 s{sT}, s{sT}, s{sKH}
    s_lshl_b32 s{sT+1}, s{sT}, 11
    s_add_u32 s{sT+4}, s{sT+1}, {WS_PS}
    s_lshl_b32 s{sT}, s{sT}, 14
    s_add_u32 s{sD}, s{sT}, {WS_X1}""")
    for a in range(2):
        for j in range(1, 4):
            k(f"v_xor_b32 v{a3[a][j]}, {fx(j)}, v{a3[a][0]}")
    late_srds(c)
    s4 = sel_make(c)
    t, u = va.get(), va.get()
    vxw, vsx, vcp = va.get(), va.get(), va.get()
    k(f"""v_lshrrev_b32 v{t}, 4, v1
    v_and_b32 v{u}, 1, v1
    v_lshl_add_u32 v{t}, v{u}, 2, v{t}
    s_lshl_b32 s{sT}, s{sW}, 2
    s_lshl_b32 s{sT+1}, s{sKH}, 10
    s_add_u32 s{sT}, s{sT}, s{sT+1}
    s_add_u32 s{sT}, s{sT}, {CSP}
    v_lshl_add_u32 v{vcp}, v{t}, 7, s{sT}
    v_and_b32 v{u}, 31, v1
    s_lshl_b32 s{sT}, s{sW}, 8
    s_add_u32 s{sT}, s{sT}, {ST_A}
    v_lshl_add_u32 v{vsx}, v{u}, 3, s{sT}""")
    sel(k, sT, sTQ, [U(x) for x in XR])
    k(f"""s_lshl_b32 s{sT+1}, s{sKH}, 12
    s_add_u32 s{sT}, s{sT}, s{sT+1}
    v_add_u32 v{vxw}, s{sT}, v{g.vL16}""")
    va.put(t); va.put(u)
    if pre_poll:
        pre_poll()
    if f2flag:
        f2flag()
    c.stamp(9)
    c.poll_check(g, g.p1)
    c.stamp(10)

    def x_load(i):
        c.k(f"""s_xor_b32 s{sT+7}, s{sTQ}, {i}
        s_lshl_b32 s{sT+7}, s{sT+7}, 10
        s_add_u32 s{sT+7}, s{sT+7}, s{sD}
        buffer_load_dwordx4 {vr(xf+4*i,4)}, v{g.vL16}, s[{sWS}:{sWS+3}], s{sT+7} offen sc1""")
    D = o.get("d3", 5)
    for i in range(D):
        x_load(i)
    for i in range(4):
        k(f"buffer_load_dwordx2 {vr(ps+2*i,2)}, v{vps}, s[{sWS}:{sWS+3}], s{sT+4} offen offset:{256*i} sc1")
    va.put(vps)
    k.waitvm("w3_1_7")
    k.waitvm("w3_0_7")
    bar(c)
    c.stamp(11)
    acc = [[va.get(16), va.get(16)] for ph in range(2)]
    cs = [va.get(4), va.get(4)]
    NB = 3
    fa = [va.get(8) for _ in range(NB)]
    pipe = Pipe()

    def reads(i):
        for a in (1, 0):
            for uu in range(2):
                c.k(f"ds_read_b64_tr_b16 {vr(fa[i%NB]+4*a+2*uu,2)}, v{a3[a][i&3]} offset:{(i>>2)*8192 + 2048*uu}")

    def mfs(ph, i):
        for a in (1, 0):
            mf32(c.k, acc[ph][a], fa[i % NB] + 4 * a, xf + 4 * i, i == 0)
        if (i & 3) == 0:
            for a in range(2):
                mf16(c.k, cs[a], fa[i % NB] + 4 * a, s4, i == 0)

    def cs_write():
        k = c.k
        t = va.get()
        k(f"""s_lshl_b32 s{sT}, s{sKH}, 11
        s_sub_u32 s{sT}, 1024, s{sT}
        v_add_u32 v{t}, s{sT}, v{vcp}""")
        exec_sel(k)
        for a, r_ in ((0, vcp), (1, t)):
            for r in (0, 2):
                k(f"ds_write2_b32 v{r_}, v{cs[a]+r}, v{cs[a]+r+1} offset0:{8*r} offset1:{8*r+8}")
        k("s_mov_b64 exec, -1")
        va.put(t)

    for i in range(16):
        reads(i)
        if i + D < 16:
            x_load(i + D)
        pipe.push(lambda i=i: mfs(0, i))
        pipe.drain(2)
    pipe.drain()
    k(f"""v_add_f32 v{ps}, v{ps}, v{ps+2}
    v_add_f32 v{ps+1}, v{ps+1}, v{ps+3}
    v_add_f32 v{ps+4}, v{ps+4}, v{ps+6}
    v_add_f32 v{ps+5}, v{ps+5}, v{ps+7}
    v_add_f32 v{ps}, v{ps}, v{ps+4}
    v_add_f32 v{ps+1}, v{ps+1}, v{ps+5}
    v_mov_b32 v{ps+2}, v{ps}
    v_mov_b32 v{ps+3}, v{ps+1}
    v_permlane32_swap_b32 v{ps}, v{ps+2}
    v_permlane32_swap_b32 v{ps+1}, v{ps+3}
    v_add_f32 v{ps}, v{ps}, v{ps+2}
    v_add_f32 v{ps+1}, v{ps+1}, v{ps+3}
    ds_write_b64 v{vsx}, {vr(ps,2)}
    v_xor_b32 v{vsx}, 256, v{vsx}""")
    for a in range(2):
        for j in range(4):
            k(f"v_add_u32 v{a3[a][j]}, s{sB}, v{a3[a][j]}")
    k(f"""s_lshl_b32 s{sT}, s{sW}, 6
    s_lshr_b32 s{sT+1}, s{sJ3B}, 6
    s_add_u32 s{sT}, s{sT}, s{sT+1}
    s_add_u32 s{sT}, s{sT}, s{sFL}
    s_add_u32 s{sD}, s{sT}, 3072""")
    g46_scalars(c)
    if stop >= 5:
        g.p2 = c.poll_issue(g, sA, 8)
    cs_write()
    k(f"v_add_u32 v{vcp}, 2048, v{vcp}")
    c.stamp(12)
    bar(c)
    for i in range(4):
        k(f"ds_write_b128 v{vxw}, {vr(acc[0][1]+4*i,4)} offset:{1024*i}")
    sc.release([14, 15, 16, 0, 1, 2, 3])
    todoA = sc.next() if stop >= 5 else []
    ab = va.get(2)
    vcs = va.get()

    def epilogue(ph):
        k = c.k
        A, X = acc[ph][0], acc[ph][1]
        xr = va.get()
        k(f"v_xor_b32 v{xr}, 4096, v{vxw}")
        for i in range(4):
            k(f"ds_read_b128 {vr(X+4*i,4)}, v{xr} offset:{1024*i}")
        x = va.get(4)
        p8 = va.get(8)
        tt = xr
        if ph == 0:
            k(f"ds_read_b64 {vr(ps+2,2)}, v{vsx}")
        k(f"""v_lshlrev_b32 v{tt}, 5, v1
        v_add_u32 v{tt}, {CSP + 2048*ph}, v{tt}
        ds_read_b128 {vr(p8,4)}, v{tt}
        ds_read_b128 {vr(p8+4,4)}, v{tt} offset:16
        v_add_u32 v{tt}, {CS3 + 256*ph}, v{g.vL4}
        v_add_f32 v{p8}, v{p8}, v{p8+1}
        v_add_f32 v{p8+2}, v{p8+2}, v{p8+3}
        v_add_f32 v{p8+4}, v{p8+4}, v{p8+5}
        v_add_f32 v{p8+6}, v{p8+6}, v{p8+7}
        v_add_f32 v{p8}, v{p8}, v{p8+2}
        v_add_f32 v{p8+4}, v{p8+4}, v{p8+6}
        v_add_f32 v{p8}, v{p8}, v{p8+4}
        ds_write_b32 v{tt}, v{p8}""")
        if ph == 0:
            k(f"""v_lshrrev_b32 v{vcs}, 5, v1
            s_lshl_b32 s{sT}, s{sKH}, 7
            s_add_u32 s{sT}, s{sT}, {CS3}
            v_lshl_add_u32 v{vcs}, v{vcs}, 4, s{sT}
            v_add_f32 v{ps}, v{ps}, v{ps+2}
            v_add_f32 v{ps+1}, v{ps+1}, v{ps+3}
            v_mul_f32 v{x}, {fhex(1/512)}, v{ps}
            v_mul_f32 v{x+1}, v{x}, v{x}
            v_fma_f32 v{x+1}, v{ps+1}, s{sI512}, -v{x+1}
            v_max_f32 v{x+1}, 0, v{x+1}""")
            c.bf16r(x, x)
            c.bf16r(x + 1, x + 1)
            k(f"v_add_f32 v{x+1}, {fhex(EPS)}, v{x+1}")
            c.bf16r(x + 1, x + 1)
            k(f"v_sqrt_f32 v{x+1}, v{x+1}")
            c.bf16r(x + 1, x + 1)
            k(f"""v_rcp_f32 v{ab}, v{x+1}
            v_mul_f32 v{ab+1}, v{x}, v{ab}""")
        for r in range(16):
            k(f"v_add_f32 v{A+r}, v{A+r}, v{X+r}")
        for i in range(4):
            k(f"ds_read_b128 {vr(X+4*i,4)}, v{vcs} offset:{256*ph+32*i}")
        for r in range(16):
            k(f"""v_mul_f32 v{X+r}, v{ab+1}, v{X+r}
            v_fma_f32 v{A+r}, v{ab}, v{A+r}, -v{X+r}""")
        kk = X + 8
        k(f"v_mov_b32 v{kk}, {fhex(-K1)}")
        for e in range(2):
            xs = [A + 8 * e + r for r in range(8)]
            ts = [X + r for r in range(8)]
            for op in ("v_mul_f32 v{t}, v{x}, v{x}", "v_fma_f32 v{t}, v{t}, s%d, v%d" % (sK3, kk), "v_mul_f32 v{t}, v{t}, v{x}",
                       "v_exp_f32 v{t}, v{t}", "v_add_f32 v{t}, 1.0, v{t}", "v_rcp_f32 v{t}, v{t}", "v_mul_f32 v{x}, v{x}, v{t}"):
                for x_, t_ in zip(xs, ts):
                    k(op.format(t=t_, x=x_))
            P = X + 12 if e == 0 else p8
            for i in range(4):
                k(f"v_cvt_pk_bf16_f32 v{P+i}, v{xs[2*i]}, v{xs[2*i+1]}")
            k(f"s_add_u32 s{sT+4}, s{sUB}, {4096*ph}")
            k(f"buffer_store_dwordx4 {vr(P,4)}, v{g.vL16}, s[{sWS}:{sWS+3}], s{sT+4} offen offset:{1024*e} sc1", tag=f"ust{ph}")
        return [(x, 4), (p8, 8), (xr, 1)]

    held = []
    fill = capture(c, lambda: held.extend(epilogue(0)))

    def pass2():
        k = c.k
        pipe = Pipe()
        for i in range(16):
            reads(i)
            if todoA:
                todoA.pop(0)()
            if i == 1:
                bar(c)
            if i == 2 and stop >= 5:
                c.poll_check(g, g.p2)
            if i == o.get("c3", 9):
                bar(c)

            def mf(i=i):
                mfs(1, i)
                if stop >= 5:
                    h_load(c, g, xf + 4 * i, i)
            pipe.push(mf)
            pipe.drain(2)
        pipe.drain()
    main = capture(c, pass2)
    splice(k, main, fill, o.get("per3", 7), start=0)
    for b, n in held:
        va.put(b, n)
    c.stamp(13)
    for f in fa:
        va.put(f, 8)
    for a in range(2):
        for j in range(4):
            va.put(a3[a][j])
        va.put(acc[0][a], 16)
    for i in range(4):
        k(f"ds_write_b128 v{vxw}, {vr(acc[1][1]+4*i,4)} offset:{1024*i}")
    cs_write()
    va.put(cs[0], 4); va.put(cs[1], 4); va.put(s4, 4); va.put(vcp); va.put(vsx); va.put(ps, 8)
    k.waitvm("ust0")
    c.flag(g, sD)
    k(f"s_add_u32 s{sD}, s{sD}, 512")
    held = []
    fill = capture(c, lambda: held.extend(epilogue(1)))
    held += [(ab, 2), (vcs, 1), (vxw, 1), (acc[1][0], 16), (acc[1][1], 16)]

    def f3b():
        c.k.waitvm("ust1")
        c.flag(g, sD)
    return xf, f3b, fill, held


def g64(c, g, sc, xf, f3b, fill, held):
    k, va, o = c.k, c.va, c.opts
    aC = [va.get(), va.get()]
    aW = [va.get(), va.get()]
    t, u = va.get(), va.get()
    k(f"""v_and_b32 v{t}, 31, v1
    v_bfe_u32 v{u}, v1, 1, 3
    s_lshl_b32 s{sT}, s{sTQ}, 1
    v_xor_b32 v{u}, s{sT}, v{u}
    v_lshlrev_b32 v{u}, 4, v{u}
    v_lshl_add_u32 v{aC[0]}, v{t}, 7, v{u}
    v_lshrrev_b32 v{u}, 5, v1
    v_lshl_add_u32 v{aC[0]}, v{u}, 13, v{aC[0]}
    v_xor_b32 v{aC[1]}, 16, v{aC[0]}""")
    tr32_lane(c, aW[0], None)
    k(f"""s_lshl_b32 s{sT}, s{sTQ}, 11
    v_add_u32 v{aW[0]}, s{sT}, v{aW[0]}
    v_xor_b32 v{aW[1]}, 64, v{aW[0]}
    s_lshr_b32 s{sT}, s{sT0}, 5
    s_lshl_b32 s{sT+1}, s{sRH}, 1
    s_add_u32 s{sT+1}, s{sT+1}, s{sKH}
    s_add_u32 s{sT}, s{sT}, s{sT+1}             ; t32
    s_mul_i32 s{sHB}, s{sT}, {112*1024}
    s_add_u32 s{sHB}, s{sHB}, {WS_U}
    s_lshl_b32 s{sT+1}, s{sTQ}, 10
    s_add_u32 s{sHB}, s{sHB}, s{sT+1}""")
    va.put(t); va.put(u)
    for a in aC + aW:
        c.pre_hi(a)
    acc6 = [va.get(16), va.get(16)]
    acc4 = []
    NB = 3
    fa = [va.get(8) for _ in range(NB)]
    pool = [va.get(4) for _ in range(o.get("pool", 4))]
    ufr = {}
    steps = [[("C", r)] for r in range(8)] + [[("W", 2 * i), ("W", 2 * i + 1)] for i in range(14)]
    pipe = Pipe()
    rel = {0: list(range(6, 14)), 1: list(XR)} if fill is not None else {0: [4, 5, 18]}
    S = dict(prev=[], nblk=0, ul=0, dump6=None, red6=None)
    fin = {}
    S0 = fill is None
    us = [o.get("us0", 1), o.get("us1", 9)] if not S0 else [o.get("zs0", 7), o.get("zs1", 9)]
    P3I = {max(us[0] - 1, 0): 0, us[1] - 1: 1}

    def u_load(n):
        ph, j3 = n // 14, n % 14
        r = pool.pop(0)
        ufr[n] = r
        c.k(f"""s_add_u32 s{sT+7}, s{sRU}, {(8*j3+4*ph)*1024}
        s_sub_u32 s{sT+8}, s{sT+7}, {14*8192}
        s_min_u32 s{sT+7}, s{sT+7}, s{sT+8}
        s_add_u32 s{sT+7}, s{sT+7}, s{sHB}
        buffer_load_dwordx4 {vr(r,4)}, v{g.vL16}, s[{sWS}:{sWS+3}], s{sT+7} offen sc1""")

    def step(n):
        k = c.k
        st = steps[n]
        c.stamp(24 + n)
        for it in st:
            k.waitvm(f"{it[0]}{it[1]}")
        bar(c)
        sc.release(S["prev"] + rel.get(n, []))
        S["prev"] = [u_ for it in st for u_ in sc.units(it)]
        todo = sc.next()
        if n == o.get("f3bs", 7) and f3b:
            f3b()
        if n in P3I:
            ph = P3I[n]
            k(f"s_add_u32 s{sA}, s{sB}, {512*ph}")
            g.p3 = c.poll_issue(g, sA, 14)
        for ph in range(2):
            if n == us[ph]:
                c.poll_check(g, g.p3)
        nu = o.get("uper", 3)
        for b in range(2):
            buf = fa[S["nblk"] % NB]
            S["nblk"] += 1
            if n < 8:
                for a in range(2):
                    c.dsr("ds_read_b128", buf + 4 * a, 4, aC[b], U(sc.unit[st[0]]) + 4096 * a)
                fr_ = xf + 4 * (2 * n + b)
                A = acc6
                z = n == 0 and b == 0
            else:
                for a in range(2):
                    for uu in range(2):
                        c.dsr("ds_read_b64_tr_b16", buf + 4 * a + 2 * uu, 2, aW[a], U(sc.unit[st[b]]) + 1024 * uu)
                fr_ = ufr[st[b][1]]
                A = acc4
                z = n == 8 and b == 0
            for _ in range((len(todo) + 1 - b) // (2 - b) if b == 0 else len(todo)):
                todo.pop(0)()

            def mf(buf=buf, fr_=fr_, A=A, z=z):
                for a in range(2):
                    mf32(c.k, A[a], buf + 4 * a, fr_, z)
                pool.append(fr_)
            pipe.push(mf)
            pipe.drain(1)
            cnt = (nu + 1) // 2 if b == 0 else nu // 2
            while cnt > 0 and S["ul"] < 28 and pool and n >= us[S["ul"] // 14]:
                u_load(S["ul"])
                S["ul"] += 1
                cnt -= 1
        if n >= 7:
            assert S["ul"] >= min(28, 2 * (n - 7) + 2 * (1 if S0 else o.get("umin", 3))), (n, S["ul"])
        if n == o.get("fls", 14):
            final_loads(c, g, fin)
        if S["dump6"] is not None and S["red6"] is None and n > S["dump6"][1]:
            S["red6"] = reduce_read(c, g, fin, S["dump6"][0])
            final_s(c, g, fin, S["red6"])
            fin["rel"] = n
        if S["dump6"] is None and n >= 9 and "x" in fin and all(it in sc.unit for it in sc.items) and len(sc.free) >= 8:
            us_ = sorted(sc.free)[:8]
            sc.free -= set(us_)
            reduce_write(c, g, fin, acc6, us_)
            S["dump6"] = (us_, n)
    if fill is not None:
        step(0) if o.get("st0") else None
        main = capture(c, lambda: [step(n) for n in range(1 if o.get("st0") else 0, 8)])
        splice(k, main, fill, o.get("per4", 12))
        for b, n in held:
            va.put(b, n)
    else:
        for n in range(8):
            step(n)
    acc4 += [va.get(16), va.get(16)]
    for n in range(8, 22):
        step(n)
    pipe.drain()
    c.stamp(46)
    assert S["red6"] is not None
    if fin["rel"] < len(steps) - 1:
        sc.release(S["dump6"][0])
    us_ = sorted(sc.free)[:8]
    assert len(us_) == 8
    reduce_write(c, g, fin, acc4, us_)
    bar(c)
    c.stamp(47)
    z = reduce_read(c, g, fin, us_)
    final_out(c, g, fin, S["red6"], z)


def final_loads(c, g, fin):
    k, va = c.k, c.va
    x, x1, dk = va.get(4), va.get(4), va.get(4)
    ma = va.get(2)
    t, u, cq = va.get(), va.get(), va.get()
    vo = va.get()
    srd(k, sMI, P_DSK, 1024)
    k(f"""v_lshrrev_b32 v{t}, 3, v1                   ; row8
    v_and_b32 v{cq}, 7, v1
    v_lshlrev_b32 v{u}, 3, v{cq}
    buffer_load_dwordx2 {vr(dk,2)}, v{u}, s[{sMI}:{sMI+3}], s{sC128} offen
    buffer_load_dwordx2 {vr(dk+2,2)}, v{u}, s[{sMI}:{sMI+3}], s{sC128} offen offset:64
    v_lshl_add_u32 v{vo}, v{t}, 10, v{u}
    s_lshl_b32 s{sT}, s{sRH}, 6
    s_lshl_b32 s{sT+1}, s{sKH}, 5
    s_add_u32 s{sT}, s{sT}, s{sT+1}
    s_lshl_b32 s{sT+1}, s{sTQ}, 3
    s_add_u32 s{sT}, s{sT}, s{sT+1}
    s_add_u32 s{sT+1}, s{sT}, s{sT0}
    s_lshl_b32 s{sT+1}, s{sT+1}, 10
    s_add_u32 s{sUB}, s{sT+1}, s{sC128}
    buffer_load_dwordx2 {vr(x,2)}, v{vo}, s[{sX}:{sX+3}], s{sUB} offen
    buffer_load_dwordx2 {vr(x+2,2)}, v{vo}, s[{sX}:{sX+3}], s{sUB} offen offset:64
    s_lshl_b32 s{sT}, s{sT}, 3
    s_add_u32 s{sT}, s{sT}, {ST_C + 16}
    v_lshl_add_u32 v{u}, v{t}, 3, s{sT}
    ds_read_b64 {vr(ma,2)}, v{u}
    v_lshlrev_b32 v{t}, 4, v{t}
    v_and_b32 v{u}, 1, v{cq}
    v_lshl_add_u32 v{t}, v{u}, 9, v{t}
    v_bfe_u32 v{u}, v{cq}, 1, 1
    v_lshl_add_u32 v{t}, v{u}, 10, v{t}
    v_lshrrev_b32 v{u}, 2, v{cq}
    v_lshl_add_u32 v{t}, v{u}, 3, v{t}
    s_lshr_b32 s{sT}, s{sT0}, 5
    s_lshl_b32 s{sT+1}, s{sRH}, 1
    s_add_u32 s{sT}, s{sT}, s{sT+1}
    s_add_u32 s{sT}, s{sT}, s{sKH}
    s_lshl_b32 s{sT}, s{sT}, 15
    s_lshl_b32 s{sT+1}, s{sC}, 12
    s_add_u32 s{sT}, s{sT}, s{sT+1}
    s_lshl_b32 s{sT+1}, s{sTQ}, 7
    s_add_u32 s{sT}, s{sT}, s{sT+1}
    s_add_u32 s{sT}, s{sT}, {WS_X1}
    buffer_load_dwordx2 {vr(x1,2)}, v{t}, s[{sWS}:{sWS+3}], s{sT} offen sc1
    buffer_load_dwordx2 {vr(x1+2,2)}, v{t}, s[{sWS}:{sWS+3}], s{sT} offen offset:2048 sc1
    v_lshlrev_b32 v{vo}, 1, v{vo}
    s_lshl_b32 s{sUB}, s{sUB}, 1""")
    vw, vr0, vr1 = va.get(), va.get(), va.get()
    k(f"""v_and_b32 v{t}, 7, v1
    v_bfe_u32 v{u}, v1, 1, 1
    v_lshl_add_u32 v{t}, v{u}, 3, v{t}          ; swz(t)
    v_lshrrev_b32 v{u}, 5, v1
    v_xor_b32 v{t}, v{t}, v{u}
    v_lshlrev_b32 v{t}, 4, v{t}
    v_and_b32 v{u}, 31, v1
    v_lshl_add_u32 v{vw}, v{u}, 8, v{t}
    v_lshrrev_b32 v{t}, 3, v1                   ; row8
    v_bfe_u32 v{u}, v1, 4, 1
    v_lshl_add_u32 v{u}, v{u}, 3, v{t}          ; swz(row)
    v_xor_b32 v{u}, v{u}, v{cq}
    v_lshlrev_b32 v{u}, 4, v{u}
    v_lshl_add_u32 v{vr0}, v{t}, 8, v{u}
    s_lshl_b32 s{sT}, s{sTQ}, 11
    v_add_u32 v{vr0}, s{sT}, v{vr0}
    v_xor_b32 v{vr1}, 128, v{vr0}""")
    for r in (t, u, cq):
        va.put(r)
    fin.update(x=x, x1=x1, dk=dk, ma=ma, vo=vo, vw=vw, vr=(vr0, vr1))


def reduce_write(c, g, fin, acc, us):
    k, va = c.k, c.va
    b, t = va.get(), [va.get(), va.get()]
    sel(k, sT, sW, [U(x) for x in us])
    k(f"v_add_u32 v{b}, s{sT}, v{fin['vw']}")
    n = 0
    for a in range(2):
        for i in range(4):
            ad = b
            if a or i:
                ad = t[n & 1]
                k(f"v_xor_b32 v{ad}, {(8*a+2*i)*16}, v{b}")
            k(f"ds_write_b128 v{ad}, {vr(acc[a]+4*i,4)}")
            n += 1
    va.put(b); va.put(t[0]); va.put(t[1])
    fin["accfree"] = acc


def reduce_read(c, g, fin, us):
    k, va = c.k, c.va
    acc = fin["accfree"]
    t = [va.get(), va.get()]
    for kg in range(4):
        k(f"s_mov_b32 s{sT}, {U(us[2*kg+1])}\ns_cmp_eq_u32 s{sKH}, 0\ns_cselect_b32 s{sT}, {U(us[2*kg])}, s{sT}")
        for e in range(2):
            k(f"""v_add_u32 v{t[e]}, s{sT}, v{fin['vr'][e]}
            ds_read_b128 {vr(acc[e]+4*kg,4)}, v{t[e]}""")
    for e in range(2):
        for r in range(4):
            k(f"""v_add_f32 v{acc[e]+r}, v{acc[e]+r}, v{acc[e]+4+r}
            v_add_f32 v{acc[e]+8+r}, v{acc[e]+8+r}, v{acc[e]+12+r}""")
        for r in range(4):
            k(f"v_add_f32 v{acc[e]+r}, v{acc[e]+r}, v{acc[e]+8+r}")
    va.put(t[0]); va.put(t[1])
    return acc


def final_s(c, g, fin, s_):
    k, va = c.k, c.va
    xn = s_[0] + 4
    norm_pairs(c, xn, fin["x"], 4, fin["ma"])
    lo, hi, d0, d1 = s_[0] + 8, s_[0] + 9, s_[0] + 10, s_[0] + 11
    for i in range(4):
        s0 = s_[i >> 1] + 2 * (i & 1)
        k(f"""v_lshlrev_b32 v{lo}, 16, v{xn+i}
        v_and_b32 v{hi}, 0xffff0000, v{xn+i}
        v_lshlrev_b32 v{d0}, 16, v{fin['dk']+i}
        v_and_b32 v{d1}, 0xffff0000, v{fin['dk']+i}
        v_mul_f32 v{lo}, v{lo}, v{d0}
        v_mul_f32 v{hi}, v{hi}, v{d1}
        v_cvt_pk_bf16_f32 v{d0}, v{lo}, v{hi}
        v_lshlrev_b32 v{lo}, 16, v{d0}
        v_and_b32 v{hi}, 0xffff0000, v{d0}
        v_add_f32 v{s0}, v{s0}, v{lo}
        v_add_f32 v{s0+1}, v{s0+1}, v{hi}""")
    xs = [s_[i >> 2] + 4 + (i & 3) for i in range(8)]
    x1s = [s_[i >> 2] + 8 + (i & 3) for i in range(8)]
    for i in range(4):
        k(f"""v_lshlrev_b32 v{xs[2*i]}, 16, v{fin['x']+i}
        v_and_b32 v{xs[2*i+1]}, 0xffff0000, v{fin['x']+i}
        v_lshlrev_b32 v{x1s[2*i]}, 16, v{fin['x1']+i}
        v_and_b32 v{x1s[2*i+1]}, 0xffff0000, v{fin['x1']+i}""")
    fin.update(xs=xs, x1s=x1s)
    srd(k, sMI, P_OUT, 2048 * 2048)


def final_out(c, g, fin, s_, z_):
    k = c.k
    for e in range(2):
        z = [z_[e] + r for r in range(4)]
        ex = [z_[e] + 4 + r for r in range(4)]
        for r in range(4):
            k(f"v_add_f32 v{z[r]}, v{z[r]}, v{fin['x1s'][4*e+r]}")
        for r in range(4):
            k(f"v_mul_f32 v{ex[r]}, {fhex(-LOG2E)}, v{z[r]}")
        for r in range(4):
            k(f"v_exp_f32 v{ex[r]}, v{ex[r]}")
        for r in range(4):
            k(f"v_mul_f32 v{z[r]}, v{z[r]}, v{s_[e]+r}")
        for r in range(4):
            k(f"v_add_f32 v{ex[r]}, 1.0, v{ex[r]}")
        for r in range(4):
            k(f"v_rcp_f32 v{ex[r]}, v{ex[r]}")
        for r in range(4):
            k(f"v_fma_f32 v{ex[r]}, v{z[r]}, v{ex[r]}, v{fin['xs'][4*e+r]}")
        k(f"buffer_store_dwordx4 {vr(ex[0],4)}, v{fin['vo']}, s[{sMI}:{sMI+3}], s{sUB} offen offset:{128*e}")


def path(c, g, kind):
    k, va, o = c.k, c.va, c.opts
    stop = o.get("stop", 99)
    sc = Sched(c, g)
    f1 = f2 = None
    if kind == "M":
        f1 = m_path(c, g)
        if stop < 2:
            return
    else:
        p1_S(c, g, kind == "S3", sc)
        if stop < 3:
            return
        e_loads(c, g)
        scan2a(c, g)
        bar(c)
        c.stamp(8)
        hooks = {}
        if kind == "S3" and stop >= 4:
            hooks[o.get("f1i", 9)] = lambda: f1_issue(c, g)
        scan2b(c, g, hooks)
        k(f"s_mov_b32 s{sHB}, s{sUB}")

        def f2():
            c.k.waitvm("hst")
            c.flag(g, sHB)
    if stop < 4:
        if f1:
            f1()
        if f2:
            f2()
        return
    if kind != "S0":
        xf, f3b, fill, held = g3(c, g, sc, f1, f2)
    else:
        f2()
        f3b = fill = held = None
        if stop < 5:
            return
        g46_scalars(c)
        g.p2 = c.poll_issue(g, sA, 8)
        xf = va.get(64)
        c.poll_check(g, g.p2)
        for i in range(16):
            h_load(c, g, xf + 4 * i, i)
    if stop < 5:
        bar(c)
        k.items.extend(fill)
        f3b()
        return
    g64(c, g, sc, xf, f3b, fill, held)
    if kind == "S3":
        lab = k.label("L_nn")
        k(f"""s_cmp_lg_u32 s2, 143
        s_cbranch_scc1 {lab}
        s_cmp_lg_u32 s{sW}, 0
        s_cbranch_scc1 {lab}""")
        k.region_begin()
        k(f"""s_mov_b32 s{sT}, {WS_NONCE}
        s_mov_b64 exec, 1
        buffer_store_dword v{g.vNON}, off, s[{sWS}:{sWS+3}], s{sT} sc1""")
        k.region_end()
        k(f"{lab}:")
    c.stamp(48)
```

```python
import sys, struct
sys.path.insert(0, "dev")
from ag import Prog, Ins

NAME = "recurrent_scan__ssm_conv_s5__mixer_s_mlp__prompt"
WS_HP = 0x000000
WS_X1 = 0x200000
WS_H = 0x400000
WS_U = 0x800000
WS_E = 0x1000000
WS_PS = 0x1040000
WS_RS = 0x10C0000
WS_FL = 0x1100000
WS_NONCE = 0x1200000
WS_STAMP = 0x1300000
LDS_BYTES = 163840
NU = 19
MISC = 155648
ST_A = MISC
ST_B = MISC + 1056
ST_C = MISC + 2112
CSB = MISC + 3168
CSP = CSB
MODE = MISC + 7264
CS3 = MISC + 7296
K1 = 2.0 * 0.7978845608028654 * 1.4426950408889634
K3 = K1 * 0.044715
EPS = 1e-5
SPIN = 20000
ROT = 15
LOG2E = 1.4426950408889634

P_X, P_LRE, P_LIM, P_BRE, P_BIM, P_CRE, P_CIM, P_LDT = 4, 6, 8, 10, 12, 14, 16, 18
P_DSK, P_W1, P_W2, P_W3, P_W4, P_OUT, P_DBG, P_WS = 20, 24, 26, 28, 30, 32, 34, 36
sX, sWS, sWA, sWB, sWC, sWD, sMI = 40, 44, 48, 52, 56, 60, 64
(sG, sJ, sW, sT0, sNON, sRH, sC, sW1K, sI512, sK3, sONE, sC128, sMODE, sFL, sXCC, sTQ, sKH,
 sJ3B, sCrow, sHB, sUB, sA, sB, sD) = range(68, 92)
sT = 92
sR128, sKHP, sJ3Bp, sJ3Bm, sC128p, sC128m = 22, 23, 34, 35, 0, 1
sRC, sRW, sRU = 22, 0, 1


def U(i):
    return i * 8192


def fhex(x):
    return "0x%08x" % struct.unpack("<I", struct.pack("<f", x))[0]


def srd(k, s, p, nbytes):
    k(f"""s_mov_b32 s{s}, s{p}
    s_mov_b32 s{s+1}, s{p+1}
    s_mov_b32 s{s+2}, {nbytes}
    s_mov_b32 s{s+3}, 0x00020000""")


class VA:
    def __init__(self, lo=2, hi=256):
        self.free = list(range(lo, hi))
        self.peak = 0
        self.n0 = hi - lo
    def clone(self):
        v = VA(0, 0)
        v.free = list(self.free)
        v.n0 = self.n0
        return v
    def get(self, n=1, align=1):
        if n > 1 and align == 1:
            align = 4 if n >= 4 else 2
        fs = set(self.free)
        cand = self.free if n > 1 else self.free[::-1]
        for b in cand:
            if b % align == 0 and all((b + i) in fs for i in range(n)):
                for i in range(n):
                    self.free.remove(b + i)
                self.peak = max(self.peak, self.n0 - len(self.free))
                return b
        raise RuntimeError(f"out of VGPRs (n={n}, free={len(self.free)})")
    def put(self, b, n=1):
        for i in range(n):
            assert (b + i) not in self.free, b + i
            self.free.append(b + i)
        self.free.sort()


def vr(b, n):
    return f"v[{b}:{b+n-1}]" if n > 1 else f"v{b}"


class Pipe:
    def __init__(self):
        self.q = []
    def push(self, fn):
        self.q.append(fn)
    def drain(self, keep=0):
        while len(self.q) > keep:
            self.q.pop(0)()


class Ctx:
    def __init__(self, role, opts, va):
        self.k = Prog(role)
        self.role = role
        self.va = va
        self.hi = {}
        self.opts = opts
        self.nd = 0

    def ds(self, base, absoff):
        h = absoff >> 16
        imm = absoff & 0xFFFF
        if h == 0:
            r = base
        else:
            if (base, h) not in self.hi:
                r = self.va.get()
                self.k(f"v_add_u32 v{r}, {h << 16}, v{base}")
                self.hi[(base, h)] = r
            r = self.hi[(base, h)]
        return f"v{r}", (f" offset:{imm}" if imm else "")

    def pre_hi(self, base, hs=(1, 2)):
        for h in hs:
            self.ds(base, h << 16)

    def free_base(self, base):
        for key in [x for x in self.hi if x[0] == base]:
            self.va.put(self.hi.pop(key))
        self.va.put(base)

    def dsr(self, mn, dst, n, base, absoff, tag=None):
        r, o = self.ds(base, absoff)
        return self.k(f"{mn} {vr(dst, n)}, {r}{o}", tag=tag)

    def dsw(self, mn, base, absoff, src, n):
        r, o = self.ds(base, absoff)
        return self.k(f"{mn} {r}, {vr(src, n)}{o}")

    def dma(self, voff, srd_, soff, lds, inst=0, tag=None, sadd=None, pre=None):
        k = self.k
        if pre is not None:
            assert inst == 0 and sadd is None
            k(pre)
            soff = f"s{sT+8}"
        if lds < inst:
            assert sadd is None
            if soff == 0:
                k(f"s_mov_b32 s{sT+8}, {inst}")
            else:
                k(f"s_add_u32 s{sT+8}, {soff}, {inst}")
            soff = f"s{sT+8}"
            inst = 0
        imm = lds - inst
        k(f"s_add_u32 m0, s{sW1K}, {imm}")
        if sadd is not None:
            if sadd[1] == 0:
                soff = f"s{sadd[0]}"
            else:
                k(f"s_add_u32 s{sT+8}, s{sadd[0]}, {sadd[1]}")
                soff = f"s{sT+8}"
        o = f" offset:{inst}" if inst else ""
        k(f"buffer_load_dwordx4 v{voff}, s[{srd_}:{srd_+3}], {soff} offen{o} lds", tag=tag)

    def bf16r(self, d, s):
        self.k(f"v_cvt_pk_bf16_f32 v{d}, v{s}, v{s}\nv_and_b32 v{d}, 0xffff0000, v{d}")

    def store(self, text, dual, tag=None):
        if dual:
            ins = self.k(text, tag=tag)
            self.nd += 1
            ins.dual = (sMODE, f"L_du_{self.role}_{self.nd}")
        else:
            self.k(text + " sc1", tag=tag)

    def flag(self, g, soff):
        self.k("s_mov_b64 exec, 1")
        self.store(f"buffer_store_dword v{g.vNON}, off, s[{sWS}:{sWS+3}], s{soff}", not self.opts.get("nofast"))
        self.k("s_mov_b64 exec, -1")

    def poll_issue(self, g, soff, n):
        t = self.va.get()
        self.k(f"""s_mov_b64 exec, {hex((1 << n) - 1)}
        buffer_load_dword v{t}, v{g.vL4}, s[{sWS}:{sWS+3}], s{soff} offen sc1
        s_mov_b64 exec, -1""")
        return (t, soff, n)

    def poll_check(self, g, h):
        t, soff, n = h
        k = self.k
        loop, done = k.label("L_pl"), k.label("L_pd")
        k(f"""v_mov_b32 v{t}, v{t}
        s_mov_b32 s{sT+9}, {SPIN}
        s_mov_b64 exec, {hex((1 << n) - 1)}
        {loop}:
        v_cmp_ne_u32 vcc, s{sNON}, v{t}
        s_cbranch_vccz {done}""")
        k.region_begin()
        k(f"""buffer_load_dword v{t}, v{g.vL4}, s[{sWS}:{sWS+3}], s{soff} offen sc1
        s_waitcnt vmcnt(0)
        s_sub_u32 s{sT+9}, s{sT+9}, 1
        s_cmp_lg_u32 s{sT+9}, 0
        s_cbranch_scc1 {loop}""")
        k.region_end()
        k(f"""{done}:
        s_mov_b64 exec, -1""")
        self.va.put(t)

    def stamp(self, idx):
        if not self.opts.get("stamps"):
            return
        self.k(f"""s_memtime s[38:39]
        s_waitcnt lgkmcnt(0)
        v_writelane_b32 v255, s38, {idx}""")

    def stamp_flush(self):
        if not self.opts.get("stamps"):
            return
        t = self.va.get()
        self.k(f"""s_mov_b64 exec, -1
        s_memrealtime s[38:39]
        s_waitcnt lgkmcnt(0)
        v_writelane_b32 v255, s38, 62
        s_lshl_b32 s38, s2, 3
        s_add_u32 s38, s38, s{sW}
        s_lshl_b32 s38, s38, 8
        s_add_u32 s38, s38, {WS_STAMP}
        v_lshlrev_b32 v{t}, 2, v1
        buffer_store_dword v255, v{t}, s[{sWS}:{sWS+3}], s38 offen""")
        self.va.put(t)


class G:
    pass


def splice(k, main, fill, per, start=0):
    fi = 0
    n = 0
    for it in main:
        k.items.append(it)
        if isinstance(it, Ins) and it.cls == "mfma":
            n += 1
            if n > start:
                cnt = 0
                while fi < len(fill) and cnt < per:
                    f = fill[fi]
                    k.items.append(f)
                    fi += 1
                    if isinstance(f, Ins):
                        cnt += 2 if f.cls == "trans" else 1
    k.items.extend(fill[fi:])


def capture(c, fn):
    old = c.k
    tmp = Prog(old.name)
    tmp._lab = old._lab + 1000
    tmp._rid = old._rid + 1000
    c.k = tmp
    fn()
    c.k = old
    old._lab = tmp._lab
    old._rid = tmp._rid
    return tmp.items


def capture_hold(c, fn):
    va = c.va
    held = []
    orig = va.put
    va.put = lambda b, n=1: held.append((b, n))
    items = capture(c, fn)
    va.put = orig

    def release():
        for b, n in held:
            va.put(b, n)
    return items, release


def prologue(c, g):
    k, va = c.k, c.va
    st = c.opts.get("stamps")
    k(f"""
    s_cmp_ge_u32 s2, 256
    s_cbranch_scc1 L_exit
    s_load_dwordx16 s[4:19], s[0:1], 0
    s_load_dwordx16 s[20:35], s[0:1], 64
    s_load_dwordx2 s[36:37], s[0:1], 128
    {"s_memrealtime s[98:99]" if st else ""}
    {"s_memtime s[100:101]" if st else ""}
    v_lshrrev_b32 v2, 6, v0
    v_and_b32 v1, 63, v0
    v_readfirstlane_b32 s{sW}, v2
    s_and_b32 s{sG}, s2, 7
    s_lshl_b32 s{sG}, s{sG}, 1
    s_lshr_b32 s{sT}, s2, 7
    s_add_u32 s{sG}, s{sG}, s{sT}
    s_lshr_b32 s{sJ}, s2, 3
    s_and_b32 s{sJ}, s{sJ}, 15
    s_lshl_b32 s{sT0}, s{sG}, 7
    s_and_b32 s{sRH}, s{sJ}, 1
    """)
    g.vcw = None
    cw = c.opts.get("cw", 1)
    if cw:
        g.vcw = va.get()
        t = va.get()
        if cw == 1:
            k(f"""s_lshl_b32 s{sT}, s{sRH}, 3
            s_add_u32 s{sT}, s{sT}, s{sW}
            s_cmp_lg_u32 s{sT}, 15
            s_cbranch_scc1 L_cw
            s_lshr_b32 s{sT}, s2, 4""")
        else:
            k(f"""s_lshr_b32 s{sT}, s2, 3
            s_and_b32 s{sT+1}, s{sT}, 0xfffffffd
            s_cmp_lg_u32 s{sT+1}, 1
            s_cbranch_scc1 L_cw
            s_lshl_b32 s{sT}, s{sT}, 2
            s_and_b32 s{sT}, s{sT}, 8
            s_add_u32 s{sT}, s{sT}, s{sW}""")
        k.region_begin()
        k(f"""s_getpc_b64 s[{sMI}:{sMI+1}]
        L_pc:
        s_mov_b32 s{sMI+2}, L_exit-L_pc
        s_mov_b32 s{sMI+3}, 0x00020000
        s_lshl_b32 s{sT}, s{sT}, 13
        v_lshlrev_b32 v{t}, 7, v1
        buffer_load_dword v{g.vcw}, v{t}, s[{sMI}:{sMI+3}], s{sT} offen""")
        k.region_end()
        k("L_cw:")
        va.put(t)
    k(f"""
    s_lshr_b32 s{sC}, s{sJ}, 1
    s_xor_b32 s{sC}, s{sC}, {c.opts.get("cx", 0)}
    s_lshl_b32 s{sW1K}, s{sW}, 10
    s_lshr_b32 s{sTQ}, s{sW}, 1
    s_and_b32 s{sKH}, s{sW}, 1
    s_lshl_b32 s{sC128}, s{sC}, 7
    s_lshl_b32 s{sCrow}, s{sC}, 16
    """)
    g.vR1k, g.vK1k = va.get(), va.get()
    g.vnon = va.get()
    g.srow = va.get(4)
    g.r8, g.pos, g.row = va.get(), va.get(), va.get()
    t, u, f = [va.get() for _ in range(3)]
    k(f"""v_lshrrev_b32 v{g.r8}, 3, v1
    v_and_b32 v{g.pos}, 7, v1
    s_lshl_b32 s{sT+1}, s{sKH}, 2
    v_lshrrev_b32 v{u}, 1, v{g.r8}
    v_or_b32 v{f}, s{sT+1}, v{u}
    v_xor_b32 v{f}, v{f}, v{g.pos}
    v_lshlrev_b32 v{f}, 4, v{f}
    s_lshl_b32 s{sT+2}, s{sW}, 3
    v_add_u32 v{g.row}, s{sT+2}, v{g.r8}        ; 8w+r8
    v_lshl_add_u32 v{g.vR1k}, v{g.row}, 10, v{f}
    s_lshl_b32 s{sT}, s{sJ}, 3
    s_add_u32 s{sT}, s{sT}, s{sT0}
    s_add_u32 s{sA}, s{sT}, s{sW}
    s_lshl_b32 s{sT}, s{sA}, 10
    v_lshlrev_b32 v{t}, 4, v1
    s_mov_b32 s{sT+1}, {WS_NONCE}
    s_waitcnt lgkmcnt(0)
    """)
    c.stamp(55)
    srd(k, sX, P_X, 2048 * 1024)
    rot = c.opts.get("rot", ROT)
    if rot & 1:
        k(f"""s_lshr_b32 s{sKHP}, s2, 5
        s_and_b32 s{sKHP}, s{sKHP}, 4
        s_add_u32 s{sR128}, s{sC}, s{sKHP}
        s_lshl_b32 s{sR128}, s{sR128}, 7""")
    else:
        k(f"s_mov_b32 s{sR128}, 0")
    k(f"buffer_load_dwordx4 {vr(g.srow,4)}, v{t}, s[{sX}:{sX+3}], s{sT} offen")
    srd(k, sWS, P_WS, 0x10000000)
    k(f"buffer_load_dword v{g.vnon}, off, s[{sWS}:{sWS+3}], s{sT+1} sc1")
    if st:
        k("v_writelane_b32 v255, s98, 63\nv_writelane_b32 v255, s100, 61")
    for r in (t, u, f):
        va.put(r)
    k(f"""
    s_cmp_eq_u32 s{sRH}, 0
    s_cbranch_scc1 L_pathM
    """)


def late_consts(c, g):
    k, va = c.k, c.va
    u, f = va.get(), va.get()
    g.vL4, g.vL16, g.vNON = va.get(), va.get(), va.get()
    k(f"""s_mov_b32 s{sI512}, {fhex(1/512)}
    s_mov_b32 s{sK3}, {fhex(-K3)}
    s_mov_b32 s{sONE}, 0x3f803f80
    s_lshl_b32 s{sFL}, s{sG}, 12
    s_add_u32 s{sFL}, s{sFL}, {WS_FL}
    s_getreg_b32 s{sXCC}, hwreg(HW_REG_XCC_ID)
    s_and_b32 s{sXCC}, s{sXCC}, 7
    s_min_u32 s{sJ3B}, s{sJ}, 13
    s_lshl_b32 s{sJ3B}, s{sJ3B}, 8
    v_lshlrev_b32 v{g.vL4}, 2, v1
    v_lshlrev_b32 v{g.vL16}, 4, v1""")
    if c.opts.get("rot", ROT) & 2:
        k(f"s_lshr_b32 s{sT}, s2, 7")
    else:
        k(f"s_mov_b32 s{sT}, 0")
    k(f"""s_xor_b32 s{sKHP}, s{sKH}, s{sT}
    s_mul_i32 s{sT+1}, s{sT}, {4*64*3584}
    s_add_u32 s{sJ3Bp}, s{sJ3B}, s{sT+1}
    s_sub_u32 s{sJ3Bm}, s{sJ3B}, s{sT+1}
    s_lshl_b32 s{sT+1}, s{sT}, 18
    s_add_u32 s{sC128p}, s{sC128}, s{sT+1}
    s_sub_u32 s{sC128m}, s{sC128}, s{sT+1}""")
    va.put(u); va.put(f)


def kn_voff(c, g, want35):
    k, va = c.k, c.va
    u, f = va.get(), va.get()
    k(f"""v_bfe_u32 v{u}, v{g.r8}, 1, 1
    v_lshlrev_b32 v{u}, 2, v{u}
    v_bfe_u32 v{f}, v{g.r8}, 2, 1
    v_lshl_add_u32 v{u}, v{f}, 1, v{u}
    v_xor_b32 v{u}, v{u}, v{g.pos}
    v_lshlrev_b32 v{u}, 4, v{u}
    v_lshl_add_u32 v{g.vK1k}, v{g.row}, 10, v{u}""")
    if want35:
        g.vK35 = va.get()
        k(f"""v_mul_u32_u24 v{f}, 3584, v{g.row}
        v_add_u32 v{g.vK35}, v{f}, v{u}""")
    va.put(u); va.put(f)


def seg_load(c, n_sgpr, segs, dst, xoff=None):
    k, va = c.k, c.va
    t = va.get()
    k(f"""s_mov_b32 s{sMI}, s{segs[0][0]}
    s_mov_b32 s{sMI+1}, s{segs[0][0]+1}
    s_mov_b32 s{sMI+2}, {segs[0][2]}
    s_mov_b32 s{sT+2}, {"0" if xoff is None else f"s{xoff}"}""")
    base = segs[0][1]
    for p_, n, nb in segs[1:]:
        k(f"""s_cmp_ge_u32 s{n_sgpr}, {base}
        s_cselect_b32 s{sMI}, s{p_}, s{sMI}
        s_cselect_b32 s{sMI+1}, s{p_+1}, s{sMI+1}
        s_cselect_b32 s{sMI+2}, {nb}, s{sMI+2}
        s_cselect_b32 s{sT+2}, {base}, s{sT+2}""")
        base += n
    k(f"""s_mov_b32 s{sMI+3}, 0x00020000
    s_sub_u32 s{sT+2}, s{n_sgpr}, s{sT+2}
    s_lshl_b32 s{sT+2}, s{sT+2}, 13
    v_lshlrev_b32 v{t}, 7, v1
    buffer_load_dword v{dst}, v{t}, s[{sMI}:{sMI+3}], s{sT+2} offen{" sc1" if c.opts.get("tsc") else ""}""")
    va.put(t)


def warm_mall(c, g):
    wm = c.opts.get("warm", 1)
    if not wm:
        g.vwarm = None
        return
    k, va = c.k, c.va
    g.vwarm = va.get()
    lab = k.label("L_wm")
    segs = [(P_W4, 224, 224 * 8192), (P_CRE, 64, 64 * 8192), (P_CIM, 64, 64 * 8192)]
    k(f"""s_lshl_b32 s{sT}, s{sW}, 7
    s_lshl_b32 s{sT+1}, s{sG}, 3
    s_add_u32 s{sT}, s{sT}, s{sT+1}
    s_add_u32 s{sT}, s{sT}, s{sC}
    s_cmp_ge_u32 s{sT}, 352
    s_cbranch_scc1 {lab}""")
    k.region_begin()
    seg_load(c, sT, segs, g.vwarm)
    k.region_end()
    k(f"{lab}:")


def touch(c, g, which):
    o = c.opts
    if not (o.get("l2t", 0) >> which) & 1:
        return
    k, va = c.k, c.va
    d = va.get()
    g.tdst = getattr(g, "tdst", []) + [d]
    k(f"""s_lshr_b32 s{sT}, s2, 3
    s_lshl_b32 s{sT}, s{sT}, 3
    s_add_u32 s{sT}, s{sT}, s{sW}""")
    if which == 0:
        k(f"""s_and_b32 s{sT+1}, s2, 7
        s_lshl_b32 s{sT+1}, s{sT+1}, 5
        s_sub_u32 s{sT+1}, 0, s{sT+1}""")
        seg_load(c, sT, [(P_X, 32, 2048 * 1024), (P_W1, 64, 512 * 1024), (P_BRE, 64, 512 * 1024), (P_BIM, 64, 512 * 1024),
                         (P_W2, 32, 512 * 1024)], d, xoff=sT + 1)
    else:
        k(f"s_add_u32 s{sT}, s{sT}, 32")
        seg_load(c, sT, [(P_W2, 64, 512 * 1024), (P_W3, 224, 512 * 3584)], d)


def touch2(c, g, n_sgpr, segs):
    k, va = c.k, c.va
    d = va.get()
    g.tdst = getattr(g, "tdst", []) + [d]
    t, u = va.get(), va.get()
    def vals(sg, base):
        p_, n, nb, m1, ex = sg
        if m1 > 0:
            return p_, nb, 32 * m1, m1, 128, ex, base
        return p_, nb, -64 * m1, -2 * m1, -m1, ex, base
    base = 0
    regs = [sMI, sMI + 1, sMI + 2, sT + 2, sT + 3, sT + 4, sT + 5, sT + 6]
    for i, sg in enumerate(segs):
        p_, nb, span, A, B, ex, bs = vals(sg, base)
        new = [f"s{p_}", f"s{p_+1}", nb, span, A, B, ex, bs]
        if i == 0:
            for r, v in zip(regs, new):
                k(f"s_mov_b32 s{r}, {v}")
        else:
            k(f"s_cmp_ge_u32 s{n_sgpr}, {base}")
            for r, v, o_ in zip(regs, new, old):
                if v != o_:
                    k(f"s_cselect_b32 s{r}, {v}, s{r}")
        old = new if i == 0 else [None] * 8
        base += sg[1]
    k(f"""s_cmp_ge_u32 s{n_sgpr}, {base}
    s_cselect_b32 s{sMI+2}, 0, s{sMI+2}
    s_mov_b32 s{sMI+3}, 0x00020000
    s_sub_u32 s{sT+6}, s{n_sgpr}, s{sT+6}
    s_mul_i32 s{sT+6}, s{sT+6}, s{sT+2}
    s_add_u32 s{sT+6}, s{sT+6}, s{sT+5}
    v_lshrrev_b32 v{t}, 1, v1
    v_mul_u32_u24 v{t}, s{sT+3}, v{t}
    v_and_b32 v{u}, 1, v1
    v_mad_u32_u24 v{t}, v{u}, s{sT+4}, v{t}
    buffer_load_dword v{d}, v{t}, s[{sMI}:{sMI+3}], s{sT+6} offen""")
    va.put(t); va.put(u)


def s0_index(c, dst, rnd):
    c.k(f"""s_lshr_b32 s{dst}, s2, 7
    s_lshl_b32 s{dst}, s{dst}, 1
    s_bfe_u32 s{sT+1}, s{sJ}, 0x10001
    s_add_u32 s{dst}, s{dst}, s{sT+1}
    s_lshl_b32 s{dst}, s{dst}, 3
    s_add_u32 s{dst}, s{dst}, s{sW}
    s_add_u32 s{dst}, s{dst}, {32*rnd}""")


def touch_done(c, g):
    for d in getattr(g, "tdst", []):
        c.k(f"v_mov_b32 v{d}, 0")
        c.va.put(d)
    g.tdst = []


def warm_done(c, g):
    touch_done(c, g)
    if g.vcw is not None:
        c.k(f"v_mov_b32 v{g.vcw}, 0")
        c.va.put(g.vcw)
        g.vcw = None
    if g.vwarm is not None:
        c.k(f"v_mov_b32 v{g.vwarm}, 0")
        c.va.put(g.vwarm)
        g.vwarm = None


def wave_sum(c, S, x):
    k = c.k
    for m in ("quad_perm:[1,0,3,2]", "quad_perm:[2,3,0,1]", "row_half_mirror", "row_mirror"):
        for s in S:
            k(f"v_add_f32_dpp v{s}, v{s}, v{s} {m} row_mask:0xf bank_mask:0xf")
    for sw in ("v_permlane16_swap_b32", "v_permlane32_swap_b32"):
        for s, xx in zip(S, x):
            k(f"v_mov_b32 v{xx}, v{s}")
        for s, xx in zip(S, x):
            k(f"{sw} v{s}, v{xx}")
        for s, xx in zip(S, x):
            k(f"v_add_f32 v{s}, v{s}, v{xx}")


def stat_publish(c, g):
    k, va = c.k, c.va
    S1, S2 = va.get(), va.get()
    t = va.get(8)
    mean, var, m1, d1, a1, m2, d2, x = range(t, t + 8)
    o = va.get(4)
    k(f"v_mov_b32 v{S1}, 0\nv_mov_b32 v{S2}, 0")
    for i in range(4):
        k(f"v_dot2c_f32_bf16 v{S1}, s{sONE}, v{g.srow+i}\nv_dot2c_f32_bf16 v{S2}, v{g.srow+i}, v{g.srow+i}")
    c.stamp(50)
    wave_sum(c, [S1, S2], [mean, var])
    k(f"""v_mul_f32 v{mean}, {fhex(1/512)}, v{S1}
    v_mul_f32 v{x}, v{mean}, v{mean}
    v_fma_f32 v{var}, v{S2}, s{sI512}, -v{x}
    v_max_f32 v{var}, 0, v{var}""")
    c.bf16r(m1, mean)
    c.bf16r(x, var)
    k(f"v_add_f32 v{x}, {fhex(EPS)}, v{x}")
    c.bf16r(x, x)
    k(f"v_sqrt_f32 v{x}, v{x}")
    c.bf16r(d1, x)
    k(f"""v_rcp_f32 v{a1}, v{d1}
    v_sub_f32 v{x}, v{mean}, v{m1}
    v_mul_f32 v{m2}, v{x}, v{a1}
    v_mul_f32 v{x}, v{var}, v{a1}
    v_mul_f32 v{x}, v{x}, v{a1}""")
    c.bf16r(x, x)
    k(f"v_add_f32 v{x}, {fhex(EPS)}, v{x}")
    c.bf16r(x, x)
    k(f"""v_sqrt_f32 v{d2}, v{x}
    v_cvt_pk_bf16_f32 v{o}, v{m1}, v{d1}
    v_cvt_pk_bf16_f32 v{o+2}, v{m2}, v{d2}
    v_readfirstlane_b32 s{sNON}, v{g.vnon}
    s_add_u32 s{sNON}, s{sNON}, 1
    s_lshl_b32 s{sT}, s{sXCC}, 29
    s_xor_b32 s{sT}, s{sT}, s{sNON}
    v_mov_b32 v{o+1}, s{sNON}
    v_mov_b32 v{o+3}, s{sT}
    v_mov_b32 v{g.vNON}, s{sNON}
    s_lshl_b32 s{sT}, s{sA}, 4
    s_add_u32 s{sT}, s{sT}, {WS_RS}
    s_mov_b64 exec, 1
    buffer_store_dwordx4 {vr(o,4)}, off, s[{sWS}:{sWS+3}], s{sT} sc1
    s_mov_b64 exec, -1""")
    va.put(S1); va.put(S2); va.put(t, 8); va.put(o, 4)
    va.put(g.srow, 4); va.put(g.vnon)


def stat_issue(c, g):
    k, va = c.k, c.va
    g.rs = va.get(4)
    g.vrs, g.vrho = va.get(), va.get()
    lab = k.label("L_si")
    k(f"v_mov_b32 v{g.vrs}, 0\ns_cmp_lt_u32 s{sW}, 5\ns_cbranch_scc1 {lab}")
    k.region_begin("SC")
    t = va.get()
    k(f"""s_sub_u32 s{sT}, s{sW}, 5
    s_lshl_b32 s{sT}, s{sT}, 6
    v_add_u32 v{g.vrho}, s{sT}, v1
    v_min_u32 v{g.vrho}, 131, v{g.vrho}
    s_sub_u32 s{sT}, s{sT0}, 2
    v_add_u32 v{t}, s{sT}, v{g.vrho}
    v_max_i32 v{t}, 0, v{t}
    v_min_i32 v{t}, 2047, v{t}
    v_lshlrev_b32 v{g.vrs}, 4, v{t}
    s_mov_b32 s{sT}, {WS_RS}
    buffer_load_dwordx4 {vr(g.rs,4)}, v{g.vrs}, s[{sWS}:{sWS+3}], s{sT} offen sc1""")
    va.put(t)
    k.region_end()
    k(f"{lab}:")


def stat_consume(c, g):
    k, va = c.k, c.va
    rs = g.rs
    lab = k.label("L_sc")
    loop, done = k.label("L_sl"), k.label("L_sd")
    k(f"s_cmp_lt_u32 s{sW}, 5\ns_cbranch_scc1 {lab}")
    k.region_begin("SC")
    t = va.get(8)
    m1, d1, m2, d2, a1, a2, x, y = range(t, t + 8)
    vok = va.get()
    k(f"""v_mov_b32 v{x}, v{rs+1}
    s_mov_b32 s{sT+1}, {SPIN}
    s_mov_b32 s{sT}, {WS_RS}
    {loop}:
    v_xor_b32 v{x}, s{sNON}, v{rs+1}
    v_xor_b32 v{y}, s{sNON}, v{rs+3}
    v_lshlrev_b32 v{a1}, 3, v{y}
    v_or_b32 v{x}, v{x}, v{a1}
    v_cmp_ne_u32 vcc, 0, v{x}
    s_cbranch_vccz {done}""")
    k.region_begin("SC2")
    k(f"""buffer_load_dwordx4 {vr(rs,4)}, v{g.vrs}, s[{sWS}:{sWS+3}], s{sT} offen sc1
    s_waitcnt vmcnt(0)
    s_sub_u32 s{sT+1}, s{sT+1}, 1
    s_cmp_lg_u32 s{sT+1}, 0
    s_cbranch_scc1 {loop}""")
    k.region_begin("SC")
    o = [va.get(2) for _ in range(3)]
    k(f"""{done}:
    v_lshrrev_b32 v{y}, 29, v{y}
    v_subrev_u32 v{x}, 2, v{g.vrho}
    v_cmp_gt_u32 vcc, 128, v{x}
    v_cmp_ne_u32 s[{sT+2}:{sT+3}], s{sXCC}, v{y}
    s_and_b64 vcc, vcc, s[{sT+2}:{sT+3}]
    s_cselect_b32 s{sT+2}, 1, 0
    s_lshl_b32 s{sT+3}, s{sW}, 2
    s_add_u32 s{sT+3}, s{sT+3}, {MODE - 20}
    v_mov_b32 v{x}, s{sT+2}
    v_mov_b32 v{y}, s{sT+3}
    ds_write_b32 v{y}, v{x}
    s_sub_u32 s{sT}, s{sT0}, 2
    v_add_u32 v{x}, s{sT}, v{g.vrho}
    v_cmp_gt_u32 vcc, 2048, v{x}
    v_cndmask_b32 v{vok}, 0, 1.0, vcc
    v_lshlrev_b32 v{m1}, 16, v{rs}
    v_and_b32 v{d1}, 0xffff0000, v{rs}
    v_lshlrev_b32 v{m2}, 16, v{rs+2}
    v_and_b32 v{d2}, 0xffff0000, v{rs+2}
    v_rcp_f32 v{a1}, v{d1}
    v_rcp_f32 v{a2}, v{d2}
    v_mul_f32 v{m1}, v{m1}, v{vok}
    v_mul_f32 v{m2}, v{m2}, v{vok}
    v_mov_b32 v{o[0]}, v{a1}
    v_mul_f32 v{o[0]+1}, v{m1}, v{a1}
    v_mul_f32 v{o[1]}, v{a1}, v{a2}
    v_fma_f32 v{x}, v{m2}, v{d1}, v{m1}
    v_mul_f32 v{o[1]+1}, v{x}, v{o[1]}
    v_mov_b32 v{o[2]}, v{m1}
    v_mov_b32 v{o[2]+1}, v{a1}
    v_lshlrev_b32 v{y}, 3, v{g.vrho}
    v_add_u32 v{y}, {MISC}, v{y}""")
    for oo, st in zip(o, (ST_A, ST_B, ST_C)):
        k(f"ds_write_b64 v{y}, {vr(oo,2)} offset:{st - MISC}")
        va.put(oo, 2)
    va.put(t, 8); va.put(vok)
    k.region_end()
    k(f"{lab}:")
    va.put(rs, 4); va.put(g.vrs); va.put(g.vrho)


def mode_read(c, g):
    k, va = c.k, c.va
    t = va.get(4)
    a = va.get()
    k(f"""v_mov_b32 v{a}, {MODE}
    ds_read_b96 {vr(t,3)}, v{a}
    v_or3_b32 v{t}, v{t}, v{t+1}, v{t+2}
    v_readfirstlane_b32 s{sMODE}, v{t}""")
    va.put(t, 4); va.put(a)


def gelu_many(c, xs):
    k, va = c.k, c.va
    ts = [va.get() for _ in xs]
    kk = va.get()
    k(f"v_mov_b32 v{kk}, {fhex(-K1)}")
    for x, t in zip(xs, ts):
        k(f"v_mul_f32 v{t}, v{x}, v{x}")
    for x, t in zip(xs, ts):
        k(f"v_fma_f32 v{t}, v{t}, s{sK3}, v{kk}")
    for x, t in zip(xs, ts):
        k(f"v_mul_f32 v{t}, v{t}, v{x}")
    for x, t in zip(xs, ts):
        k(f"v_exp_f32 v{t}, v{t}")
    for x, t in zip(xs, ts):
        k(f"v_add_f32 v{t}, 1.0, v{t}")
    for x, t in zip(xs, ts):
        k(f"v_rcp_f32 v{t}, v{t}")
    for x, t in zip(xs, ts):
        k(f"v_mul_f32 v{x}, v{x}, v{t}")
    for t in ts:
        va.put(t)
    va.put(kk)


def cmad(k, dr, di, ar, ai, br, bi, cr, ci):
    assert dr not in (br, bi) and di not in (br, bi)
    k(f"""v_fma_f32 v{dr}, v{ar}, v{br}, v{cr}
    v_fma_f32 v{di}, v{ar}, v{bi}, v{ci}
    v_fma_f32 v{dr}, -v{ai}, v{bi}, v{dr}
    v_fma_f32 v{di}, v{ai}, v{br}, v{di}""")


def cmul(k, dr, di, ar, ai, br, bi):
    assert dr not in (ar, ai, br, bi) and di not in (ar, ai, br, bi)
    k(f"""v_mul_f32 v{dr}, v{ar}, v{br}
    v_mul_f32 v{di}, v{ar}, v{bi}
    v_fma_f32 v{dr}, -v{ai}, v{bi}, v{dr}
    v_fma_f32 v{di}, v{ai}, v{br}, v{di}""")


def csq(k, dr, di, r, i):
    k(f"""v_mul_f32 v{dr}, v{i}, v{i}
    v_mul_f32 v{di}, v{r}, v{i}
    v_fma_f32 v{dr}, v{r}, v{r}, -v{dr}
    v_add_f32 v{di}, v{di}, v{di}""")


def mf16(k, d, a, b, z):
    k(f"v_mfma_f32_16x16x32_bf16 {vr(d,4)}, {vr(a,4)}, {vr(b,4)}, {'0' if z else vr(d,4)}")


def mf32(k, d, a, b, z):
    k(f"v_mfma_f32_32x32x16_bf16 {vr(d,16)}, {vr(a,4)}, {vr(b,4)}, {'0' if z else vr(d,16)}")


def bar(c, lg=True):
    if lg:
        c.k("s_waitcnt lgkmcnt(0)")
    c.k("s_barrier")


def w2_dma(c, g, i):
    c.dma(g.vK1k, sWB, None, U(6 + i), sadd=(sC128p if i < 4 else sC128m, i * 65536), tag=f"w2_{i}")


W3H0 = [14, 15, 16, 17, 0, 1, 2, 3]


def w3_dma(c, g, ph, i):
    u = W3H0[i] if ph == 0 else 6 + i
    c.dma(g.vK35, sWA, None, U(u), sadd=(sJ3B, i * 64 * 3584 + 128 * ph), tag=f"w3_{ph}_{i}")


def xq_load(c, g):
    k, va = c.k, c.va
    g.xq = va.get(8)
    t, u = va.get(), va.get()
    k(f"""v_and_b32 v{t}, 15, v1
    v_lshrrev_b32 v{u}, 4, v1
    v_lshlrev_b32 v{u}, 3, v{u}
    v_lshl_add_u32 v{t}, v{t}, 10, v{u}
    s_lshl_b32 s{sT+1}, s{sTQ}, 4
    s_add_u32 s{sT}, s{sT0}, s{sT+1}
    s_lshl_b32 s{sT}, s{sT}, 10
    s_add_u32 s{sT}, s{sT}, s{sC128}
    s_lshl_b32 s{sT+1}, s{sKH}, 6
    s_add_u32 s{sT}, s{sT}, s{sT+1}
    s_add_u32 s{sT+1}, s{sT}, 65536
    buffer_load_dwordx2 {vr(g.xq,2)}, v{t}, s[{sX}:{sX+3}], s{sT} offen
    buffer_load_dwordx2 {vr(g.xq+2,2)}, v{t}, s[{sX}:{sX+3}], s{sT} offen offset:32
    buffer_load_dwordx2 {vr(g.xq+4,2)}, v{t}, s[{sX}:{sX+3}], s{sT+1} offen
    buffer_load_dwordx2 {vr(g.xq+6,2)}, v{t}, s[{sX}:{sX+3}], s{sT+1} offen offset:32""")
    va.put(t); va.put(u)


def norm_pairs(c, dst, src, n, ma):
    k, va = c.k, c.va
    lo, hi = va.get(), va.get()
    for i in range(n):
        k(f"""v_lshlrev_b32 v{lo}, 16, v{src+i}
        v_and_b32 v{hi}, 0xffff0000, v{src+i}
        v_sub_f32 v{lo}, v{lo}, v{ma}
        v_sub_f32 v{hi}, v{hi}, v{ma}
        v_cvt_pk_bf16_f32 v{dst+i}, v{lo}, v{hi}
        v_lshlrev_b32 v{lo}, 16, v{dst+i}
        v_and_b32 v{hi}, 0xffff0000, v{dst+i}
        v_mul_f32 v{lo}, v{lo}, v{ma+1}
        v_mul_f32 v{hi}, v{hi}, v{ma+1}
        v_cvt_pk_bf16_f32 v{dst+i}, v{lo}, v{hi}""")
    va.put(lo); va.put(hi)


def xn_prep(c, g, half):
    k, va = c.k, c.va
    ma = va.get(2)
    t = va.get()
    k(f"""s_lshl_b32 s{sT}, s{sTQ}, 7
    s_add_u32 s{sT}, s{sT}, {ST_C + 16 + 512*half}
    v_and_b32 v{t}, 15, v1
    v_lshl_add_u32 v{t}, v{t}, 3, s{sT}
    ds_read_b64 {vr(ma,2)}, v{t}""")
    norm_pairs(c, g.xq + 4*half, g.xq + 4*half, 4, ma)
    va.put(ma, 2); va.put(t)


def sel_make(c):
    k, va = c.k, c.va
    s4 = va.get(4)
    t = va.get()
    k(f"""v_lshrrev_b32 v{t}, 4, v1
    v_xor_b32 v{t}, v{t}, v1
    v_and_b32 v{t}, 1, v{t}
    v_cmp_eq_u32 vcc, 0, v{t}
    v_mov_b32 v{t}, s{sONE}""")
    for i in range(4):
        k(f"v_cndmask_b32 v{s4+i}, 0, v{t}, vcc")
    va.put(t)
    return s4


SELMASK = "0x3000300030003"


def build(opts):
    import mk4b
    import copy
    g0 = G()
    P = Ctx("pro", opts, VA(2, 255))
    prologue(P, g0)
    body = P.k.finalize()
    gs = copy.copy(g0)
    PS = Ctx("ps", opts, P.va.clone())
    mk4b.s_start(PS, gs)
    body += PS.k.finalize(init_vm=P.k.final_vm)
    for kind, lab in (("M", "L_pathM"), ("S3", "L_pathS3"), ("S0", "L_pathS0")):
        src, gsrc = (P, g0) if kind == "M" else (PS, gs)
        g = copy.copy(gsrc)
        C = Ctx(kind, opts, src.va.clone())
        mk4b.path(C, g, kind)
        C.stamp_flush()
        C.k("s_waitcnt vmcnt(0) lgkmcnt(0)\ns_endpgm")
        body += lab + ":\n"
        body += C.k.finalize(init_vm=src.k.final_vm)
        print(kind, "peak vgpr", C.va.peak + 2, file=sys.stderr)
    body += "L_exit:\n  s_endpgm\n"
    n = NAME + "_kernel"
    hdr = f"""; fused S5-SSM + shift-MLP kernel (generated by dev/mk4.py)
; @launch grid=(256,1,1) block=(512,1,1) lds={LDS_BYTES}
.amdgcn_target "amdgcn-amd-amdhsa--gfx950"
.text
.globl {n}
.p2align 8
.type {n},@function
{n}:
"""
    tail = f""".section .rodata,"a"
.p2align 6
.amdhsa_kernel {n}
  .amdhsa_next_free_vgpr 256
  .amdhsa_next_free_sgpr 102
  .amdhsa_accum_offset 256
  .amdhsa_group_segment_fixed_size 0
  .amdhsa_kernarg_size 136
  .amdhsa_user_sgpr_count 2
  .amdhsa_user_sgpr_kernarg_segment_ptr 1
  .amdhsa_system_sgpr_workgroup_id_x 1
.end_amdhsa_kernel
"""
    return hdr + body + tail


def rotk(s_, sh=0, add=None, sr=None):
    sr = sR128 if sr is None else sr
    t = f"s_add_u32 s{sT+8}, s{sr}, {s_*128}\ns_and_b32 s{sT+8}, s{sT+8}, 0x380\n"
    if sh:
        t += f"s_lshl_b32 s{sT+8}, s{sT+8}, {sh}\n"
    if add is not None:
        t += f"s_add_u32 s{sT+8}, s{sT+8}, s{add}\n"
    return t


if __name__ == "__main__":
    import argparse
    ap = argparse.ArgumentParser()
    ap.add_argument("-o", default="v4.s")
    ap.add_argument("--stop", type=int, default=99)
    ap.add_argument("--stamps", action="store_true")
    ap.add_argument("--opt", action="append", default=[])
    a = ap.parse_args()
    opts = dict(stop=a.stop, stamps=a.stamps)
    for o in a.opt:
        kk, _, vv = o.partition("=")
        opts[kk] = int(vv) if vv else 1
    txt = build(opts)
    open(a.o, "w").write(txt)
    print("wrote", a.o, len(txt), "bytes", txt.count("\n"), "lines")
```

```python
from mk4 import *

XR = [4, 5, 18, 17]


class Sched:
    def __init__(self, c, g):
        self.c, self.g = c, g
        self.free = set()
        self.items = [("C", r) for r in range(8)] + [("W", n) for n in range(28)]
        self.unit = {}

    def release(self, us):
        for u in us:
            assert u not in self.free
            self.free.add(u)

    def units(self, it):
        u = self.unit[it]
        return [u, u + 1] if it[0] == "C" else [u]

    def next(self, maxn=99):
        c, g = self.c, self.g
        out = []
        for it in self.items:
            if it in self.unit:
                continue
            if len(out) >= maxn:
                break
            fr = sorted(self.free)
            pairs = [u for u in fr if u + 1 in self.free]
            if it[0] == "C":
                if not pairs:
                    continue
                u = pairs[0]
                self.free -= {u, u + 1}
                self.unit[it] = u
                r = it[1]
                out.append(lambda u=u, r=r: c.dma(g.vR1k, sWC, None, U(u), pre=rotk(r, 0, sCrow, sRC)))
                out.append(lambda u=u, r=r: c.dma(g.vR1k, sWD, None, U(u + 1), pre=rotk(r, 0, sCrow, sRC), tag=f"C{r}"))
            else:
                if not fr:
                    break
                u = fr[0]
                self.free.discard(u)
                self.unit[it] = u
                n = it[1]
                ph, j3 = n // 14, n % 14
                out.append(lambda u=u, n=n, ph=ph, j3=j3: c.dma(g.vK1k, sWB, None, U(u), tag=f"W{n}", pre=f"""s_add_u32 s{sT+8}, s{sRW}, {(2 * j3 + ph) * 65536}
                    s_sub_u32 s{sT+7}, s{sT+8}, {14*131072}
                    s_min_u32 s{sT+8}, s{sT+8}, s{sT+7}"""))
        return out


def sel(k, dst, sidx, vals):
    k(f"s_mov_b32 s{dst}, {vals[0]}")
    for i in range(1, len(vals)):
        k(f"s_cmp_eq_u32 s{sidx}, {i}\ns_cselect_b32 s{dst}, {vals[i]}, s{dst}")


def late_rot(c):
    k = c.k
    rot = c.opts.get("rot", ROT)
    k(f"s_lshr_b32 s{sT}, s2, 7")
    if rot & 4:
        k(f"""s_lshl_b32 s{sRC}, s{sT}, 1
        s_add_u32 s{sRC}, s{sRC}, s{sRH}
        s_lshl_b32 s{sRC}, s{sRC}, 1
        s_add_u32 s{sRC}, s{sRC}, s{sC}
        s_lshl_b32 s{sRC}, s{sRC}, 7""")
    else:
        k(f"s_mov_b32 s{sRC}, 0")
    if rot & 8:
        k(f"""s_mul_i32 s{sT}, s{sT}, 7
        s_mul_i32 s{sT+1}, s{sRH}, 3
        s_add_u32 s{sT}, s{sT}, s{sT+1}
        s_lshl_b32 s{sT+1}, s{sC}, 1
        s_add_u32 s{sT}, s{sT}, s{sT+1}
        s_sub_u32 s{sT+1}, s{sT}, 14
        s_min_u32 s{sT}, s{sT}, s{sT+1}""")
    else:
        k(f"s_mov_b32 s{sT}, 0")
    k(f"""s_lshl_b32 s{sRU}, s{sT}, 13
    s_lshl_b32 s{sRW}, s{sT}, 17
    s_add_u32 s{sRW}, s{sRW}, s{sC128}""")


def late_srds(c):
    k = c.k
    late_rot(c)
    srd(k, sWB, P_W4, 1792 * 1024)
    srd(k, sWC, P_CRE, 512 * 1024)
    srd(k, sWD, P_CIM, 512 * 1024)


def w3d(c, g, ph, i):
    u = W3H0[i] if ph == 0 else 6 + i
    c.dma(g.vK35, sWD, None, U(u), sadd=(sJ3Bp if i < 4 else sJ3Bm, i * 64 * 3584 + 128 * ph), tag=f"w3_{ph}_{i}")


class Queue:
    def __init__(self):
        self.q = []
    def add(self, ms, fn):
        self.q.append((ms, fn))
    def pop(self, s, n):
        while n > 0 and self.q and self.q[0][0] <= s:
            self.q.pop(0)[1]()
            n -= 1
    def flush(self):
        while self.q:
            self.q.pop(0)[1]()


def digits(x):
    return [int(ch) for ch in str(x)]


def exec_sel(k):
    k("s_mov_b32 exec_lo, 0x30003\ns_mov_b32 exec_hi, 0x30003")


def m_path(c, g):
    k, va, o = c.k, c.va, c.opts
    stop = o.get("stop", 99)
    UA = [(14, 15), (16, 17), (0, 1), (6, 7), (8, 9), (10, 11), (12, 13), (2, 3)]
    UB = [4, 5, 18, 14, 15, 16, 17, 0]
    vX0, vX1, vW1 = va.get(), va.get(), va.get()
    t, u, q = va.get(), va.get(), va.get()
    srd(k, sWA, P_W1, 512 * 1024)
    k(f"""s_lshr_b32 s{sT}, s{sC}, 2
    s_add_u32 s{sT}, s{sT}, 1
    s_sub_u32 s{sT+1}, 0, s{sT}
    s_bitcmp1_b32 s{sC}, 1
    s_cselect_b32 s{sB}, s{sT}, s{sT+1}         ; off
    s_add_u32 s{sT}, s{sT0}, s{sB}
    s_lshl_b32 s{sT}, s{sT}, 10
    v_add_u32 v{vX0}, s{sT}, v{g.vR1k}
    v_bfe_u32 v{u}, v{g.r8}, 1, 1
    s_lshl_b32 s{sT+1}, s{sKH}, 1
    v_or_b32 v{u}, s{sT+1}, v{u}
    v_lshlrev_b32 v{u}, 1, v{u}
    v_xor_b32 v{u}, v{u}, v{g.pos}
    v_lshlrev_b32 v{u}, 4, v{u}
    v_lshl_add_u32 v{vW1}, v{g.row}, 10, v{u}
    v_add_u32 v{vX1}, 0x10000, v{vX0}""")

    def ia(s, h):
        if h == 0:
            c.dma(vX0, sX, None, U(UA[s][0]), pre=rotk(s))
        else:
            c.dma(vW1, sWA, None, U(UA[s][1]), pre=rotk(s, 9, sC128), tag=f"a{s}")

    def ib(s):
        c.dma(vX1, sX, None, U(UB[s]), pre=rotk(s), tag=f"b{s}")
    n0 = o.get("n0", 4)
    c.stamp(56)
    for s in range(n0):
        ia(s, 0); ia(s, 1)
        if s == 0:
            c.stamp(57)
        if s == n0 - 1:
            c.stamp(58)
        if s + 1 == o.get("tch", 2):
            touch(c, g, 0)
    Q = Queue()
    for s in range(n0, 8):
        Q.add(0, lambda s=s: ia(s, 0))
        Q.add(0, lambda s=s: ia(s, 1))
    for s, ms in enumerate([0, 0, 0, 1, 1, 2, 2, 3]):
        Q.add(ms, lambda s=s: ib(s))
    for i in range(8):
        Q.add(4 + i // 2, lambda i=i: w2_dma(c, g, i))
    late_consts(c, g)
    kn_voff(c, g, True)
    srd(k, sWB, P_W2, 512 * 1024)
    srd(k, sWD, P_W3, 512 * 3584)
    for r in (g.r8, g.pos, g.row):
        va.put(r)
    aW = [va.get(), va.get()]
    aX = [va.get(), va.get()]
    vst = va.get()
    k(f"""v_lshrrev_b32 v{q}, 4, v1                   ; gq
    v_bfe_u32 v{t}, v1, 2, 2                    ; r'
    v_lshl_add_u32 v{u}, v{q}, 3, v{t}          ; 8gq+r'
    v_lshlrev_b32 v{aW[0]}, 7, v{u}
    v_lshrrev_b32 v{t}, 1, v{t}
    v_and_b32 v{u}, 1, v{q}
    v_lshl_add_u32 v{t}, v{u}, 1, v{t}
    v_lshlrev_b32 v{t}, 1, v{t}
    v_bfe_u32 v{u}, v1, 1, 1
    s_lshl_b32 s{sT}, s{sKH}, 2
    v_add_u32 v{u}, s{sT}, v{u}
    v_xor_b32 v{u}, v{u}, v{t}
    v_lshl_add_u32 v{aW[0]}, v{u}, 4, v{aW[0]}
    v_and_b32 v{u}, 1, v1
    v_lshl_add_u32 v{aW[0]}, v{u}, 3, v{aW[0]}
    v_xor_b32 v{aW[1]}, 32, v{aW[0]}
    v_and_b32 v{t}, 15, v1
    s_lshl_b32 s{sT}, s{sTQ}, 4
    v_add_u32 v{t}, s{sT}, v{t}
    v_bfe_u32 v{u}, v{t}, 1, 3
    v_xor_b32 v{u}, v{u}, v{q}
    v_lshlrev_b32 v{u}, 4, v{u}
    v_lshl_add_u32 v{aX[0]}, v{t}, 7, v{u}
    v_xor_b32 v{aX[1]}, 64, v{aX[0]}
    s_add_u32 s{sT}, s{sB}, 2
    s_lshl_b32 s{sT}, s{sT}, 3
    s_add_u32 s{sT}, s{sT}, {ST_B}
    v_lshl_add_u32 v{vst}, v{t}, 3, s{sT}
    s_lshr_b32 s{sT}, s{sT0}, 4
    s_add_u32 s{sT}, s{sT}, s{sTQ}
    s_lshl_b32 s{sT}, s{sT}, 4
    s_lshl_b32 s{sT+1}, s{sC}, 1
    s_add_u32 s{sT+1}, s{sT+1}, s{sKH}          ; kb
    s_add_u32 s{sT}, s{sT}, s{sT+1}
    s_lshl_b32 s{sHB}, s{sT}, 10
    s_lshl_b32 s{sT}, s{sTQ}, 4
    s_add_u32 s{sT}, s{sT}, s{sT+1}
    s_lshl_b32 s{sT}, s{sT}, 2
    s_add_u32 s{sUB}, s{sT}, s{sFL}
    s_lshl_b32 s{sT+1}, s{sW}, 5
    s_add_u32 s{sD}, s{sT+1}, s{sFL}""")
    for a in aW + aX:
        c.pre_hi(a)
    for r in (t, u, q):
        va.put(r)
    wf = va.get(128)
    acc = [va.get(4), va.get(4)]
    cs = [va.get(4), va.get(4)]
    ones = va.get(4)
    for i in range(4):
        k(f"v_mov_b32 v{ones+i}, s{sONE}")
    c.stamp(0)
    Q.pop(0, o.get("n1a", 0))
    stat_publish(c, g)
    touch(c, g, 1)
    Q.pop(0, o.get("n1", 0))
    c.stamp(51)
    NB = 3
    fb = [va.get(4) for _ in range(NB)]
    pipe = Pipe()
    mq = digits(o.get("mq", 43333333))
    g.vwarm = None
    for s in range(8):
        c.stamp(16 + s)
        k.waitvm(f"a{s}")
        bar(c)
        for ks in range(2):
            i = 2 * s + ks
            for a in range(2):
                for uu in range(2):
                    c.dsr("ds_read_b64_tr_b16", wf + 8 * i + 4 * a + 2 * uu, 2, aW[a], U(UA[s][1]) + (32 * ks + 4 * uu) * 128)
            c.dsr("ds_read_b128", fb[i % NB], 4, aX[ks], U(UA[s][0]))

            def mf(i=i):
                for a in range(2):
                    mf16(k, acc[a], wf + 8 * i + 4 * a, fb[i % NB], i == 0)
                for a in range(2):
                    mf16(k, cs[a], wf + 8 * i + 4 * a, ones, i == 0)
            pipe.push(mf)
            n = (mq[s] + 1 - ks) // 2
            Q.pop(s, (n + 1) // 2)
            pipe.drain(1)
            Q.pop(s, n // 2)
        if s == o.get("sis", 3):
            stat_issue(c, g)
        if s == o.get("xqs", 7):
            xq_load(c, g)
        if s == 6:
            stat_consume(c, g)
    pipe.drain()
    c.stamp(52)
    Q.flush()
    for a in aW:
        c.free_base(a)
    va.put(ones, 4); va.put(vX0); va.put(vX1); va.put(vW1)
    c.stamp(1)
    mode_read(c, g)
    accb = [va.get(4), va.get(4)]

    def epi(half, acc):
        k = c.k
        ab = va.get(2)
        t = va.get()
        k(f"ds_read_b64 {vr(ab,2)}, v{vst} offset:{half*512}")
        for a in range(2):
            for r in range(4):
                k(f"""v_mul_f32 v{t}, v{ab+1}, v{cs[a]+r}
                v_fma_f32 v{acc[a]+r}, v{ab}, v{acc[a]+r}, -v{t}""")
        va.put(t); va.put(ab, 2)
        gelu_many(c, [acc[a] + r for a in range(2) for r in range(4)])
        P = va.get(4)
        for a in range(2):
            for i in range(2):
                k(f"v_cvt_pk_bf16_f32 v{P+2*a+i}, v{acc[a]+2*i}, v{acc[a]+2*i+1}")
        if half:
            k(f"s_add_u32 s{sHB}, s{sHB}, 65536")
        c.store(f"buffer_store_dwordx4 {vr(P,4)}, v{g.vL16}, s[{sWS}:{sWS+3}], s{sHB} offen", o.get("phx"), tag=f"hp{half}")
        va.put(P, 4)
    aG = [va.get() for _ in range(4)]
    vx1, vex = va.get(), va.get()

    def prep():
        k = c.k
        t, u, q = va.get(), va.get(), va.get()
        k(f"""v_lshrrev_b32 v{q}, 4, v1
        v_bfe_u32 v{t}, v1, 2, 2
        v_lshl_add_u32 v{u}, v{q}, 2, v{t}          ; 4q+r'
        v_lshlrev_b32 v{aG[0]}, 7, v{u}
        v_lshrrev_b32 v{t}, 1, v{t}
        v_lshlrev_b32 v{t}, 2, v{t}
        v_and_b32 v{u}, 1, v{q}
        v_lshl_add_u32 v{t}, v{u}, 1, v{t}          ; swz
        v_bfe_u32 v{u}, v1, 1, 1
        s_lshl_b32 s{sT}, s{sKH}, 2
        v_add_u32 v{u}, s{sT}, v{u}
        v_xor_b32 v{u}, v{u}, v{t}
        v_lshl_add_u32 v{aG[0]}, v{u}, 4, v{aG[0]}
        v_and_b32 v{u}, 1, v1
        v_lshl_add_u32 v{aG[0]}, v{u}, 3, v{aG[0]}
        s_lshl_b32 s{sT}, s{sKHP}, 15
        s_add_u32 s{sT}, s{sT}, {U(6)}
        v_add_u32 v{aG[0]}, s{sT}, v{aG[0]}""")
        for a in range(1, 4):
            k(f"v_xor_b32 v{aG[a]}, {a*32}, v{aG[0]}")
        k(f"""v_and_b32 v{t}, 15, v1
        v_and_b32 v{u}, 1, v{q}
        v_lshl_add_u32 v{t}, v{u}, 5, v{t}
        v_lshlrev_b32 v{t}, 4, v{t}
        v_lshrrev_b32 v{u}, 1, v{q}
        v_lshl_add_u32 v{vx1}, v{u}, 10, v{t}
        s_lshl_b32 s{sT}, s{sW}, 11
        s_add_u32 s{sT}, s{sT}, {U(4)}
        v_add_u32 v{vex}, s{sT}, v{g.vL16}
        s_lshr_b32 s{sT}, s{sT0}, 5
        s_lshr_b32 s{sT+1}, s{sW}, 2
        s_add_u32 s{sT}, s{sT}, s{sT+1}             ; t32
        s_lshl_b32 s{sT+2}, s{sC}, 1
        s_add_u32 s{sT+2}, s{sT+2}, s{sKH}          ; slice
        s_and_b32 s{sT+3}, s{sTQ}, 1
        s_lshl_b32 s{sT}, s{sT}, 4
        s_add_u32 s{sT}, s{sT}, s{sT+2}             ; t32*16+slice
        s_lshl_b32 s{sT}, s{sT}, 1
        s_add_u32 s{sT}, s{sT}, s{sT+3}
        s_lshl_b32 s{sB}, s{sT}, 7
        s_lshl_b32 s{sT+1}, s{sT+1}, 5
        s_lshl_b32 s{sT+3}, s{sT+3}, 4
        s_add_u32 s{sT+1}, s{sT+1}, s{sT+3}
        s_add_u32 s{sT+1}, s{sT+1}, s{sT+2}
        s_lshl_b32 s{sT+1}, s{sT+1}, 2
        s_add_u32 s{sT+1}, s{sT+1}, s{sFL}
        s_add_u32 s{sA}, s{sT+1}, 1024""")
        for r in (t, u, q):
            va.put(r)
        xn_prep(c, g, 0)
        xn_prep(c, g, 1)
    fill, rel = capture_hold(c, lambda: (epi(0, acc), c.stamp(2), prep()))
    w3s = {}
    plan = o.get("w3p", "b2:05,b3:06,b4:07,x:0001020304,e:10111213,f:14151617")
    for it in plan.split(","):
        sl, _, ds_ = it.partition(":")
        w3s[sl] = [(int(ds_[i]), int(ds_[i + 1])) for i in range(0, len(ds_), 2)]

    def w3slot(name):
        for ph, i in w3s.pop(name, []):
            if stop >= 4:
                w3d(c, g, ph, i)

    def g1b():
        k = c.k
        pipe = Pipe()
        k.waitvm("b4")
        bar(c)
        c.stamp(59)
        for s in range(8):
            if s == 5:
                k.waitvm("b7")
                bar(c)
                c.stamp(14)
            for ks in range(2):
                i = 2 * s + ks
                c.dsr("ds_read_b128", fb[i % NB], 4, aX[ks], U(UB[s]))

                def mf(i=i):
                    for a in range(2):
                        mf16(k, accb[a], wf + 8 * i + 4 * a, fb[i % NB], i == 0)
                pipe.push(mf)
                pipe.drain(2)
            w3slot(f"b{s}")
        pipe.drain()
    main = capture(c, g1b)
    splice(k, main, fill, o.get("per1", 7))
    rel()
    for a in aX:
        c.free_base(a)
    for f in fb:
        va.put(f, 4)
    c.stamp(3)
    epi(1, accb)
    w3slot("d")
    va.put(vst)
    for a in range(2):
        va.put(acc[a], 4); va.put(accb[a], 4); va.put(cs[a], 4)
    warm_done(c, g)
    if stop < 2:
        k.waitvm("hp1")
        c.flag(g, sUB)
        return
    k(f"""s_lshl_b32 s{sT}, s{sB}, 3
    s_and_b32 s{sT}, s{sT}, 0xfffff800
    s_and_b32 s{sT+1}, s{sB}, 128
    s_lshl_b32 s{sT+1}, s{sT+1}, 1
    s_add_u32 s{sT}, s{sT}, s{sT+1}
    s_add_u32 s{sHB}, s{sT}, {WS_X1}
    s_add_u32 s{sB}, s{sB}, {WS_PS}""")
    c.stamp(4)
    k.waitvm("w2_7")
    bar(c)
    c.stamp(5)
    w3slot("x")
    for i in range(8):
        for a in range(4):
            for uu in range(2):
                k(f"ds_read_b64_tr_b16 {vr(wf+16*i+4*a+2*uu,2)}, v{aG[a]} offset:{(i>>1)*8192 + (32*(i&1)+16*uu)*128}")
        w3slot(f"g{i}")
        if i == o.get("f0", 2):
            c.stamp(49)
            k.waitvm("hp1")
            c.stamp(60)
            c.flag(g, sUB)
        if i == o.get("p0", 7):
            g.p0 = c.poll_issue(g, sD, 8)
    for a in aG:
        va.put(a)
    bar(c)
    c.stamp(6)
    w3slot("y")
    hp = va.get(64)
    c.poll_check(g, g.p0)
    k(f"""s_lshl_b32 s{sT}, s{sT0}, 10
    s_lshl_b32 s{sT+1}, s{sW}, 13
    s_add_u32 s{sT}, s{sT}, s{sT+1}""")
    for i in range(16):
        if i & 3 == 0 and i:
            k(f"s_add_u32 s{sT}, s{sT}, {4096 if i != 8 else 65536 - 4096}")
        k(f"buffer_load_dwordx4 {vr(hp+4*i,4)}, v{g.vL16}, s[{sWS}:{sWS+3}], s{sT} offen offset:{(i&3)*1024} sc1")
    c.stamp(7)
    w3slot("e")
    accs = [[va.get(4) for _ in range(4)] for h in range(2)]

    def mfg(h, i):
        for a in (2, 3, 0, 1):
            mf16(c.k, accs[h][a], wf + 16 * i + 4 * a, hp + 32 * h + 4 * i, i == 0)

    def xwrite(acc):
        k = c.k
        for i in range(2):
            k(f"ds_write_b128 v{vex}, {vr(acc[2+i],4)} offset:{1024*i}")
        k(f"v_xor_b32 v{vex}, 2048, v{vex}")

    def x1_epi(half):
        k = c.k
        acc = accs[half]
        for i in range(2):
            k(f"ds_read_b128 {vr(acc[2+i],4)}, v{vex} offset:{1024*i}")
        lo, hi = va.get(), va.get()
        x1 = va.get(4)
        for i in range(4):
            a = acc[i >> 1] + 2 * (i & 1)
            b = acc[2 + (i >> 1)] + 2 * (i & 1)
            k(f"""v_lshlrev_b32 v{lo}, 16, v{g.xq+4*half+i}
            v_and_b32 v{hi}, 0xffff0000, v{g.xq+4*half+i}
            v_add_f32 v{a}, v{a}, v{b}
            v_add_f32 v{a+1}, v{a+1}, v{b+1}
            v_add_f32 v{lo}, v{lo}, v{a}
            v_add_f32 v{hi}, v{hi}, v{a+1}
            v_cvt_pk_bf16_f32 v{x1+i}, v{lo}, v{hi}""")
        c.store(f"buffer_store_dwordx4 {vr(x1,4)}, v{vx1}, s[{sWS}:{sWS+3}], s{sHB} offen", o.get("phx"))
        s12 = va.get(2)
        S1, S2 = s12, s12 + 1
        k(f"v_mov_b32 v{S1}, 0\nv_mov_b32 v{S2}, 0")
        for i in range(4):
            k(f"v_dot2c_f32_bf16 v{S1}, s{sONE}, v{x1+i}\nv_dot2c_f32_bf16 v{S2}, v{x1+i}, v{x1+i}")
        k(f"""v_permlane32_swap_b32 v{S1}, v{S2}
        v_add_f32 v{S1}, v{S1}, v{S2}
        v_mov_b32 v{S2}, v{S1}
        v_permlane16_swap_b32 v{S1}, v{S2}
        v_add_f32 v{S1}, v{S1}, v{S2}
        v_mov_b32 v{S2}, v{S1}
        v_permlane32_swap_b32 v{S1}, v{S2}
        v_lshlrev_b32 v{lo}, 3, v1
        s_mov_b64 exec, 0xffff""")
        c.store(f"buffer_store_dwordx2 {vr(s12,2)}, v{lo}, s[{sWS}:{sWS+3}], s{sB} offen", o.get("phx"), tag=f"x1st{half}")
        k("s_mov_b64 exec, -1")
        va.put(s12, 2); va.put(x1, 4); va.put(lo); va.put(hi)
    for i in range(8):
        mfg(0, i)
        w3slot(f"m{i}")
    xwrite(accs[0])
    nb = o.get("g2bn", 2)
    for i in range(nb):
        mfg(1, i)
    bar(c)
    c.stamp(8)
    x1_epi(0)
    k(f"s_add_u32 s{sHB}, s{sHB}, 65536\ns_add_u32 s{sB}, s{sB}, 8192")
    for i in range(nb, 8):
        mfg(1, i)
        w3slot(f"h{i}")
    va.put(wf, 128); va.put(hp, 64)
    xwrite(accs[1])
    bar(c)
    c.stamp(53)
    x1_epi(1)
    w3slot("f")
    assert not w3s, w3s
    for h in range(2):
        for a in accs[h]:
            va.put(a, 4)
    va.put(g.xq, 8); va.put(vx1); va.put(vex)
    c.stamp(54)

    def f1():
        c.k.waitvm("x1st1")
        c.flag(g, sA)
        if stop >= 4:
            f1_issue(c, g)
    return f1


SL = [(9, 10, 11, 12), (13, 14, 15, 16), (17, 18, 0, 1), (2, 3, 4, 5)]


def s_issue(c, g, s):
    sl = SL[s % 4]
    return [lambda: c.dma(g.vX0, sX, None, U(sl[0]), pre=rotk(s)),
            lambda: c.dma(g.vX1, sX, None, U(sl[1]), pre=rotk(s)),
            lambda: c.dma(g.vR1k, sWA, None, U(sl[2]), pre=rotk(s, 0, sCrow)),
            lambda: c.dma(g.vR1k, sWB, None, U(sl[3]), pre=rotk(s, 0, sCrow), tag=f"a{s}")]


def s_start(c, g):
    k, va, o = c.k, c.va, c.opts
    g.vX0, g.vX1 = va.get(), va.get()
    srd(k, sWA, P_BRE, 512 * 1024)
    srd(k, sWB, P_BIM, 512 * 1024)
    k(f"""s_lshl_b32 s{sT}, s{sT0}, 10
    v_add_u32 v{g.vX0}, s{sT}, v{g.vR1k}
    v_add_u32 v{g.vX1}, 0x10000, v{g.vX0}""")
    c.stamp(56)
    for s in range(o.get("n0t", 1)):
        for f in s_issue(c, g, s):
            f()
    if o.get("hs", 3) & 1:
        k(f"""s_cmp_lg_u32 s{sW}, {o.get("hsw", 6)}
        s_cbranch_scc1 L_hs""")
        k.region_begin()
        k(f"s_lshr_b32 s{sT}, s2, 4")
        touch2(c, g, sT, [(P_W1, 8, 512 * 1024, -1024, 384), (P_W2, 8, 512 * 1024, -1024, 384)])
        k.region_end()
        k("L_hs:")
    c.stamp(57)
    k(f"""s_cmp_ge_u32 s{sJ}, 13
    s_cbranch_scc1 L_pathS0
    s_branch L_pathS3""")


def p1_S(c, g, full, sc):
    k, va, o = c.k, c.va, c.opts
    stop = o.get("stop", 99)
    vX0, vX1 = g.vX0, g.vX1
    issue = lambda s: s_issue(c, g, s)
    n0 = o.get("n0s", 2)
    c.stamp(58)
    hs = o.get("hs", 3)
    for s in range(o.get("n0t", 1), n0):
        for f in issue(s):
            f()
    touch(c, g, 0)
    Q = Queue()
    for s in range(n0, 8):
        for f in issue(s):
            Q.add(max(0, s - 3), f)
    i32, hf, t, u = va.get(), va.get(), va.get(), va.get()
    lre, lim, ldt = va.get(), va.get(), va.get()
    k(f"""v_and_b32 v{i32}, 31, v1
    v_lshrrev_b32 v{hf}, 5, v1
    s_lshl_b32 s{sT}, s{sKH}, 6
    s_add_u32 s{sT}, s{sT}, s{sC128}
    v_lshlrev_b32 v{t}, 1, v{i32}""")
    for p, d in ((P_LRE, lre), (P_LIM, lim), (P_LDT, ldt)):
        srd(k, sMI, p, 1024)
        k(f"buffer_load_ushort v{d}, v{t}, s[{sMI}:{sMI+3}], s{sT} offen")
    late_consts(c, g)
    kn_voff(c, g, full)
    late = stop >= (4 if full else 5)
    if full:
        srd(k, sWD, P_W3, 512 * 3584)
        if late:
            for ph, i, ms in [(1, 0, 0), (1, 1, 0), (1, 2, 0), (1, 3, 5), (1, 4, 5), (1, 5, 5), (1, 6, 5), (1, 7, 6),
                              (0, 0, 6), (0, 1, 6), (0, 2, 6), (0, 3, 7), (0, 4, 7), (0, 5, 7), (0, 6, 8), (0, 7, 8)]:
                Q.add(ms, lambda ph=ph, i=i: w3d(c, g, ph, i))
    else:
        srd(k, sWC, P_CRE, 512 * 1024)
        srd(k, sWD, P_CIM, 512 * 1024)
        if late:
            Q.add(0, lambda: (srd(c.k, sWB, P_W4, 1792 * 1024), late_rot(c)))
            for us, ms in [((6, 7, 8), 0), ((9, 10, 11, 12), 5), ((13, 14, 15, 16), 6), ((17, 0, 1), 7), ((2, 3), 8)]:
                sc.release(us)
                for f in sc.next():
                    Q.add(ms, f)
    for r in (g.r8, g.pos, g.row):
        va.put(r)
    aA = [va.get() for _ in range(4)]
    aB = [va.get() for _ in range(4)]
    k(f"""v_lshrrev_b32 v{t}, 2, v{i32}
    v_and_b32 v{t}, 1, v{t}
    v_lshlrev_b32 v{t}, 4, v{t}
    v_lshrrev_b32 v{u}, 3, v{i32}
    v_lshl_add_u32 v{t}, v{u}, 2, v{t}
    v_and_b32 v{u}, 3, v{i32}
    v_add_u32 v{t}, v{t}, v{u}               ; tau
    v_bfe_u32 v{u}, v{t}, 1, 3
    v_xor_b32 v{u}, v{u}, v{hf}
    v_lshlrev_b32 v{u}, 4, v{u}
    v_lshl_add_u32 v{aA[0]}, v{t}, 7, v{u}
    s_lshl_b32 s{sT}, s{sTQ}, 12
    v_add_u32 v{aA[0]}, s{sT}, v{aA[0]}
    v_bfe_u32 v{u}, v{i32}, 1, 3
    v_xor_b32 v{u}, v{u}, v{hf}
    v_lshlrev_b32 v{u}, 4, v{u}
    v_lshl_add_u32 v{aB[0]}, v{i32}, 7, v{u}
    s_lshl_b32 s{sT}, s{sKH}, 12
    v_add_u32 v{aB[0]}, s{sT}, v{aB[0]}
    s_lshl_b32 s{sT}, s{sTQ}, 5
    v_xor_b32 v{aA[0]}, s{sT}, v{aA[0]}
    v_xor_b32 v{aB[0]}, s{sT}, v{aB[0]}""")
    for i in range(1, 4):
        k(f"v_xor_b32 v{aA[i]}, {i*32}, v{aA[0]}\nv_xor_b32 v{aB[i]}, {i*32}, v{aB[0]}")
    for a in aA:
        c.pre_hi(a, (1, 2))
    for a in aB:
        c.pre_hi(a, (1, 2))
    s4 = sel_make(c)
    c.stamp(0)
    Q.pop(0, o.get("n1sa", 0))
    stat_publish(c, g)
    touch(c, g, 1)
    Q.pop(0, o.get("n1s", 0))
    c.stamp(51)
    accr, acci = va.get(16), va.get(16)
    csr, csi = va.get(4), va.get(4)
    NB = 3
    fa = [va.get(4) for _ in range(NB)]
    fr = [va.get(4) for _ in range(NB)]
    fi = [va.get(4) for _ in range(NB)]
    lr, li, kr, ki = [va.get() for _ in range(4)]
    pw = [va.get(2), va.get(2)]
    l16, l128, fs, fe = [va.get(2) for _ in range(4)]
    dt, e, x2 = va.get(), va.get(), va.get()
    l256 = va.get(2)

    def params():
        k = c.k
        k(f"""v_lshlrev_b32 v{lre}, 16, v{lre}
        v_lshlrev_b32 v{lim}, 16, v{lim}
        v_lshlrev_b32 v{ldt}, 16, v{ldt}
        v_mul_f32 v{dt}, {fhex(LOG2E)}, v{ldt}
        v_exp_f32 v{dt}, v{dt}""")
        c.bf16r(dt, dt)
        k(f"""v_mul_f32 v{e}, v{dt}, v{lre}
        v_mul_f32 v{e}, {fhex(LOG2E)}, v{e}
        v_exp_f32 v{e}, v{e}
        v_mul_f32 v{x2}, v{dt}, v{lim}
        v_mul_f32 v{x2}, {fhex(0.15915494309189535)}, v{x2}
        v_cos_f32 v{lr}, v{x2}
        v_sin_f32 v{li}, v{x2}
        v_mul_f32 v{lr}, v{lr}, v{e}
        v_mul_f32 v{li}, v{li}, v{e}
        v_mul_f32 v{e}, v{lre}, v{lre}
        v_fma_f32 v{e}, v{lim}, v{lim}, v{e}
        v_rcp_f32 v{e}, v{e}
        v_add_f32 v{x2}, -1.0, v{lr}
        v_mul_f32 v{kr}, v{x2}, v{lre}
        v_fma_f32 v{kr}, v{li}, v{lim}, v{kr}
        v_mul_f32 v{ki}, v{li}, v{lre}
        v_fma_f32 v{ki}, -v{x2}, v{lim}, v{ki}
        v_add_f32 v{e}, v{e}, v{e}
        v_mul_f32 v{kr}, v{kr}, v{e}
        v_mul_f32 v{ki}, v{ki}, v{e}""")
        csq(k, pw[0], pw[0] + 1, lr, li)
        csq(k, pw[1], pw[1] + 1, pw[0], pw[0] + 1)
        csq(k, pw[0], pw[0] + 1, pw[1], pw[1] + 1)
        csq(k, l16, l16 + 1, pw[0], pw[0] + 1)

        def factor(dst, base):
            k(f"""v_cndmask_b32 v{dst}, 1.0, v{base}, s[4:5]
            v_cndmask_b32 v{dst+1}, 0, v{base+1}, s[4:5]""")
            cur = base
            for b in range(2):
                nx = pw[b]
                csq(k, nx, nx + 1, cur, cur + 1)
                cmul(k, e, x2, dst, dst + 1, nx, nx + 1)
                k(f"""v_cndmask_b32 v{dst}, v{dst}, v{e}, s[{6+2*b}:{7+2*b}]
                v_cndmask_b32 v{dst+1}, v{dst+1}, v{x2}, s[{6+2*b}:{7+2*b}]""")
                cur = nx
            return cur
        p4 = factor(fs, l16)
        csq(k, l128, l128 + 1, p4, p4 + 1)
        csq(k, l256, l256 + 1, l128, l128 + 1)
        factor(fe, l256)
    k(f"""s_mov_b32 s4, 0
    s_mov_b32 s5, -1
    s_bitcmp1_b32 s{sTQ}, 0
    s_cselect_b64 s[6:7], -1, 0
    s_bitcmp1_b32 s{sTQ}, 1
    s_cselect_b64 s[8:9], -1, 0""")
    fill = capture(c, params)
    sq = digits(o.get("sq", 65444444))
    g.vwarm = None

    def steps():
        k = c.k
        pipe = Pipe()
        for s in range(8):
            c.stamp(16 + s)
            k.waitvm(f"a{s}")
            bar(c)
            sl = SL[s % 4]
            assert sl[1] == sl[0] + 1
            for i in range(4):
                n = 4 * s + i
                b = n % NB
                c.dsr("ds_read_b128", fa[b], 4, aA[i], U(sl[0]))
                c.dsr("ds_read_b128", fr[b], 4, aB[i], U(sl[2]))
                c.dsr("ds_read_b128", fi[b], 4, aB[i], U(sl[3]))

                def mf(n=n, b=b, i=i):
                    mf32(k, accr, fa[b], fr[b], n == 0)
                    mf32(k, acci, fa[b], fi[b], n == 0)
                    if i == 0:
                        mf16(k, csr, fr[b], s4, n == 0)
                        mf16(k, csi, fi[b], s4, n == 0)
                pipe.push(mf)
                pipe.drain(1)
                Q.pop(s, (sq[s] + 3 - i) // 4)
            if s == o.get("sis", 3):
                stat_issue(c, g)
            if s == o.get("wmss", 5):
                warm_mall(c, g)
            if hs & 2 and s == o.get("hl0", 5):
                lab = k.label("L_hl")
                k(f"""s_sub_u32 s{sT}, s{sW}, 3
                s_cmp_ge_u32 s{sT}, 2
                s_cbranch_scc1 {lab}""")
                k.region_begin()
                k(f"""s_lshl_b32 s{sT}, s{sT}, 4
                s_lshr_b32 s{sT+1}, s2, 4
                s_add_u32 s{sT}, s{sT}, s{sT+1}""")
                touch2(c, g, sT, [(P_W4, 28, 1792 * 1024, -1024, 384)])
                k.region_end()
                k(f"{lab}:")
            if s == 6:
                stat_consume(c, g)
        pipe.drain()
    main = capture(c, steps)
    splice(k, main, fill, o.get("pers", 3))
    for r in (lre, lim, ldt, dt, e, x2):
        va.put(r)
    va.put(l256, 2); va.put(pw[0], 2); va.put(pw[1], 2)
    for a in aA + aB:
        c.free_base(a)
    for f in fa + fr + fi:
        va.put(f, 4)
    va.put(vX0); va.put(vX1); va.put(s4, 4)
    Q.pop(7, 99)
    c.stamp(1)
    k(f"""v_lshrrev_b32 v{t}, 4, v1
    v_and_b32 v{u}, 1, v1
    v_lshl_add_u32 v{t}, v{u}, 2, v{t}
    s_lshl_b32 s{sT}, s{sKH}, 10
    s_add_u32 s{sT}, s{sT}, {CSB}
    s_lshl_b32 s{sT+1}, s{sTQ}, 3
    s_add_u32 s{sT+1}, s{sT+1}, s{sT}
    v_lshl_add_u32 v{u}, v{t}, 7, s{sT+1}
    v_lshl_add_u32 v{t}, v{i32}, 5, s{sT}""")
    exec_sel(k)
    for r in range(4):
        k(f"ds_write2_b32 v{u}, v{csr+r}, v{csi+r} offset0:{8*r} offset1:{8*r+1}")
    k("s_mov_b64 exec, -1")
    st = va.get(32)
    k(f"""s_lshl_b32 s{sT}, s{sTQ}, 8
    s_add_u32 s{sT}, s{sT}, {ST_A + 16}
    v_lshl_add_u32 v{u}, v{hf}, 7, s{sT}""")
    for i in range(8):
        k(f"ds_read_b128 {vr(st+4*i,4)}, v{u} offset:{16*i}")
    mode_read(c, g)
    warm_done(c, g)
    t1, t2 = va.get(), va.get()
    for r in range(16):
        k(f"""v_mul_f32 v{t1}, v{kr}, v{accr+r}
        v_mul_f32 v{t2}, v{kr}, v{acci+r}
        v_fma_f32 v{t1}, -v{ki}, v{acci+r}, v{t1}
        v_fma_f32 v{acci+r}, v{ki}, v{accr+r}, v{t2}
        v_mul_f32 v{accr+r}, v{st+2*r}, v{t1}
        v_mul_f32 v{acci+r}, v{st+2*r}, v{acci+r}""")
    bar(c)
    Q.flush()
    cs = va.get(8)
    k(f"""ds_read_b128 {vr(cs,4)}, v{t}
    ds_read_b128 {vr(cs+4,4)}, v{t} offset:16
    v_add_f32 v{csr}, v{cs}, v{cs+2}
    v_add_f32 v{csi}, v{cs+1}, v{cs+3}
    v_add_f32 v{cs+4}, v{cs+4}, v{cs+6}
    v_add_f32 v{cs+5}, v{cs+5}, v{cs+7}
    v_add_f32 v{csr}, v{csr}, v{cs+4}
    v_add_f32 v{csi}, v{csi}, v{cs+5}""")
    cmul(k, cs, cs + 1, kr, ki, csr, csi)
    for r in range(16):
        k(f"""v_fma_f32 v{accr+r}, -v{st+2*r+1}, v{cs}, v{accr+r}
        v_fma_f32 v{acci+r}, -v{st+2*r+1}, v{cs+1}, v{acci+r}""")
    va.put(cs, 8); va.put(st, 32); va.put(csr, 4); va.put(csi, 4)
    for r in (t1, t2, kr, ki):
        va.put(r)
    h = [va.get(2), va.get(2)]
    cur = (accr, acci)
    for r in range(1, 16):
        d = h[r & 1]
        cmad(k, d, d + 1, lr, li, cur[0], cur[1], accr + r, acci + r)
        cur = (d, d + 1)
    SEG = U(18)
    k(f"""s_lshl_b32 s{sT}, s{sKH}, 8
    s_add_u32 s{sT}, s{sT}, {SEG}
    v_lshl_add_u32 v{t}, v{i32}, 3, s{sT}       ; SEG + p*8
    v_lshl_add_u32 v{u}, v{hf}, 9, v{t}
    s_lshl_b32 s{sT}, s{sTQ}, 10
    v_add_u32 v{u}, s{sT}, v{u}
    ds_write_b64 v{u}, {vr(cur[0],2)}""")
    g.eg = va.get(8)
    g.veb = va.get(2)
    k(f"""s_lshl_b32 s{sT}, s{sTQ}, 2
    s_sub_u32 s{sT}, s{sG}, s{sT}
    s_sub_u32 s{sT}, s{sT}, 1
    s_lshl_b32 s{sT}, s{sT}, 13
    s_lshl_b32 s{sT+1}, s{sC}, 10
    s_add_u32 s{sT}, s{sT}, s{sT+1}
    s_lshl_b32 s{sT+1}, s{sKH}, 9
    s_add_u32 s{sT}, s{sT}, s{sT+1}
    v_lshl_add_u32 v{g.veb}, v{i32}, 4, s{sT}
    v_lshlrev_b32 v{g.veb+1}, 14, v{hf}
    v_sub_u32 v{g.veb}, v{g.veb}, v{g.veb+1}
    v_subrev_u32 v{g.veb+1}, 8192, v{g.veb}""")
    bar(c)
    c.stamp(2)
    es = va.get(16)
    for s in range(8):
        k(f"ds_read_b64 {vr(es+2*s,2)}, v{t} offset:{512*s}")
    pre = va.get(2)
    k(f"""s_lshl_b32 s{sT}, s{sTQ}, 1
    v_add_u32 v{u}, s{sT}, v{hf}
    v_mov_b32 v{pre}, 0
    v_mov_b32 v{pre+1}, 0""")
    cur = (es, es + 1)
    for s in range(1, 8):
        d = h[s & 1]
        k(f"""v_cmp_eq_u32 vcc, {s}, v{u}
        v_cndmask_b32 v{pre}, v{pre}, v{cur[0]}, vcc
        v_cndmask_b32 v{pre+1}, v{pre+1}, v{cur[1]}, vcc""")
        cmad(k, d, d + 1, l16, l16 + 1, cur[0], cur[1], es + 2 * s, es + 2 * s + 1)
        cur = (d, d + 1)
    g4 = es
    lab = k.label("L_es")
    k(f"s_cmp_lg_u32 s{sTQ}, 0\ns_cbranch_scc1 {lab}")
    k.region_begin()
    k(f"""v_mov_b32 v{g4}, v{cur[0]}
    v_mov_b32 v{g4+1}, s{sNON}
    v_mov_b32 v{g4+2}, v{cur[1]}
    v_mov_b32 v{g4+3}, s{sNON}
    s_lshl_b32 s{sT}, s{sG}, 13
    s_lshl_b32 s{sT+1}, s{sC}, 10
    s_add_u32 s{sT}, s{sT}, s{sT+1}
    s_lshl_b32 s{sT+1}, s{sKH}, 9
    s_add_u32 s{sT}, s{sT}, s{sT+1}
    s_add_u32 s{sT}, s{sT}, {WS_E}
    s_mov_b64 exec, 0xffffffff
    buffer_store_dwordx4 {vr(g4,4)}, v{g.vL16}, s[{sWS}:{sWS+3}], s{sT} offen sc1
    s_mov_b64 exec, -1""")
    k.region_end()
    k(f"{lab}:")
    va.put(es, 16); va.put(h[0], 2); va.put(h[1], 2); va.put(l16, 2); va.put(t); va.put(u)
    c.stamp(3)
    g.scan = dict(accr=accr, acci=acci, lr=lr, li=li, l128=l128, fs=fs, fe=fe, pre=pre, i32=i32, hf=hf)


def e_loads(c, g):
    k = c.k
    k(f"""s_add_u32 s{sMI}, s{P_WS}, {WS_E}
    s_addc_u32 s{sMI+1}, s{P_WS+1}, 0
    s_mov_b32 s{sMI+2}, 131072
    s_mov_b32 s{sMI+3}, 0x00020000""")
    for ii in range(2):
        k(f"buffer_load_dwordx4 {vr(g.eg+4*ii,4)}, v{g.veb+ii}, s[{sMI}:{sMI+3}], 0 offen sc1")


def scan2a(c, g):
    k, va = c.k, c.va
    S = g.scan
    eg = g.eg
    loop, done = k.label("L_el"), k.label("L_ed")
    bad, e_, x_, y_ = [va.get() for _ in range(4)]
    k(f"""v_mov_b32 v{bad}, v{eg+7}
    s_mov_b32 s{sT+1}, {SPIN}
    {loop}:
    v_mov_b32 v{bad}, 0""")
    for ii in range(2):
        k(f"""v_cmp_le_i32 vcc, 0, v{g.veb+ii}
        v_cndmask_b32 v{e_}, 0, v{g.vNON}, vcc
        v_xor_b32 v{x_}, v{e_}, v{eg+4*ii+1}
        v_xor_b32 v{y_}, v{e_}, v{eg+4*ii+3}
        v_or3_b32 v{bad}, v{bad}, v{x_}, v{y_}""")
    k(f"""v_cmp_ne_u32 vcc, 0, v{bad}
    s_cbranch_vccz {done}""")
    k.region_begin()
    e_loads(c, g)
    k(f"""s_waitcnt vmcnt(0)
    s_sub_u32 s{sT+1}, s{sT+1}, 1
    s_cmp_lg_u32 s{sT+1}, 0
    s_cbranch_scc1 {loop}""")
    k.region_end()
    k(f"{done}:")
    d = va.get(2)
    cmad(k, x_, y_, S["l128"], S["l128"] + 1, eg + 4, eg + 6, eg, eg + 2)
    cmul(k, d, d + 1, S["fe"], S["fe"] + 1, x_, y_)
    k(f"""v_mov_b32 v{x_}, v{d}
    v_mov_b32 v{y_}, v{d+1}
    v_permlane32_swap_b32 v{d}, v{x_}
    v_permlane32_swap_b32 v{d+1}, v{y_}
    v_add_f32 v{d}, v{d}, v{x_}
    v_add_f32 v{d+1}, v{d+1}, v{y_}
    s_lshl_b32 s{sT}, s{sKH}, 8
    s_add_u32 s{sT}, s{sT}, {CSB}
    v_lshl_add_u32 v{e_}, v{S['i32']}, 3, s{sT}
    s_lshl_b32 s{sT}, s{sTQ}, 9
    v_add_u32 v{bad}, s{sT}, v{e_}
    ds_write_b64 v{bad}, {vr(d,2)}""")
    g.vep = e_
    for r in (bad, x_, y_):
        va.put(r)
    va.put(d, 2); va.put(eg, 8); va.put(g.veb, 2); va.put(S["l128"], 2); va.put(S["fe"], 2)


def scan2b(c, g, hooks):
    k, va = c.k, c.va
    S = g.scan
    ep = va.get(8)
    for i in range(4):
        k(f"ds_read_b64 {vr(ep+2*i,2)}, v{g.vep} offset:{512*i}")
    va.put(g.vep)
    wr, rd, vho, t = [va.get() for _ in range(4)]
    k(f"""s_xor_b32 s{sT}, s{sW}, 1
    s_lshl_b32 s{sT}, s{sT}, 11
    s_add_u32 s{sT}, s{sT}, {U(4)}
    v_lshl_add_u32 v{wr}, v{S['i32']}, 5, s{sT}
    v_lshl_add_u32 v{wr}, v{S['hf']}, 4, v{wr}
    v_lshl_add_u32 v{rd}, v{S['hf']}, 10, s{sT}
    v_bfe_u32 v{t}, v1, 4, 1
    v_lshl_add_u32 v{rd}, v{t}, 8, v{rd}
    v_lshlrev_b32 v{vho}, 10, v{t}
    v_and_b32 v{t}, 15, v1
    v_lshl_add_u32 v{rd}, v{t}, 3, v{rd}        ; r'*32 + c4*8
    v_lshl_add_u32 v{vho}, v{S['hf']}, 9, v{vho}
    v_bfe_u32 v{t}, v1, 3, 1
    v_lshl_add_u32 v{vho}, v{t}, 8, v{vho}
    v_and_b32 v{t}, 7, v1
    v_lshl_add_u32 v{vho}, v{t}, 4, v{vho}
    s_lshr_b32 s{sT}, s{sT0}, 5
    s_add_u32 s{sT}, s{sT}, s{sTQ}
    s_lshl_b32 s{sT}, s{sT}, 16
    s_lshl_b32 s{sT+1}, s{sC}, 13
    s_add_u32 s{sT}, s{sT}, s{sT+1}
    s_lshl_b32 s{sT+1}, s{sKH}, 12
    s_add_u32 s{sT}, s{sT}, s{sT+1}
    s_add_u32 s{sHB}, s{sT}, {WS_H}
    s_lshl_b32 s{sT}, s{sW}, 3
    s_add_u32 s{sT}, s{sT}, s{sC}
    s_lshl_b32 s{sT}, s{sT}, 2
    s_add_u32 s{sT}, s{sT}, s{sFL}
    s_add_u32 s{sUB}, s{sT}, 2048
    v_add_f32 v{ep}, v{ep}, v{ep+2}
    v_add_f32 v{ep+1}, v{ep+1}, v{ep+3}
    v_add_f32 v{ep+4}, v{ep+4}, v{ep+6}
    v_add_f32 v{ep+5}, v{ep+5}, v{ep+7}
    v_add_f32 v{ep}, v{ep}, v{ep+4}
    v_add_f32 v{ep+1}, v{ep+1}, v{ep+5}""")
    cin = ep + 2
    cmad(k, cin, cin + 1, S["fs"], S["fs"] + 1, ep, ep + 1, S["pre"], S["pre"] + 1)
    pk = [va.get(4), va.get(4)]
    ob = [va.get(4) for _ in range(4)]
    cur = (cin, cin + 1)
    for r in range(16):
        hr, hi_ = S["accr"] + r, S["acci"] + r
        cmad(k, hr, hi_, S["lr"], S["li"], cur[0], cur[1], hr, hi_)
        cur = (hr, hi_)
        if r & 1:
            j = (r >> 1) & 3
            k(f"""v_cvt_pk_bf16_f32 v{pk[0]+j}, v{hr-1}, v{hr}
            v_cvt_pk_bf16_f32 v{pk[1]+j}, -v{hi_-1}, -v{hi_}""")
        if r & 7 == 7:
            rho = r >> 3
            k(f"""ds_write_b128 v{wr}, {vr(pk[0],4)}
            ds_write_b128 v{wr}, {vr(pk[1],4)} offset:1024""")
            for kk in range(2):
                for uu in range(2):
                    k(f"ds_read_b64_tr_b16 {vr(ob[2*rho+kk]+2*uu,2)}, v{rd} offset:{512*kk+128*uu}")
        if r == 11 or r == 15:
            rho = (r >> 2) & 1
            for kk in range(2):
                k(f"buffer_store_dwordx4 {vr(ob[2*rho+kk],4)}, v{vho}, s[{sWS}:{sWS+3}], s{sHB} offen offset:{2048*kk+128*rho} sc1",
                  tag="hst")
        if r in hooks:
            hooks[r]()
    for r in (wr, rd, vho, t):
        va.put(r)
    for f in pk + ob:
        va.put(f, 4)
    va.put(ep, 8)
    va.put(S["accr"], 16); va.put(S["acci"], 16)
    for n_ in ("lr", "li", "i32", "hf"):
        va.put(S[n_])
    va.put(S["fs"], 2); va.put(S["pre"], 2)


def tr32_lane(c, dst, tile_sgpr):
    k, va = c.k, c.va
    t, u, h = va.get(), va.get(), va.get()
    k(f"""v_lshrrev_b32 v{h}, 5, v1
    v_bfe_u32 v{t}, v1, 2, 2
    v_lshl_add_u32 v{u}, v{h}, 2, v{t}
    v_lshlrev_b32 v{dst}, 7, v{u}
    v_lshrrev_b32 v{t}, 1, v{t}
    v_lshlrev_b32 v{t}, 2, v{t}
    v_lshl_add_u32 v{t}, v{h}, 1, v{t}          ; swz
    v_bfe_u32 v{u}, v1, 4, 1
    v_bfe_u32 v{h}, v1, 1, 1
    v_lshl_add_u32 v{u}, v{u}, 1, v{h}""")
    if tile_sgpr is not None:
        k(f"s_lshl_b32 s{sT}, s{tile_sgpr}, 2\nv_add_u32 v{u}, s{sT}, v{u}")
    k(f"""v_xor_b32 v{u}, v{u}, v{t}
    v_lshl_add_u32 v{dst}, v{u}, 4, v{dst}
    v_and_b32 v{u}, 1, v1
    v_lshl_add_u32 v{dst}, v{u}, 3, v{dst}""")
    for r in (t, u, h):
        va.put(r)


def g46_scalars(c):
    c.k(f"""s_lshr_b32 s{sT}, s{sT0}, 5
    s_lshl_b32 s{sT+1}, s{sRH}, 1
    s_add_u32 s{sT+1}, s{sT+1}, s{sKH}          ; tb'
    s_add_u32 s{sT}, s{sT}, s{sT+1}             ; t32
    s_lshl_b32 s{sT+2}, s{sT}, 16
    s_lshl_b32 s{sT+3}, s{sTQ}, 11
    s_add_u32 s{sT+2}, s{sT+2}, s{sT+3}
    s_add_u32 s{sHB}, s{sT+2}, {WS_H}
    s_lshl_b32 s{sT+1}, s{sT+1}, 1
    s_lshr_b32 s{sT+3}, s{sW}, 2
    s_add_u32 s{sT+1}, s{sT+1}, s{sT+3}
    s_lshl_b32 s{sT+3}, s{sT+1}, 5
    s_add_u32 s{sT+3}, s{sT+3}, s{sFL}
    s_add_u32 s{sA}, s{sT+3}, 2048
    s_lshl_b32 s{sT+3}, s{sT+1}, 6
    s_add_u32 s{sT+3}, s{sT+3}, s{sFL}
    s_add_u32 s{sB}, s{sT+3}, 3072""")


def h_load(c, g, dst, n):
    r, b = n >> 1, n & 1
    c.k(rotk(r, 6, sHB, sRC) + f"""buffer_load_dwordx4 {vr(dst,4)}, v{g.vL16}, s[{sWS}:{sWS+3}], s{sT+8} offen offset:{b*1024} sc1""")


def f1_issue(c, g):
    c.k(f"""s_lshl_b32 s{sT}, s{sTQ}, 7
    s_add_u32 s{sT}, s{sT}, s{sFL}
    s_add_u32 s{sA}, s{sT}, 1024""")
    g.p1 = c.poll_issue(g, sA, 32)


def g3(c, g, sc, pre_poll, f2flag):
    k, va, o = c.k, c.va, c.opts
    stop = o.get("stop", 99)
    xf = va.get(64)
    ps = va.get(8)
    a3 = [[va.get() for j in range(4)] for a in range(2)]
    vps = va.get()
    tr32_lane(c, a3[0][0], sKH)
    fx = lambda x: ((x >> 1) << 12) | ((x & 1) << 10)
    k(f"""s_lshr_b32 s{sT}, s{sTQ}, 1
    s_lshl_b32 s{sT}, s{sT}, 12
    s_and_b32 s{sT+1}, s{sTQ}, 1
    s_lshl_b32 s{sT+1}, s{sT+1}, 10
    s_or_b32 s{sT}, s{sT}, s{sT+1}
    s_mov_b32 s{sB}, {U(10)}
    s_cmp_eq_u32 s{sKHP}, 0
    s_cselect_b32 s{sT+1}, {U(14)}, {U(0)}
    s_cselect_b32 s{sB}, {(U(6) - U(14)) & 0xffffffff}, s{sB}
    s_add_u32 s{sT}, s{sT}, s{sT+1}
    v_add_u32 v{a3[0][0]}, s{sT}, v{a3[0][0]}
    v_xor_b32 v{a3[1][0]}, 64, v{a3[0][0]}
    v_and_b32 v{vps}, 31, v1
    v_lshrrev_b32 v{ps}, 5, v1
    v_lshlrev_b32 v{ps}, 10, v{ps}
    v_lshl_add_u32 v{vps}, v{vps}, 3, v{ps}
    s_lshr_b32 s{sT}, s{sT0}, 5
    s_add_u32 s{sT}, s{sT}, s{sTQ}              ; t32
    s_mul_i32 s{sUB}, s{sT}, {112*1024}
    s_lshl_b32 s{sT+1}, s{sJ3B}, 5
    s_add_u32 s{sUB}, s{sUB}, s{sT+1}
    s_lshl_b32 s{sT+1}, s{sKH}, 11
    s_add_u32 s{sUB}, s{sUB}, s{sT+1}
    s_add_u32 s{sUB}, s{sUB}, {WS_U}
    s_lshl_b32 s{sT}, s{sT}, 1
    s_add_u32 s{sT}, s{sT}, s{sKH}
    s_lshl_b32 s{sT+1}, s{sT}, 11
    s_add_u32 s{sT+4}, s{sT+1}, {WS_PS}
    s_lshl_b32 s{sT}, s{sT}, 14
    s_add_u32 s{sD}, s{sT}, {WS_X1}""")
    for a in range(2):
        for j in range(1, 4):
            k(f"v_xor_b32 v{a3[a][j]}, {fx(j)}, v{a3[a][0]}")
    late_srds(c)
    s4 = sel_make(c)
    t, u = va.get(), va.get()
    vxw, vsx, vcp = va.get(), va.get(), va.get()
    k(f"""v_lshrrev_b32 v{t}, 4, v1
    v_and_b32 v{u}, 1, v1
    v_lshl_add_u32 v{t}, v{u}, 2, v{t}
    s_lshl_b32 s{sT}, s{sW}, 2
    s_lshl_b32 s{sT+1}, s{sKH}, 10
    s_add_u32 s{sT}, s{sT}, s{sT+1}
    s_add_u32 s{sT}, s{sT}, {CSP}
    v_lshl_add_u32 v{vcp}, v{t}, 7, s{sT}
    v_and_b32 v{u}, 31, v1
    s_lshl_b32 s{sT}, s{sW}, 8
    s_add_u32 s{sT}, s{sT}, {ST_A}
    v_lshl_add_u32 v{vsx}, v{u}, 3, s{sT}""")
    sel(k, sT, sTQ, [U(x) for x in XR])
    k(f"""s_lshl_b32 s{sT+1}, s{sKH}, 12
    s_add_u32 s{sT}, s{sT}, s{sT+1}
    v_add_u32 v{vxw}, s{sT}, v{g.vL16}""")
    va.put(t); va.put(u)
    if pre_poll:
        pre_poll()
    if f2flag:
        f2flag()
    c.stamp(9)
    c.poll_check(g, g.p1)
    c.stamp(10)

    def x_load(i):
        c.k(f"""s_xor_b32 s{sT+7}, s{sTQ}, {i}
        s_lshl_b32 s{sT+7}, s{sT+7}, 10
        s_add_u32 s{sT+7}, s{sT+7}, s{sD}
        buffer_load_dwordx4 {vr(xf+4*i,4)}, v{g.vL16}, s[{sWS}:{sWS+3}], s{sT+7} offen sc1""")
    D = o.get("d3", 5)
    for i in range(D):
        x_load(i)
    for i in range(4):
        k(f"buffer_load_dwordx2 {vr(ps+2*i,2)}, v{vps}, s[{sWS}:{sWS+3}], s{sT+4} offen offset:{256*i} sc1")
    va.put(vps)
    k.waitvm("w3_1_7")
    k.waitvm("w3_0_7")
    bar(c)
    c.stamp(11)
    acc = [[va.get(16), va.get(16)] for ph in range(2)]
    cs = [va.get(4), va.get(4)]
    NB = 3
    fa = [va.get(8) for _ in range(NB)]
    pipe = Pipe()

    def reads(i):
        for a in (1, 0):
            for uu in range(2):
                c.k(f"ds_read_b64_tr_b16 {vr(fa[i%NB]+4*a+2*uu,2)}, v{a3[a][i&3]} offset:{(i>>2)*8192 + 2048*uu}")

    def mfs(ph, i):
        for a in (1, 0):
            mf32(c.k, acc[ph][a], fa[i % NB] + 4 * a, xf + 4 * i, i == 0)
        if (i & 3) == 0:
            for a in range(2):
                mf16(c.k, cs[a], fa[i % NB] + 4 * a, s4, i == 0)

    def cs_write():
        k = c.k
        t = va.get()
        k(f"""s_lshl_b32 s{sT}, s{sKH}, 11
        s_sub_u32 s{sT}, 1024, s{sT}
        v_add_u32 v{t}, s{sT}, v{vcp}""")
        exec_sel(k)
        for a, r_ in ((0, vcp), (1, t)):
            for r in (0, 2):
                k(f"ds_write2_b32 v{r_}, v{cs[a]+r}, v{cs[a]+r+1} offset0:{8*r} offset1:{8*r+8}")
        k("s_mov_b64 exec, -1")
        va.put(t)

    for i in range(16):
        reads(i)
        if i + D < 16:
            x_load(i + D)
        pipe.push(lambda i=i: mfs(0, i))
        pipe.drain(2)
    pipe.drain()
    k(f"""v_add_f32 v{ps}, v{ps}, v{ps+2}
    v_add_f32 v{ps+1}, v{ps+1}, v{ps+3}
    v_add_f32 v{ps+4}, v{ps+4}, v{ps+6}
    v_add_f32 v{ps+5}, v{ps+5}, v{ps+7}
    v_add_f32 v{ps}, v{ps}, v{ps+4}
    v_add_f32 v{ps+1}, v{ps+1}, v{ps+5}
    v_mov_b32 v{ps+2}, v{ps}
    v_mov_b32 v{ps+3}, v{ps+1}
    v_permlane32_swap_b32 v{ps}, v{ps+2}
    v_permlane32_swap_b32 v{ps+1}, v{ps+3}
    v_add_f32 v{ps}, v{ps}, v{ps+2}
    v_add_f32 v{ps+1}, v{ps+1}, v{ps+3}
    ds_write_b64 v{vsx}, {vr(ps,2)}
    v_xor_b32 v{vsx}, 256, v{vsx}""")
    for a in range(2):
        for j in range(4):
            k(f"v_add_u32 v{a3[a][j]}, s{sB}, v{a3[a][j]}")
    k(f"""s_lshl_b32 s{sT}, s{sW}, 6
    s_lshr_b32 s{sT+1}, s{sJ3B}, 6
    s_add_u32 s{sT}, s{sT}, s{sT+1}
    s_add_u32 s{sT}, s{sT}, s{sFL}
    s_add_u32 s{sD}, s{sT}, 3072""")
    g46_scalars(c)
    if stop >= 5:
        g.p2 = c.poll_issue(g, sA, 8)
    cs_write()
    k(f"v_add_u32 v{vcp}, 2048, v{vcp}")
    c.stamp(12)
    bar(c)
    for i in range(4):
        k(f"ds_write_b128 v{vxw}, {vr(acc[0][1]+4*i,4)} offset:{1024*i}")
    sc.release([14, 15, 16, 0, 1, 2, 3])
    todoA = sc.next() if stop >= 5 else []
    ab = va.get(2)
    vcs = va.get()

    def epilogue(ph):
        k = c.k
        A, X = acc[ph][0], acc[ph][1]
        xr = va.get()
        k(f"v_xor_b32 v{xr}, 4096, v{vxw}")
        for i in range(4):
            k(f"ds_read_b128 {vr(X+4*i,4)}, v{xr} offset:{1024*i}")
        x = va.get(4)
        p8 = va.get(8)
        tt = xr
        if ph == 0:
            k(f"ds_read_b64 {vr(ps+2,2)}, v{vsx}")
        k(f"""v_lshlrev_b32 v{tt}, 5, v1
        v_add_u32 v{tt}, {CSP + 2048*ph}, v{tt}
        ds_read_b128 {vr(p8,4)}, v{tt}
        ds_read_b128 {vr(p8+4,4)}, v{tt} offset:16
        v_add_u32 v{tt}, {CS3 + 256*ph}, v{g.vL4}
        v_add_f32 v{p8}, v{p8}, v{p8+1}
        v_add_f32 v{p8+2}, v{p8+2}, v{p8+3}
        v_add_f32 v{p8+4}, v{p8+4}, v{p8+5}
        v_add_f32 v{p8+6}, v{p8+6}, v{p8+7}
        v_add_f32 v{p8}, v{p8}, v{p8+2}
        v_add_f32 v{p8+4}, v{p8+4}, v{p8+6}
        v_add_f32 v{p8}, v{p8}, v{p8+4}
        ds_write_b32 v{tt}, v{p8}""")
        if ph == 0:
            k(f"""v_lshrrev_b32 v{vcs}, 5, v1
            s_lshl_b32 s{sT}, s{sKH}, 7
            s_add_u32 s{sT}, s{sT}, {CS3}
            v_lshl_add_u32 v{vcs}, v{vcs}, 4, s{sT}
            v_add_f32 v{ps}, v{ps}, v{ps+2}
            v_add_f32 v{ps+1}, v{ps+1}, v{ps+3}
            v_mul_f32 v{x}, {fhex(1/512)}, v{ps}
            v_mul_f32 v{x+1}, v{x}, v{x}
            v_fma_f32 v{x+1}, v{ps+1}, s{sI512}, -v{x+1}
            v_max_f32 v{x+1}, 0, v{x+1}""")
            c.bf16r(x, x)
            c.bf16r(x + 1, x + 1)
            k(f"v_add_f32 v{x+1}, {fhex(EPS)}, v{x+1}")
            c.bf16r(x + 1, x + 1)
            k(f"v_sqrt_f32 v{x+1}, v{x+1}")
            c.bf16r(x + 1, x + 1)
            k(f"""v_rcp_f32 v{ab}, v{x+1}
            v_mul_f32 v{ab+1}, v{x}, v{ab}""")
        for r in range(16):
            k(f"v_add_f32 v{A+r}, v{A+r}, v{X+r}")
        for i in range(4):
            k(f"ds_read_b128 {vr(X+4*i,4)}, v{vcs} offset:{256*ph+32*i}")
        for r in range(16):
            k(f"""v_mul_f32 v{X+r}, v{ab+1}, v{X+r}
            v_fma_f32 v{A+r}, v{ab}, v{A+r}, -v{X+r}""")
        kk = X + 8
        k(f"v_mov_b32 v{kk}, {fhex(-K1)}")
        for e in range(2):
            xs = [A + 8 * e + r for r in range(8)]
            ts = [X + r for r in range(8)]
            for op in ("v_mul_f32 v{t}, v{x}, v{x}", "v_fma_f32 v{t}, v{t}, s%d, v%d" % (sK3, kk), "v_mul_f32 v{t}, v{t}, v{x}",
                       "v_exp_f32 v{t}, v{t}", "v_add_f32 v{t}, 1.0, v{t}", "v_rcp_f32 v{t}, v{t}", "v_mul_f32 v{x}, v{x}, v{t}"):
                for x_, t_ in zip(xs, ts):
                    k(op.format(t=t_, x=x_))
            P = X + 12 if e == 0 else p8
            for i in range(4):
                k(f"v_cvt_pk_bf16_f32 v{P+i}, v{xs[2*i]}, v{xs[2*i+1]}")
            k(f"s_add_u32 s{sT+4}, s{sUB}, {4096*ph}")
            k(f"buffer_store_dwordx4 {vr(P,4)}, v{g.vL16}, s[{sWS}:{sWS+3}], s{sT+4} offen offset:{1024*e} sc1", tag=f"ust{ph}")
        return [(x, 4), (p8, 8), (xr, 1)]

    held = []
    fill = capture(c, lambda: held.extend(epilogue(0)))

    def pass2():
        k = c.k
        pipe = Pipe()
        for i in range(16):
            reads(i)
            if todoA:
                todoA.pop(0)()
            if i == 1:
                bar(c)
            if i == 2 and stop >= 5:
                c.poll_check(g, g.p2)
            if i == o.get("c3", 9):
                bar(c)

            def mf(i=i):
                mfs(1, i)
                if stop >= 5:
                    h_load(c, g, xf + 4 * i, i)
            pipe.push(mf)
            pipe.drain(2)
        pipe.drain()
    main = capture(c, pass2)
    splice(k, main, fill, o.get("per3", 7), start=0)
    for b, n in held:
        va.put(b, n)
    c.stamp(13)
    for f in fa:
        va.put(f, 8)
    for a in range(2):
        for j in range(4):
            va.put(a3[a][j])
        va.put(acc[0][a], 16)
    for i in range(4):
        k(f"ds_write_b128 v{vxw}, {vr(acc[1][1]+4*i,4)} offset:{1024*i}")
    cs_write()
    va.put(cs[0], 4); va.put(cs[1], 4); va.put(s4, 4); va.put(vcp); va.put(vsx); va.put(ps, 8)
    k.waitvm("ust0")
    c.flag(g, sD)
    k(f"s_add_u32 s{sD}, s{sD}, 512")
    held = []
    fill = capture(c, lambda: held.extend(epilogue(1)))
    held += [(ab, 2), (vcs, 1), (vxw, 1), (acc[1][0], 16), (acc[1][1], 16)]

    def f3b():
        c.k.waitvm("ust1")
        c.flag(g, sD)
    return xf, f3b, fill, held


def g64(c, g, sc, xf, f3b, fill, held):
    k, va, o = c.k, c.va, c.opts
    aC = [va.get(), va.get()]
    aW = [va.get(), va.get()]
    t, u = va.get(), va.get()
    k(f"""v_and_b32 v{t}, 31, v1
    v_bfe_u32 v{u}, v1, 1, 3
    s_lshl_b32 s{sT}, s{sTQ}, 1
    v_xor_b32 v{u}, s{sT}, v{u}
    v_lshlrev_b32 v{u}, 4, v{u}
    v_lshl_add_u32 v{aC[0]}, v{t}, 7, v{u}
    v_lshrrev_b32 v{u}, 5, v1
    v_lshl_add_u32 v{aC[0]}, v{u}, 13, v{aC[0]}
    v_xor_b32 v{aC[1]}, 16, v{aC[0]}""")
    tr32_lane(c, aW[0], None)
    k(f"""s_lshl_b32 s{sT}, s{sTQ}, 11
    v_add_u32 v{aW[0]}, s{sT}, v{aW[0]}
    v_xor_b32 v{aW[1]}, 64, v{aW[0]}
    s_lshr_b32 s{sT}, s{sT0}, 5
    s_lshl_b32 s{sT+1}, s{sRH}, 1
    s_add_u32 s{sT+1}, s{sT+1}, s{sKH}
    s_add_u32 s{sT}, s{sT}, s{sT+1}             ; t32
    s_mul_i32 s{sHB}, s{sT}, {112*1024}
    s_add_u32 s{sHB}, s{sHB}, {WS_U}
    s_lshl_b32 s{sT+1}, s{sTQ}, 10
    s_add_u32 s{sHB}, s{sHB}, s{sT+1}""")
    va.put(t); va.put(u)
    for a in aC + aW:
        c.pre_hi(a)
    acc6 = [va.get(16), va.get(16)]
    acc4 = []
    NB = 3
    fa = [va.get(8) for _ in range(NB)]
    pool = [va.get(4) for _ in range(o.get("pool", 4))]
    ufr = {}
    steps = [[("C", r)] for r in range(8)] + [[("W", 2 * i), ("W", 2 * i + 1)] for i in range(14)]
    pipe = Pipe()
    rel = {0: list(range(6, 14)), 1: list(XR)} if fill is not None else {0: [4, 5, 18]}
    S = dict(prev=[], nblk=0, ul=0, dump6=None, red6=None)
    fin = {}
    S0 = fill is None
    us = [o.get("us0", 1), o.get("us1", 9)] if not S0 else [o.get("zs0", 7), o.get("zs1", 9)]
    P3I = {max(us[0] - 1, 0): 0, us[1] - 1: 1}

    def u_load(n):
        ph, j3 = n // 14, n % 14
        r = pool.pop(0)
        ufr[n] = r
        c.k(f"""s_add_u32 s{sT+7}, s{sRU}, {(8*j3+4*ph)*1024}
        s_sub_u32 s{sT+8}, s{sT+7}, {14*8192}
        s_min_u32 s{sT+7}, s{sT+7}, s{sT+8}
        s_add_u32 s{sT+7}, s{sT+7}, s{sHB}
        buffer_load_dwordx4 {vr(r,4)}, v{g.vL16}, s[{sWS}:{sWS+3}], s{sT+7} offen sc1""")

    def step(n):
        k = c.k
        st = steps[n]
        c.stamp(24 + n)
        for it in st:
            k.waitvm(f"{it[0]}{it[1]}")
        bar(c)
        sc.release(S["prev"] + rel.get(n, []))
        S["prev"] = [u_ for it in st for u_ in sc.units(it)]
        todo = sc.next()
        if n == o.get("f3bs", 7) and f3b:
            f3b()
        if n in P3I:
            ph = P3I[n]
            k(f"s_add_u32 s{sA}, s{sB}, {512*ph}")
            g.p3 = c.poll_issue(g, sA, 14)
        for ph in range(2):
            if n == us[ph]:
                c.poll_check(g, g.p3)
        nu = o.get("uper", 3)
        for b in range(2):
            buf = fa[S["nblk"] % NB]
            S["nblk"] += 1
            if n < 8:
                for a in range(2):
                    c.dsr("ds_read_b128", buf + 4 * a, 4, aC[b], U(sc.unit[st[0]]) + 4096 * a)
                fr_ = xf + 4 * (2 * n + b)
                A = acc6
                z = n == 0 and b == 0
            else:
                for a in range(2):
                    for uu in range(2):
                        c.dsr("ds_read_b64_tr_b16", buf + 4 * a + 2 * uu, 2, aW[a], U(sc.unit[st[b]]) + 1024 * uu)
                fr_ = ufr[st[b][1]]
                A = acc4
                z = n == 8 and b == 0
            for _ in range((len(todo) + 1 - b) // (2 - b) if b == 0 else len(todo)):
                todo.pop(0)()

            def mf(buf=buf, fr_=fr_, A=A, z=z):
                for a in range(2):
                    mf32(c.k, A[a], buf + 4 * a, fr_, z)
                pool.append(fr_)
            pipe.push(mf)
            pipe.drain(1)
            cnt = (nu + 1) // 2 if b == 0 else nu // 2
            while cnt > 0 and S["ul"] < 28 and pool and n >= us[S["ul"] // 14]:
                u_load(S["ul"])
                S["ul"] += 1
                cnt -= 1
        if n >= 7:
            assert S["ul"] >= min(28, 2 * (n - 7) + 2 * (1 if S0 else o.get("umin", 3))), (n, S["ul"])
        if n == o.get("fls", 14):
            final_loads(c, g, fin)
        if S["dump6"] is not None and S["red6"] is None and n > S["dump6"][1]:
            S["red6"] = reduce_read(c, g, fin, S["dump6"][0])
            final_s(c, g, fin, S["red6"])
            fin["rel"] = n
        if S["dump6"] is None and n >= 9 and "x" in fin and all(it in sc.unit for it in sc.items) and len(sc.free) >= 8:
            us_ = sorted(sc.free)[:8]
            sc.free -= set(us_)
            reduce_write(c, g, fin, acc6, us_)
            S["dump6"] = (us_, n)
    if fill is not None:
        step(0) if o.get("st0") else None
        main = capture(c, lambda: [step(n) for n in range(1 if o.get("st0") else 0, 8)])
        splice(k, main, fill, o.get("per4", 12))
        for b, n in held:
            va.put(b, n)
    else:
        for n in range(8):
            step(n)
    acc4 += [va.get(16), va.get(16)]
    for n in range(8, 22):
        step(n)
    pipe.drain()
    c.stamp(46)
    assert S["red6"] is not None
    if fin["rel"] < len(steps) - 1:
        sc.release(S["dump6"][0])
    us_ = sorted(sc.free)[:8]
    assert len(us_) == 8
    reduce_write(c, g, fin, acc4, us_)
    bar(c)
    c.stamp(47)
    z = reduce_read(c, g, fin, us_)
    final_out(c, g, fin, S["red6"], z)


def final_loads(c, g, fin):
    k, va = c.k, c.va
    x, x1, dk = va.get(4), va.get(4), va.get(4)
    ma = va.get(2)
    t, u, cq = va.get(), va.get(), va.get()
    vo = va.get()
    srd(k, sMI, P_DSK, 1024)
    k(f"""v_lshrrev_b32 v{t}, 3, v1                   ; row8
    v_and_b32 v{cq}, 7, v1
    v_lshlrev_b32 v{u}, 3, v{cq}
    buffer_load_dwordx2 {vr(dk,2)}, v{u}, s[{sMI}:{sMI+3}], s{sC128} offen
    buffer_load_dwordx2 {vr(dk+2,2)}, v{u}, s[{sMI}:{sMI+3}], s{sC128} offen offset:64
    v_lshl_add_u32 v{vo}, v{t}, 10, v{u}
    s_lshl_b32 s{sT}, s{sRH}, 6
    s_lshl_b32 s{sT+1}, s{sKH}, 5
    s_add_u32 s{sT}, s{sT}, s{sT+1}
    s_lshl_b32 s{sT+1}, s{sTQ}, 3
    s_add_u32 s{sT}, s{sT}, s{sT+1}
    s_add_u32 s{sT+1}, s{sT}, s{sT0}
    s_lshl_b32 s{sT+1}, s{sT+1}, 10
    s_add_u32 s{sUB}, s{sT+1}, s{sC128}
    buffer_load_dwordx2 {vr(x,2)}, v{vo}, s[{sX}:{sX+3}], s{sUB} offen
    buffer_load_dwordx2 {vr(x+2,2)}, v{vo}, s[{sX}:{sX+3}], s{sUB} offen offset:64
    s_lshl_b32 s{sT}, s{sT}, 3
    s_add_u32 s{sT}, s{sT}, {ST_C + 16}
    v_lshl_add_u32 v{u}, v{t}, 3, s{sT}
    ds_read_b64 {vr(ma,2)}, v{u}
    v_lshlrev_b32 v{t}, 4, v{t}
    v_and_b32 v{u}, 1, v{cq}
    v_lshl_add_u32 v{t}, v{u}, 9, v{t}
    v_bfe_u32 v{u}, v{cq}, 1, 1
    v_lshl_add_u32 v{t}, v{u}, 10, v{t}
    v_lshrrev_b32 v{u}, 2, v{cq}
    v_lshl_add_u32 v{t}, v{u}, 3, v{t}
    s_lshr_b32 s{sT}, s{sT0}, 5
    s_lshl_b32 s{sT+1}, s{sRH}, 1
    s_add_u32 s{sT}, s{sT}, s{sT+1}
    s_add_u32 s{sT}, s{sT}, s{sKH}
    s_lshl_b32 s{sT}, s{sT}, 15
    s_lshl_b32 s{sT+1}, s{sC}, 12
    s_add_u32 s{sT}, s{sT}, s{sT+1}
    s_lshl_b32 s{sT+1}, s{sTQ}, 7
    s_add_u32 s{sT}, s{sT}, s{sT+1}
    s_add_u32 s{sT}, s{sT}, {WS_X1}
    buffer_load_dwordx2 {vr(x1,2)}, v{t}, s[{sWS}:{sWS+3}], s{sT} offen sc1
    buffer_load_dwordx2 {vr(x1+2,2)}, v{t}, s[{sWS}:{sWS+3}], s{sT} offen offset:2048 sc1
    v_lshlrev_b32 v{vo}, 1, v{vo}
    s_lshl_b32 s{sUB}, s{sUB}, 1""")
    vw, vr0, vr1 = va.get(), va.get(), va.get()
    k(f"""v_and_b32 v{t}, 7, v1
    v_bfe_u32 v{u}, v1, 1, 1
    v_lshl_add_u32 v{t}, v{u}, 3, v{t}          ; swz(t)
    v_lshrrev_b32 v{u}, 5, v1
    v_xor_b32 v{t}, v{t}, v{u}
    v_lshlrev_b32 v{t}, 4, v{t}
    v_and_b32 v{u}, 31, v1
    v_lshl_add_u32 v{vw}, v{u}, 8, v{t}
    v_lshrrev_b32 v{t}, 3, v1                   ; row8
    v_bfe_u32 v{u}, v1, 4, 1
    v_lshl_add_u32 v{u}, v{u}, 3, v{t}          ; swz(row)
    v_xor_b32 v{u}, v{u}, v{cq}
    v_lshlrev_b32 v{u}, 4, v{u}
    v_lshl_add_u32 v{vr0}, v{t}, 8, v{u}
    s_lshl_b32 s{sT}, s{sTQ}, 11
    v_add_u32 v{vr0}, s{sT}, v{vr0}
    v_xor_b32 v{vr1}, 128, v{vr0}""")
    for r in (t, u, cq):
        va.put(r)
    fin.update(x=x, x1=x1, dk=dk, ma=ma, vo=vo, vw=vw, vr=(vr0, vr1))


def reduce_write(c, g, fin, acc, us):
    k, va = c.k, c.va
    b, t = va.get(), [va.get(), va.get()]
    sel(k, sT, sW, [U(x) for x in us])
    k(f"v_add_u32 v{b}, s{sT}, v{fin['vw']}")
    n = 0
    for a in range(2):
        for i in range(4):
            ad = b
            if a or i:
                ad = t[n & 1]
                k(f"v_xor_b32 v{ad}, {(8*a+2*i)*16}, v{b}")
            k(f"ds_write_b128 v{ad}, {vr(acc[a]+4*i,4)}")
            n += 1
    va.put(b); va.put(t[0]); va.put(t[1])
    fin["accfree"] = acc


def reduce_read(c, g, fin, us):
    k, va = c.k, c.va
    acc = fin["accfree"]
    t = [va.get(), va.get()]
    for kg in range(4):
        k(f"s_mov_b32 s{sT}, {U(us[2*kg+1])}\ns_cmp_eq_u32 s{sKH}, 0\ns_cselect_b32 s{sT}, {U(us[2*kg])}, s{sT}")
        for e in range(2):
            k(f"""v_add_u32 v{t[e]}, s{sT}, v{fin['vr'][e]}
            ds_read_b128 {vr(acc[e]+4*kg,4)}, v{t[e]}""")
    for e in range(2):
        for r in range(4):
            k(f"""v_add_f32 v{acc[e]+r}, v{acc[e]+r}, v{acc[e]+4+r}
            v_add_f32 v{acc[e]+8+r}, v{acc[e]+8+r}, v{acc[e]+12+r}""")
        for r in range(4):
            k(f"v_add_f32 v{acc[e]+r}, v{acc[e]+r}, v{acc[e]+8+r}")
    va.put(t[0]); va.put(t[1])
    return acc


def final_s(c, g, fin, s_):
    k, va = c.k, c.va
    xn = s_[0] + 4
    norm_pairs(c, xn, fin["x"], 4, fin["ma"])
    lo, hi, d0, d1 = s_[0] + 8, s_[0] + 9, s_[0] + 10, s_[0] + 11
    for i in range(4):
        s0 = s_[i >> 1] + 2 * (i & 1)
        k(f"""v_lshlrev_b32 v{lo}, 16, v{xn+i}
        v_and_b32 v{hi}, 0xffff0000, v{xn+i}
        v_lshlrev_b32 v{d0}, 16, v{fin['dk']+i}
        v_and_b32 v{d1}, 0xffff0000, v{fin['dk']+i}
        v_mul_f32 v{lo}, v{lo}, v{d0}
        v_mul_f32 v{hi}, v{hi}, v{d1}
        v_cvt_pk_bf16_f32 v{d0}, v{lo}, v{hi}
        v_lshlrev_b32 v{lo}, 16, v{d0}
        v_and_b32 v{hi}, 0xffff0000, v{d0}
        v_add_f32 v{s0}, v{s0}, v{lo}
        v_add_f32 v{s0+1}, v{s0+1}, v{hi}""")
    xs = [s_[i >> 2] + 4 + (i & 3) for i in range(8)]
    x1s = [s_[i >> 2] + 8 + (i & 3) for i in range(8)]
    for i in range(4):
        k(f"""v_lshlrev_b32 v{xs[2*i]}, 16, v{fin['x']+i}
        v_and_b32 v{xs[2*i+1]}, 0xffff0000, v{fin['x']+i}
        v_lshlrev_b32 v{x1s[2*i]}, 16, v{fin['x1']+i}
        v_and_b32 v{x1s[2*i+1]}, 0xffff0000, v{fin['x1']+i}""")
    fin.update(xs=xs, x1s=x1s)
    srd(k, sMI, P_OUT, 2048 * 2048)


def final_out(c, g, fin, s_, z_):
    k = c.k
    for e in range(2):
        z = [z_[e] + r for r in range(4)]
        ex = [z_[e] + 4 + r for r in range(4)]
        for r in range(4):
            k(f"v_add_f32 v{z[r]}, v{z[r]}, v{fin['x1s'][4*e+r]}")
        for r in range(4):
            k(f"v_mul_f32 v{ex[r]}, {fhex(-LOG2E)}, v{z[r]}")
        for r in range(4):
            k(f"v_exp_f32 v{ex[r]}, v{ex[r]}")
        for r in range(4):
            k(f"v_mul_f32 v{z[r]}, v{z[r]}, v{s_[e]+r}")
        for r in range(4):
            k(f"v_add_f32 v{ex[r]}, 1.0, v{ex[r]}")
        for r in range(4):
            k(f"v_rcp_f32 v{ex[r]}, v{ex[r]}")
        for r in range(4):
            k(f"v_fma_f32 v{ex[r]}, v{z[r]}, v{ex[r]}, v{fin['xs'][4*e+r]}")
        k(f"buffer_store_dwordx4 {vr(ex[0],4)}, v{fin['vo']}, s[{sMI}:{sMI+3}], s{sUB} offen offset:{128*e}")


def path(c, g, kind):
    k, va, o = c.k, c.va, c.opts
    stop = o.get("stop", 99)
    sc = Sched(c, g)
    f1 = f2 = None
    if kind == "M":
        f1 = m_path(c, g)
        if stop < 2:
            return
    else:
        p1_S(c, g, kind == "S3", sc)
        if stop < 3:
            return
        e_loads(c, g)
        scan2a(c, g)
        bar(c)
        c.stamp(8)
        hooks = {}
        if kind == "S3" and stop >= 4:
            hooks[o.get("f1i", 9)] = lambda: f1_issue(c, g)
        scan2b(c, g, hooks)
        k(f"s_mov_b32 s{sHB}, s{sUB}")

        def f2():
            c.k.waitvm("hst")
            c.flag(g, sHB)
    if stop < 4:
        if f1:
            f1()
        if f2:
            f2()
        return
    if kind != "S0":
        xf, f3b, fill, held = g3(c, g, sc, f1, f2)
    else:
        f2()
        f3b = fill = held = None
        if stop < 5:
            return
        g46_scalars(c)
        g.p2 = c.poll_issue(g, sA, 8)
        xf = va.get(64)
        c.poll_check(g, g.p2)
        for i in range(16):
            h_load(c, g, xf + 4 * i, i)
    if stop < 5:
        bar(c)
        k.items.extend(fill)
        f3b()
        return
    g64(c, g, sc, xf, f3b, fill, held)
    if kind == "S3":
        lab = k.label("L_nn")
        k(f"""s_cmp_lg_u32 s2, 143
        s_cbranch_scc1 {lab}
        s_cmp_lg_u32 s{sW}, 0
        s_cbranch_scc1 {lab}""")
        k.region_begin()
        k(f"""s_mov_b32 s{sT}, {WS_NONCE}
        s_mov_b64 exec, 1
        buffer_store_dword v{g.vNON}, off, s[{sWS}:{sWS+3}], s{sT} sc1""")
        k.region_end()
        k(f"{lab}:")
    c.stamp(48)
```

```python
import sys, struct
sys.path.insert(0, "dev")
from ag import Prog, Ins

NAME = "recurrent_scan__ssm_conv_s5__mixer_s_mlp__prompt"
WS_HP = 0x000000
WS_X1 = 0x200000
WS_H = 0x400000
WS_U = 0x800000
WS_E = 0x1000000
WS_PS = 0x1040000
WS_RS = 0x10C0000
WS_FL = 0x1100000
WS_NONCE = 0x1200000
WS_STAMP = 0x1300000
LDS_BYTES = 163840
NU = 19
MISC = 155648
ST_A = MISC
ST_B = MISC + 1056
ST_C = MISC + 2112
CSB = MISC + 3168
CSP = CSB
MODE = MISC + 7264
CS3 = MISC + 7296
K1 = 2.0 * 0.7978845608028654 * 1.4426950408889634
K3 = K1 * 0.044715
EPS = 1e-5
SPIN = 20000
LOG2E = 1.4426950408889634

P_X, P_LRE, P_LIM, P_BRE, P_BIM, P_CRE, P_CIM, P_LDT = 4, 6, 8, 10, 12, 14, 16, 18
P_DSK, P_W1, P_W2, P_W3, P_W4, P_OUT, P_DBG, P_WS = 20, 24, 26, 28, 30, 32, 34, 36
sX, sWS, sWA, sWB, sWC, sWD, sMI = 40, 44, 48, 52, 56, 60, 64
(sG, sJ, sW, sT0, sNON, sRH, sC, sW1K, sI512, sK3, sONE, sC128, sMODE, sFL, sXCC, sTQ, sKH,
 sJ3B, sCrow, sHB, sUB, sA, sB, sD) = range(68, 92)
sT = 92


def U(i):
    return i * 8192


def fhex(x):
    return "0x%08x" % struct.unpack("<I", struct.pack("<f", x))[0]


def srd(k, s, p, nbytes):
    k(f"""s_mov_b32 s{s}, s{p}
    s_mov_b32 s{s+1}, s{p+1}
    s_mov_b32 s{s+2}, {nbytes}
    s_mov_b32 s{s+3}, 0x00020000""")


class VA:
    def __init__(self, lo=2, hi=256):
        self.free = list(range(lo, hi))
        self.peak = 0
        self.n0 = hi - lo
    def clone(self):
        v = VA(0, 0)
        v.free = list(self.free)
        v.n0 = self.n0
        return v
    def get(self, n=1, align=1):
        if n > 1 and align == 1:
            align = 4 if n >= 4 else 2
        fs = set(self.free)
        cand = self.free if n > 1 else self.free[::-1]
        for b in cand:
            if b % align == 0 and all((b + i) in fs for i in range(n)):
                for i in range(n):
                    self.free.remove(b + i)
                self.peak = max(self.peak, self.n0 - len(self.free))
                return b
        raise RuntimeError(f"out of VGPRs (n={n}, free={len(self.free)})")
    def put(self, b, n=1):
        for i in range(n):
            assert (b + i) not in self.free, b + i
            self.free.append(b + i)
        self.free.sort()


def vr(b, n):
    return f"v[{b}:{b+n-1}]" if n > 1 else f"v{b}"


class Pipe:
    def __init__(self):
        self.q = []
    def push(self, fn):
        self.q.append(fn)
    def drain(self, keep=0):
        while len(self.q) > keep:
            self.q.pop(0)()


class Ctx:
    def __init__(self, role, opts, va):
        self.k = Prog(role)
        self.role = role
        self.va = va
        self.hi = {}
        self.opts = opts
        self.nd = 0

    def ds(self, base, absoff):
        h = absoff >> 16
        imm = absoff & 0xFFFF
        if h == 0:
            r = base
        else:
            if (base, h) not in self.hi:
                r = self.va.get()
                self.k(f"v_add_u32 v{r}, {h << 16}, v{base}")
                self.hi[(base, h)] = r
            r = self.hi[(base, h)]
        return f"v{r}", (f" offset:{imm}" if imm else "")

    def pre_hi(self, base, hs=(1, 2)):
        for h in hs:
            self.ds(base, h << 16)

    def free_base(self, base):
        for key in [x for x in self.hi if x[0] == base]:
            self.va.put(self.hi.pop(key))
        self.va.put(base)

    def dsr(self, mn, dst, n, base, absoff, tag=None):
        r, o = self.ds(base, absoff)
        return self.k(f"{mn} {vr(dst, n)}, {r}{o}", tag=tag)

    def dsw(self, mn, base, absoff, src, n):
        r, o = self.ds(base, absoff)
        return self.k(f"{mn} {r}, {vr(src, n)}{o}")

    def dma(self, voff, srd_, soff, lds, inst=0, tag=None, sadd=None):
        k = self.k
        if lds < inst:
            assert sadd is None
            if soff == 0:
                k(f"s_mov_b32 s{sT+8}, {inst}")
            else:
                k(f"s_add_u32 s{sT+8}, {soff}, {inst}")
            soff = f"s{sT+8}"
            inst = 0
        imm = lds - inst
        k(f"s_add_u32 m0, s{sW1K}, {imm}")
        if sadd is not None:
            if sadd[1] == 0:
                soff = f"s{sadd[0]}"
            else:
                k(f"s_add_u32 s{sT+8}, s{sadd[0]}, {sadd[1]}")
                soff = f"s{sT+8}"
        o = f" offset:{inst}" if inst else ""
        k(f"buffer_load_dwordx4 v{voff}, s[{srd_}:{srd_+3}], {soff} offen{o} lds", tag=tag)

    def bf16r(self, d, s):
        self.k(f"v_cvt_pk_bf16_f32 v{d}, v{s}, v{s}\nv_and_b32 v{d}, 0xffff0000, v{d}")

    def store(self, text, dual, tag=None):
        if dual:
            ins = self.k(text, tag=tag)
            self.nd += 1
            ins.dual = (sMODE, f"L_du_{self.role}_{self.nd}")
        else:
            self.k(text + " sc1", tag=tag)

    def flag(self, g, soff):
        self.k("s_mov_b64 exec, 1")
        self.store(f"buffer_store_dword v{g.vNON}, off, s[{sWS}:{sWS+3}], s{soff}", not self.opts.get("nofast"))
        self.k("s_mov_b64 exec, -1")

    def poll_issue(self, g, soff, n):
        t = self.va.get()
        self.k(f"""s_mov_b64 exec, {hex((1 << n) - 1)}
        buffer_load_dword v{t}, v{g.vL4}, s[{sWS}:{sWS+3}], s{soff} offen sc1
        s_mov_b64 exec, -1""")
        return (t, soff, n)

    def poll_check(self, g, h):
        t, soff, n = h
        k = self.k
        loop, done = k.label("L_pl"), k.label("L_pd")
        k(f"""v_mov_b32 v{t}, v{t}
        s_mov_b32 s{sT+9}, {SPIN}
        s_mov_b64 exec, {hex((1 << n) - 1)}
        {loop}:
        v_cmp_ne_u32 vcc, s{sNON}, v{t}
        s_cbranch_vccz {done}""")
        k.region_begin()
        k(f"""buffer_load_dword v{t}, v{g.vL4}, s[{sWS}:{sWS+3}], s{soff} offen sc1
        s_waitcnt vmcnt(0)
        s_sub_u32 s{sT+9}, s{sT+9}, 1
        s_cmp_lg_u32 s{sT+9}, 0
        s_cbranch_scc1 {loop}""")
        k.region_end()
        k(f"""{done}:
        s_mov_b64 exec, -1""")
        self.va.put(t)

    def stamp(self, idx):
        if not self.opts.get("stamps"):
            return
        self.k(f"""s_memtime s[38:39]
        s_waitcnt lgkmcnt(0)
        v_writelane_b32 v255, s38, {idx}""")

    def stamp_flush(self):
        if not self.opts.get("stamps"):
            return
        t = self.va.get()
        self.k(f"""s_mov_b64 exec, -1
        s_memrealtime s[38:39]
        s_waitcnt lgkmcnt(0)
        v_writelane_b32 v255, s38, 62
        s_lshl_b32 s38, s2, 3
        s_add_u32 s38, s38, s{sW}
        s_lshl_b32 s38, s38, 8
        s_add_u32 s38, s38, {WS_STAMP}
        v_lshlrev_b32 v{t}, 2, v1
        buffer_store_dword v255, v{t}, s[{sWS}:{sWS+3}], s38 offen""")
        self.va.put(t)


class G:
    pass


def splice(k, main, fill, per, start=0):
    fi = 0
    n = 0
    for it in main:
        k.items.append(it)
        if isinstance(it, Ins) and it.cls == "mfma":
            n += 1
            if n > start:
                cnt = 0
                while fi < len(fill) and cnt < per:
                    f = fill[fi]
                    k.items.append(f)
                    fi += 1
                    if isinstance(f, Ins):
                        cnt += 2 if f.cls == "trans" else 1
    k.items.extend(fill[fi:])


def capture(c, fn):
    old = c.k
    tmp = Prog(old.name)
    tmp._lab = old._lab + 1000
    tmp._rid = old._rid + 1000
    c.k = tmp
    fn()
    c.k = old
    old._lab = tmp._lab
    old._rid = tmp._rid
    return tmp.items


def prologue(c, g):
    k, va = c.k, c.va
    st = c.opts.get("stamps")
    k(f"""
    s_cmp_ge_u32 s2, 256
    s_cbranch_scc1 L_exit
    s_load_dwordx16 s[4:19], s[0:1], 0
    s_load_dwordx16 s[20:35], s[0:1], 64
    s_load_dwordx2 s[36:37], s[0:1], 128
    {"s_memrealtime s[98:99]" if st else ""}
    {"s_memtime s[100:101]" if st else ""}
    v_lshrrev_b32 v2, 6, v0
    v_and_b32 v1, 63, v0
    v_readfirstlane_b32 s{sW}, v2
    s_and_b32 s{sG}, s2, 7
    s_lshl_b32 s{sG}, s{sG}, 1
    s_lshr_b32 s{sT}, s2, 7
    s_add_u32 s{sG}, s{sG}, s{sT}
    s_lshr_b32 s{sJ}, s2, 3
    s_and_b32 s{sJ}, s{sJ}, 15
    s_lshl_b32 s{sT0}, s{sG}, 7
    s_and_b32 s{sRH}, s{sJ}, 1
    s_lshr_b32 s{sC}, s{sJ}, 1
    s_lshl_b32 s{sW1K}, s{sW}, 10
    s_lshr_b32 s{sTQ}, s{sW}, 1
    s_and_b32 s{sKH}, s{sW}, 1
    s_lshl_b32 s{sC128}, s{sC}, 7
    s_lshl_b32 s{sCrow}, s{sC}, 16
    """)
    g.vR1k, g.vK1k = va.get(), va.get()
    g.vnon = va.get()
    g.srow = va.get(4)
    g.r8, g.pos, g.row = va.get(), va.get(), va.get()
    t, u, f = [va.get() for _ in range(3)]
    k(f"""v_lshrrev_b32 v{g.r8}, 3, v1
    v_and_b32 v{g.pos}, 7, v1
    s_lshl_b32 s{sT+1}, s{sKH}, 2
    v_lshrrev_b32 v{u}, 1, v{g.r8}
    v_or_b32 v{f}, s{sT+1}, v{u}
    v_xor_b32 v{f}, v{f}, v{g.pos}
    v_lshlrev_b32 v{f}, 4, v{f}
    s_lshl_b32 s{sT+2}, s{sW}, 3
    v_add_u32 v{g.row}, s{sT+2}, v{g.r8}        ; 8w+r8
    v_lshl_add_u32 v{g.vR1k}, v{g.row}, 10, v{f}
    s_lshl_b32 s{sT}, s{sJ}, 3
    s_add_u32 s{sT}, s{sT}, s{sT0}
    s_add_u32 s{sA}, s{sT}, s{sW}
    s_lshl_b32 s{sT}, s{sA}, 10
    v_lshlrev_b32 v{t}, 4, v1
    s_mov_b32 s{sT+1}, {WS_NONCE}
    s_waitcnt lgkmcnt(0)
    """)
    srd(k, sX, P_X, 2048 * 1024)
    k(f"buffer_load_dwordx4 {vr(g.srow,4)}, v{t}, s[{sX}:{sX+3}], s{sT} offen")
    srd(k, sWS, P_WS, 0x10000000)
    k(f"buffer_load_dword v{g.vnon}, off, s[{sWS}:{sWS+3}], s{sT+1} sc1")
    if st:
        k("v_writelane_b32 v255, s98, 63\nv_writelane_b32 v255, s100, 61")
    for r in (t, u, f):
        va.put(r)
    k(f"""
    s_cmp_eq_u32 s{sRH}, 0
    s_cbranch_scc1 L_pathM
    s_cmp_ge_u32 s{sJ}, 13
    s_cbranch_scc1 L_pathS0
    """)


def late_consts(c, g):
    k, va = c.k, c.va
    u, f = va.get(), va.get()
    g.vL4, g.vL16, g.vNON = va.get(), va.get(), va.get()
    k(f"""s_mov_b32 s{sI512}, {fhex(1/512)}
    s_mov_b32 s{sK3}, {fhex(-K3)}
    s_mov_b32 s{sONE}, 0x3f803f80
    s_lshl_b32 s{sFL}, s{sG}, 12
    s_add_u32 s{sFL}, s{sFL}, {WS_FL}
    s_getreg_b32 s{sXCC}, hwreg(HW_REG_XCC_ID)
    s_and_b32 s{sXCC}, s{sXCC}, 7
    s_min_u32 s{sJ3B}, s{sJ}, 13
    s_lshl_b32 s{sJ3B}, s{sJ3B}, 8
    v_lshlrev_b32 v{g.vL4}, 2, v1
    v_lshlrev_b32 v{g.vL16}, 4, v1""")
    va.put(u); va.put(f)


def kn_voff(c, g, want35):
    k, va = c.k, c.va
    u, f = va.get(), va.get()
    k(f"""v_bfe_u32 v{u}, v{g.r8}, 1, 1
    v_lshlrev_b32 v{u}, 2, v{u}
    v_bfe_u32 v{f}, v{g.r8}, 2, 1
    v_lshl_add_u32 v{u}, v{f}, 1, v{u}
    v_xor_b32 v{u}, v{u}, v{g.pos}
    v_lshlrev_b32 v{u}, 4, v{u}
    v_lshl_add_u32 v{g.vK1k}, v{g.row}, 10, v{u}""")
    if want35:
        g.vK35 = va.get()
        k(f"""v_mul_u32_u24 v{f}, 3584, v{g.row}
        v_add_u32 v{g.vK35}, v{f}, v{u}""")
    va.put(u); va.put(f)


def seg_load(c, n_sgpr, segs, dst, xoff=None):
    k, va = c.k, c.va
    t = va.get()
    k(f"""s_mov_b32 s{sMI}, s{segs[0][0]}
    s_mov_b32 s{sMI+1}, s{segs[0][0]+1}
    s_mov_b32 s{sMI+2}, {segs[0][2]}
    s_mov_b32 s{sT+2}, {"0" if xoff is None else f"s{xoff}"}""")
    base = segs[0][1]
    for p_, n, nb in segs[1:]:
        k(f"""s_cmp_ge_u32 s{n_sgpr}, {base}
        s_cselect_b32 s{sMI}, s{p_}, s{sMI}
        s_cselect_b32 s{sMI+1}, s{p_+1}, s{sMI+1}
        s_cselect_b32 s{sMI+2}, {nb}, s{sMI+2}
        s_cselect_b32 s{sT+2}, {base}, s{sT+2}""")
        base += n
    k(f"""s_mov_b32 s{sMI+3}, 0x00020000
    s_sub_u32 s{sT+2}, s{n_sgpr}, s{sT+2}
    s_lshl_b32 s{sT+2}, s{sT+2}, 13
    v_lshlrev_b32 v{t}, 7, v1
    buffer_load_dword v{dst}, v{t}, s[{sMI}:{sMI+3}], s{sT+2} offen{" sc1" if c.opts.get("tsc") else ""}""")
    va.put(t)


def warm_mall(c, g):
    wm = c.opts.get("warm", 1)
    if not wm:
        g.vwarm = None
        return
    k, va = c.k, c.va
    g.vwarm = va.get()
    lab = k.label("L_wm")
    segs = [(P_W4, 224, 224 * 8192), (P_CRE, 64, 64 * 8192), (P_CIM, 64, 64 * 8192)]
    k(f"""s_lshl_b32 s{sT}, s{sW}, 7
    s_lshl_b32 s{sT+1}, s{sG}, 3
    s_add_u32 s{sT}, s{sT}, s{sT+1}
    s_add_u32 s{sT}, s{sT}, s{sC}
    s_cmp_ge_u32 s{sT}, 352
    s_cbranch_scc1 {lab}""")
    k.region_begin()
    seg_load(c, sT, segs, g.vwarm)
    k.region_end()
    k(f"{lab}:")


def touch(c, g, which):
    o = c.opts
    if not (o.get("l2t", 0) >> which) & 1:
        return
    k, va = c.k, c.va
    d = va.get()
    g.tdst = getattr(g, "tdst", []) + [d]
    k(f"""s_lshr_b32 s{sT}, s2, 3
    s_lshl_b32 s{sT}, s{sT}, 3
    s_add_u32 s{sT}, s{sT}, s{sW}""")
    if which == 0:
        k(f"""s_and_b32 s{sT+1}, s2, 7
        s_lshl_b32 s{sT+1}, s{sT+1}, 5
        s_sub_u32 s{sT+1}, 0, s{sT+1}""")
        seg_load(c, sT, [(P_X, 32, 2048 * 1024), (P_W1, 64, 512 * 1024), (P_BRE, 64, 512 * 1024), (P_BIM, 64, 512 * 1024),
                         (P_W2, 32, 512 * 1024)], d, xoff=sT + 1)
    else:
        k(f"s_add_u32 s{sT}, s{sT}, 32")
        seg_load(c, sT, [(P_W2, 64, 512 * 1024), (P_W3, 224, 512 * 3584)], d)


def touch_done(c, g):
    for d in getattr(g, "tdst", []):
        c.k(f"v_mov_b32 v{d}, 0")
        c.va.put(d)
    g.tdst = []


def warm_done(c, g):
    touch_done(c, g)
    if g.vwarm is not None:
        c.k(f"v_mov_b32 v{g.vwarm}, 0")
        c.va.put(g.vwarm)
        g.vwarm = None


def wave_sum(c, S, x):
    k = c.k
    for m in ("quad_perm:[1,0,3,2]", "quad_perm:[2,3,0,1]", "row_half_mirror", "row_mirror"):
        for s in S:
            k(f"v_add_f32_dpp v{s}, v{s}, v{s} {m} row_mask:0xf bank_mask:0xf")
    for sw in ("v_permlane16_swap_b32", "v_permlane32_swap_b32"):
        for s, xx in zip(S, x):
            k(f"v_mov_b32 v{xx}, v{s}")
        for s, xx in zip(S, x):
            k(f"{sw} v{s}, v{xx}")
        for s, xx in zip(S, x):
            k(f"v_add_f32 v{s}, v{s}, v{xx}")


def stat_publish(c, g):
    k, va = c.k, c.va
    S1, S2 = va.get(), va.get()
    t = va.get(8)
    mean, var, m1, d1, a1, m2, d2, x = range(t, t + 8)
    o = va.get(4)
    k(f"v_mov_b32 v{S1}, 0\nv_mov_b32 v{S2}, 0")
    for i in range(4):
        k(f"v_dot2c_f32_bf16 v{S1}, s{sONE}, v{g.srow+i}\nv_dot2c_f32_bf16 v{S2}, v{g.srow+i}, v{g.srow+i}")
    c.stamp(50)
    wave_sum(c, [S1, S2], [mean, var])
    k(f"""v_mul_f32 v{mean}, {fhex(1/512)}, v{S1}
    v_mul_f32 v{x}, v{mean}, v{mean}
    v_fma_f32 v{var}, v{S2}, s{sI512}, -v{x}
    v_max_f32 v{var}, 0, v{var}""")
    c.bf16r(m1, mean)
    c.bf16r(x, var)
    k(f"v_add_f32 v{x}, {fhex(EPS)}, v{x}")
    c.bf16r(x, x)
    k(f"v_sqrt_f32 v{x}, v{x}")
    c.bf16r(d1, x)
    k(f"""v_rcp_f32 v{a1}, v{d1}
    v_sub_f32 v{x}, v{mean}, v{m1}
    v_mul_f32 v{m2}, v{x}, v{a1}
    v_mul_f32 v{x}, v{var}, v{a1}
    v_mul_f32 v{x}, v{x}, v{a1}""")
    c.bf16r(x, x)
    k(f"v_add_f32 v{x}, {fhex(EPS)}, v{x}")
    c.bf16r(x, x)
    k(f"""v_sqrt_f32 v{d2}, v{x}
    v_cvt_pk_bf16_f32 v{o}, v{m1}, v{d1}
    v_cvt_pk_bf16_f32 v{o+2}, v{m2}, v{d2}
    v_readfirstlane_b32 s{sNON}, v{g.vnon}
    s_add_u32 s{sNON}, s{sNON}, 1
    s_lshl_b32 s{sT}, s{sXCC}, 29
    s_xor_b32 s{sT}, s{sT}, s{sNON}
    v_mov_b32 v{o+1}, s{sNON}
    v_mov_b32 v{o+3}, s{sT}
    v_mov_b32 v{g.vNON}, s{sNON}
    s_lshl_b32 s{sT}, s{sA}, 4
    s_add_u32 s{sT}, s{sT}, {WS_RS}
    s_mov_b64 exec, 1
    buffer_store_dwordx4 {vr(o,4)}, off, s[{sWS}:{sWS+3}], s{sT} sc1
    s_mov_b64 exec, -1""")
    va.put(S1); va.put(S2); va.put(t, 8); va.put(o, 4)
    va.put(g.srow, 4); va.put(g.vnon)


def stat_issue(c, g):
    k, va = c.k, c.va
    g.rs = va.get(4)
    g.vrs, g.vrho = va.get(), va.get()
    lab = k.label("L_si")
    k(f"v_mov_b32 v{g.vrs}, 0\ns_cmp_lt_u32 s{sW}, 5\ns_cbranch_scc1 {lab}")
    k.region_begin("SC")
    t = va.get()
    k(f"""s_sub_u32 s{sT}, s{sW}, 5
    s_lshl_b32 s{sT}, s{sT}, 6
    v_add_u32 v{g.vrho}, s{sT}, v1
    v_min_u32 v{g.vrho}, 131, v{g.vrho}
    s_sub_u32 s{sT}, s{sT0}, 2
    v_add_u32 v{t}, s{sT}, v{g.vrho}
    v_max_i32 v{t}, 0, v{t}
    v_min_i32 v{t}, 2047, v{t}
    v_lshlrev_b32 v{g.vrs}, 4, v{t}
    s_mov_b32 s{sT}, {WS_RS}
    buffer_load_dwordx4 {vr(g.rs,4)}, v{g.vrs}, s[{sWS}:{sWS+3}], s{sT} offen sc1""")
    va.put(t)
    k.region_end()
    k(f"{lab}:")


def stat_consume(c, g):
    k, va = c.k, c.va
    rs = g.rs
    lab = k.label("L_sc")
    loop, done = k.label("L_sl"), k.label("L_sd")
    k(f"s_cmp_lt_u32 s{sW}, 5\ns_cbranch_scc1 {lab}")
    k.region_begin("SC")
    t = va.get(8)
    m1, d1, m2, d2, a1, a2, x, y = range(t, t + 8)
    vok = va.get()
    k(f"""v_mov_b32 v{x}, v{rs+1}
    s_mov_b32 s{sT+1}, {SPIN}
    s_mov_b32 s{sT}, {WS_RS}
    {loop}:
    v_xor_b32 v{x}, s{sNON}, v{rs+1}
    v_xor_b32 v{y}, s{sNON}, v{rs+3}
    v_lshlrev_b32 v{a1}, 3, v{y}
    v_or_b32 v{x}, v{x}, v{a1}
    v_cmp_ne_u32 vcc, 0, v{x}
    s_cbranch_vccz {done}""")
    k.region_begin("SC2")
    k(f"""buffer_load_dwordx4 {vr(rs,4)}, v{g.vrs}, s[{sWS}:{sWS+3}], s{sT} offen sc1
    s_waitcnt vmcnt(0)
    s_sub_u32 s{sT+1}, s{sT+1}, 1
    s_cmp_lg_u32 s{sT+1}, 0
    s_cbranch_scc1 {loop}""")
    k.region_begin("SC")
    o = [va.get(2) for _ in range(3)]
    k(f"""{done}:
    v_lshrrev_b32 v{y}, 29, v{y}
    v_subrev_u32 v{x}, 2, v{g.vrho}
    v_cmp_gt_u32 vcc, 128, v{x}
    v_cmp_ne_u32 s[{sT+2}:{sT+3}], s{sXCC}, v{y}
    s_and_b64 vcc, vcc, s[{sT+2}:{sT+3}]
    s_cselect_b32 s{sT+2}, 1, 0
    s_lshl_b32 s{sT+3}, s{sW}, 2
    s_add_u32 s{sT+3}, s{sT+3}, {MODE - 20}
    v_mov_b32 v{x}, s{sT+2}
    v_mov_b32 v{y}, s{sT+3}
    ds_write_b32 v{y}, v{x}
    s_sub_u32 s{sT}, s{sT0}, 2
    v_add_u32 v{x}, s{sT}, v{g.vrho}
    v_cmp_gt_u32 vcc, 2048, v{x}
    v_cndmask_b32 v{vok}, 0, 1.0, vcc
    v_lshlrev_b32 v{m1}, 16, v{rs}
    v_and_b32 v{d1}, 0xffff0000, v{rs}
    v_lshlrev_b32 v{m2}, 16, v{rs+2}
    v_and_b32 v{d2}, 0xffff0000, v{rs+2}
    v_rcp_f32 v{a1}, v{d1}
    v_rcp_f32 v{a2}, v{d2}
    v_mul_f32 v{m1}, v{m1}, v{vok}
    v_mul_f32 v{m2}, v{m2}, v{vok}
    v_mov_b32 v{o[0]}, v{a1}
    v_mul_f32 v{o[0]+1}, v{m1}, v{a1}
    v_mul_f32 v{o[1]}, v{a1}, v{a2}
    v_fma_f32 v{x}, v{m2}, v{d1}, v{m1}
    v_mul_f32 v{o[1]+1}, v{x}, v{o[1]}
    v_mov_b32 v{o[2]}, v{m1}
    v_mov_b32 v{o[2]+1}, v{a1}
    v_lshlrev_b32 v{y}, 3, v{g.vrho}
    v_add_u32 v{y}, {MISC}, v{y}""")
    for oo, st in zip(o, (ST_A, ST_B, ST_C)):
        k(f"ds_write_b64 v{y}, {vr(oo,2)} offset:{st - MISC}")
        va.put(oo, 2)
    va.put(t, 8); va.put(vok)
    k.region_end()
    k(f"{lab}:")
    va.put(rs, 4); va.put(g.vrs); va.put(g.vrho)


def mode_read(c, g):
    k, va = c.k, c.va
    t = va.get(4)
    a = va.get()
    k(f"""v_mov_b32 v{a}, {MODE}
    ds_read_b96 {vr(t,3)}, v{a}
    v_or3_b32 v{t}, v{t}, v{t+1}, v{t+2}
    v_readfirstlane_b32 s{sMODE}, v{t}""")
    va.put(t, 4); va.put(a)


def gelu_many(c, xs):
    k, va = c.k, c.va
    ts = [va.get() for _ in xs]
    kk = va.get()
    k(f"v_mov_b32 v{kk}, {fhex(-K1)}")
    for x, t in zip(xs, ts):
        k(f"v_mul_f32 v{t}, v{x}, v{x}")
    for x, t in zip(xs, ts):
        k(f"v_fma_f32 v{t}, v{t}, s{sK3}, v{kk}")
    for x, t in zip(xs, ts):
        k(f"v_mul_f32 v{t}, v{t}, v{x}")
    for x, t in zip(xs, ts):
        k(f"v_exp_f32 v{t}, v{t}")
    for x, t in zip(xs, ts):
        k(f"v_add_f32 v{t}, 1.0, v{t}")
    for x, t in zip(xs, ts):
        k(f"v_rcp_f32 v{t}, v{t}")
    for x, t in zip(xs, ts):
        k(f"v_mul_f32 v{x}, v{x}, v{t}")
    for t in ts:
        va.put(t)
    va.put(kk)


def cmad(k, dr, di, ar, ai, br, bi, cr, ci):
    assert dr not in (br, bi) and di not in (br, bi)
    k(f"""v_fma_f32 v{dr}, v{ar}, v{br}, v{cr}
    v_fma_f32 v{di}, v{ar}, v{bi}, v{ci}
    v_fma_f32 v{dr}, -v{ai}, v{bi}, v{dr}
    v_fma_f32 v{di}, v{ai}, v{br}, v{di}""")


def cmul(k, dr, di, ar, ai, br, bi):
    assert dr not in (ar, ai, br, bi) and di not in (ar, ai, br, bi)
    k(f"""v_mul_f32 v{dr}, v{ar}, v{br}
    v_mul_f32 v{di}, v{ar}, v{bi}
    v_fma_f32 v{dr}, -v{ai}, v{bi}, v{dr}
    v_fma_f32 v{di}, v{ai}, v{br}, v{di}""")


def csq(k, dr, di, r, i):
    k(f"""v_mul_f32 v{dr}, v{i}, v{i}
    v_mul_f32 v{di}, v{r}, v{i}
    v_fma_f32 v{dr}, v{r}, v{r}, -v{dr}
    v_add_f32 v{di}, v{di}, v{di}""")


def mf16(k, d, a, b, z):
    k(f"v_mfma_f32_16x16x32_bf16 {vr(d,4)}, {vr(a,4)}, {vr(b,4)}, {'0' if z else vr(d,4)}")


def mf32(k, d, a, b, z):
    k(f"v_mfma_f32_32x32x16_bf16 {vr(d,16)}, {vr(a,4)}, {vr(b,4)}, {'0' if z else vr(d,16)}")


def bar(c, lg=True):
    if lg:
        c.k("s_waitcnt lgkmcnt(0)")
    c.k("s_barrier")


def w2_dma(c, g, i):
    c.dma(g.vK1k, sWB, None, U(6 + i), sadd=(sC128, i * 65536), tag=f"w2_{i}")


W3H0 = [14, 15, 16, 17, 0, 1, 2, 3]


def w3_dma(c, g, ph, i):
    u = W3H0[i] if ph == 0 else 6 + i
    c.dma(g.vK35, sWA, None, U(u), sadd=(sJ3B, i * 64 * 3584 + 128 * ph), tag=f"w3_{ph}_{i}")


def xq_load(c, g):
    k, va = c.k, c.va
    g.xq = va.get(8)
    t, u = va.get(), va.get()
    k(f"""v_and_b32 v{t}, 15, v1
    v_lshrrev_b32 v{u}, 4, v1
    v_lshlrev_b32 v{u}, 3, v{u}
    v_lshl_add_u32 v{t}, v{t}, 10, v{u}
    s_lshl_b32 s{sT+1}, s{sTQ}, 4
    s_add_u32 s{sT}, s{sT0}, s{sT+1}
    s_lshl_b32 s{sT}, s{sT}, 10
    s_add_u32 s{sT}, s{sT}, s{sC128}
    s_lshl_b32 s{sT+1}, s{sKH}, 6
    s_add_u32 s{sT}, s{sT}, s{sT+1}
    s_add_u32 s{sT+1}, s{sT}, 65536
    buffer_load_dwordx2 {vr(g.xq,2)}, v{t}, s[{sX}:{sX+3}], s{sT} offen
    buffer_load_dwordx2 {vr(g.xq+2,2)}, v{t}, s[{sX}:{sX+3}], s{sT} offen offset:32
    buffer_load_dwordx2 {vr(g.xq+4,2)}, v{t}, s[{sX}:{sX+3}], s{sT+1} offen
    buffer_load_dwordx2 {vr(g.xq+6,2)}, v{t}, s[{sX}:{sX+3}], s{sT+1} offen offset:32""")
    va.put(t); va.put(u)


def norm_pairs(c, dst, src, n, ma):
    k, va = c.k, c.va
    lo, hi = va.get(), va.get()
    for i in range(n):
        k(f"""v_lshlrev_b32 v{lo}, 16, v{src+i}
        v_and_b32 v{hi}, 0xffff0000, v{src+i}
        v_sub_f32 v{lo}, v{lo}, v{ma}
        v_sub_f32 v{hi}, v{hi}, v{ma}
        v_cvt_pk_bf16_f32 v{dst+i}, v{lo}, v{hi}
        v_lshlrev_b32 v{lo}, 16, v{dst+i}
        v_and_b32 v{hi}, 0xffff0000, v{dst+i}
        v_mul_f32 v{lo}, v{lo}, v{ma+1}
        v_mul_f32 v{hi}, v{hi}, v{ma+1}
        v_cvt_pk_bf16_f32 v{dst+i}, v{lo}, v{hi}""")
    va.put(lo); va.put(hi)


def xn_prep(c, g, half):
    k, va = c.k, c.va
    ma = va.get(2)
    t = va.get()
    k(f"""s_lshl_b32 s{sT}, s{sTQ}, 7
    s_add_u32 s{sT}, s{sT}, {ST_C + 16 + 512*half}
    v_and_b32 v{t}, 15, v1
    v_lshl_add_u32 v{t}, v{t}, 3, s{sT}
    ds_read_b64 {vr(ma,2)}, v{t}""")
    norm_pairs(c, g.xq + 4*half, g.xq + 4*half, 4, ma)
    va.put(ma, 2); va.put(t)


def sel_make(c):
    k, va = c.k, c.va
    s4 = va.get(4)
    t = va.get()
    k(f"""v_lshrrev_b32 v{t}, 4, v1
    v_xor_b32 v{t}, v{t}, v1
    v_and_b32 v{t}, 1, v{t}
    v_cmp_eq_u32 vcc, 0, v{t}
    v_mov_b32 v{t}, s{sONE}""")
    for i in range(4):
        k(f"v_cndmask_b32 v{s4+i}, 0, v{t}, vcc")
    va.put(t)
    return s4


SELMASK = "0x3000300030003"


def build(opts):
    import mk4b
    g0 = G()
    P = Ctx("pro", opts, VA(2, 255))
    prologue(P, g0)
    body = P.k.finalize()
    import copy
    for kind, lab in (("S3", None), ("M", "L_pathM"), ("S0", "L_pathS0")):
        g = copy.copy(g0)
        C = Ctx(kind, opts, P.va.clone())
        mk4b.path(C, g, kind)
        C.stamp_flush()
        C.k("s_waitcnt vmcnt(0) lgkmcnt(0)\ns_endpgm")
        if lab:
            body += lab + ":\n"
        body += C.k.finalize(init_vm=P.k.final_vm)
        print(kind, "peak vgpr", C.va.peak + 2, file=sys.stderr)
    body += "L_exit:\n  s_endpgm\n"
    n = NAME + "_kernel"
    hdr = f"""; fused S5-SSM + shift-MLP kernel (generated by dev/mk4.py)
; @launch grid=(256,1,1) block=(512,1,1) lds={LDS_BYTES}
.amdgcn_target "amdgcn-amd-amdhsa--gfx950"
.text
.globl {n}
.p2align 8
.type {n},@function
{n}:
"""
    tail = f""".section .rodata,"a"
.p2align 6
.amdhsa_kernel {n}
  .amdhsa_next_free_vgpr 256
  .amdhsa_next_free_sgpr 102
  .amdhsa_accum_offset 256
  .amdhsa_group_segment_fixed_size 0
  .amdhsa_kernarg_size 136
  .amdhsa_user_sgpr_count 2
  .amdhsa_user_sgpr_kernarg_segment_ptr 1
  .amdhsa_system_sgpr_workgroup_id_x 1
.end_amdhsa_kernel
"""
    return hdr + body + tail


if __name__ == "__main__":
    import argparse
    ap = argparse.ArgumentParser()
    ap.add_argument("-o", default="v4.s")
    ap.add_argument("--stop", type=int, default=99)
    ap.add_argument("--stamps", action="store_true")
    ap.add_argument("--opt", action="append", default=[])
    a = ap.parse_args()
    opts = dict(stop=a.stop, stamps=a.stamps)
    for o in a.opt:
        kk, _, vv = o.partition("=")
        opts[kk] = int(vv) if vv else 1
    txt = build(opts)
    open(a.o, "w").write(txt)
    print("wrote", a.o, len(txt), "bytes", txt.count("\n"), "lines")
```

```python
from mk4 import *

XR = [4, 5, 18, 17]


class Sched:
    def __init__(self, c, g):
        self.c, self.g = c, g
        self.free = set()
        self.items = [("C", r) for r in range(8)] + [("W", n) for n in range(28)]
        self.unit = {}

    def release(self, us):
        for u in us:
            assert u not in self.free
            self.free.add(u)

    def units(self, it):
        u = self.unit[it]
        return [u, u + 1] if it[0] == "C" else [u]

    def next(self, maxn=99):
        c, g = self.c, self.g
        out = []
        for it in self.items:
            if it in self.unit:
                continue
            if len(out) >= maxn:
                break
            fr = sorted(self.free)
            pairs = [u for u in fr if u + 1 in self.free]
            if it[0] == "C":
                if not pairs:
                    continue
                u = pairs[0]
                self.free -= {u, u + 1}
                self.unit[it] = u
                r = it[1]
                out.append(lambda u=u, r=r: c.dma(g.vR1k, sWC, f"s{sCrow}", U(u), inst=r * 128))
                out.append(lambda u=u, r=r: c.dma(g.vR1k, sWD, f"s{sCrow}", U(u + 1), inst=r * 128, tag=f"C{r}"))
            else:
                if not fr:
                    break
                u = fr[0]
                self.free.discard(u)
                self.unit[it] = u
                n = it[1]
                ph, j3 = n // 14, n % 14
                out.append(lambda u=u, n=n, ph=ph, j3=j3: c.dma(g.vK1k, sWB, None, U(u), sadd=(sC128, (2 * j3 + ph) * 65536), tag=f"W{n}"))
        return out


def sel(k, dst, sidx, vals):
    k(f"s_mov_b32 s{dst}, {vals[0]}")
    for i in range(1, len(vals)):
        k(f"s_cmp_eq_u32 s{sidx}, {i}\ns_cselect_b32 s{dst}, {vals[i]}, s{dst}")


def late_srds(c):
    k = c.k
    srd(k, sWB, P_W4, 1792 * 1024)
    srd(k, sWC, P_CRE, 512 * 1024)
    srd(k, sWD, P_CIM, 512 * 1024)


def w3d(c, g, ph, i):
    u = W3H0[i] if ph == 0 else 6 + i
    c.dma(g.vK35, sWD, None, U(u), sadd=(sJ3B, i * 64 * 3584 + 128 * ph), tag=f"w3_{ph}_{i}")


class Queue:
    def __init__(self):
        self.q = []
    def add(self, ms, fn):
        self.q.append((ms, fn))
    def pop(self, s, n):
        while n > 0 and self.q and self.q[0][0] <= s:
            self.q.pop(0)[1]()
            n -= 1
    def flush(self):
        while self.q:
            self.q.pop(0)[1]()


def digits(x):
    return [int(ch) for ch in str(x)]


def exec_sel(k):
    k("s_mov_b32 exec_lo, 0x30003\ns_mov_b32 exec_hi, 0x30003")


def m_path(c, g):
    k, va, o = c.k, c.va, c.opts
    stop = o.get("stop", 99)
    UA = [(14, 15), (16, 17), (0, 1), (6, 7), (8, 9), (10, 11), (12, 13), (2, 3)]
    UB = [4, 5, 18, 14, 15, 16, 17, 0]
    vX0, vX1, vW1 = va.get(), va.get(), va.get()
    t, u, q = va.get(), va.get(), va.get()
    srd(k, sWA, P_W1, 512 * 1024)
    k(f"""s_lshr_b32 s{sT}, s{sC}, 2
    s_add_u32 s{sT}, s{sT}, 1
    s_sub_u32 s{sT+1}, 0, s{sT}
    s_bitcmp1_b32 s{sC}, 1
    s_cselect_b32 s{sB}, s{sT}, s{sT+1}         ; off
    s_add_u32 s{sT}, s{sT0}, s{sB}
    s_lshl_b32 s{sT}, s{sT}, 10
    v_add_u32 v{vX0}, s{sT}, v{g.vR1k}
    v_bfe_u32 v{u}, v{g.r8}, 1, 1
    s_lshl_b32 s{sT+1}, s{sKH}, 1
    v_or_b32 v{u}, s{sT+1}, v{u}
    v_lshlrev_b32 v{u}, 1, v{u}
    v_xor_b32 v{u}, v{u}, v{g.pos}
    v_lshlrev_b32 v{u}, 4, v{u}
    v_lshl_add_u32 v{vW1}, v{g.row}, 10, v{u}
    v_add_u32 v{vX1}, 0x10000, v{vX0}""")

    def ia(s, h):
        if h == 0:
            c.dma(vX0, sX, 0, U(UA[s][0]), inst=s * 128)
        else:
            c.dma(vW1, sWA, None, U(UA[s][1]), sadd=(sC128, s * 65536), tag=f"a{s}")

    def ib(s):
        c.dma(vX1, sX, 0, U(UB[s]), inst=s * 128, tag=f"b{s}")
    n0 = o.get("n0", 4)
    for s in range(n0):
        ia(s, 0); ia(s, 1)
        if s + 1 == o.get("tch", 2):
            touch(c, g, 0)
    Q = Queue()
    for s in range(n0, 8):
        Q.add(0, lambda s=s: ia(s, 0))
        Q.add(0, lambda s=s: ia(s, 1))
    for s, ms in enumerate([0, 0, 0, 1, 1, 2, 2, 3]):
        Q.add(ms, lambda s=s: ib(s))
    for i in range(8):
        Q.add(4 + i // 2, lambda i=i: w2_dma(c, g, i))
    Q.add(3, lambda: w3d(c, g, 0, 5))
    late_consts(c, g)
    kn_voff(c, g, True)
    srd(k, sWB, P_W2, 512 * 1024)
    srd(k, sWD, P_W3, 512 * 3584)
    for r in (g.r8, g.pos, g.row):
        va.put(r)
    aW = [va.get(), va.get()]
    aX = [va.get(), va.get()]
    vst = va.get()
    k(f"""v_lshrrev_b32 v{q}, 4, v1                   ; gq
    v_bfe_u32 v{t}, v1, 2, 2                    ; r'
    v_lshl_add_u32 v{u}, v{q}, 3, v{t}          ; 8gq+r'
    v_lshlrev_b32 v{aW[0]}, 7, v{u}
    v_lshrrev_b32 v{t}, 1, v{t}
    v_and_b32 v{u}, 1, v{q}
    v_lshl_add_u32 v{t}, v{u}, 1, v{t}
    v_lshlrev_b32 v{t}, 1, v{t}
    v_bfe_u32 v{u}, v1, 1, 1
    s_lshl_b32 s{sT}, s{sKH}, 2
    v_add_u32 v{u}, s{sT}, v{u}
    v_xor_b32 v{u}, v{u}, v{t}
    v_lshl_add_u32 v{aW[0]}, v{u}, 4, v{aW[0]}
    v_and_b32 v{u}, 1, v1
    v_lshl_add_u32 v{aW[0]}, v{u}, 3, v{aW[0]}
    v_xor_b32 v{aW[1]}, 32, v{aW[0]}
    v_and_b32 v{t}, 15, v1
    s_lshl_b32 s{sT}, s{sTQ}, 4
    v_add_u32 v{t}, s{sT}, v{t}
    v_bfe_u32 v{u}, v{t}, 1, 3
    v_xor_b32 v{u}, v{u}, v{q}
    v_lshlrev_b32 v{u}, 4, v{u}
    v_lshl_add_u32 v{aX[0]}, v{t}, 7, v{u}
    v_xor_b32 v{aX[1]}, 64, v{aX[0]}
    s_add_u32 s{sT}, s{sB}, 2
    s_lshl_b32 s{sT}, s{sT}, 3
    s_add_u32 s{sT}, s{sT}, {ST_B}
    v_lshl_add_u32 v{vst}, v{t}, 3, s{sT}
    s_lshr_b32 s{sT}, s{sT0}, 4
    s_add_u32 s{sT}, s{sT}, s{sTQ}
    s_lshl_b32 s{sT}, s{sT}, 4
    s_lshl_b32 s{sT+1}, s{sC}, 1
    s_add_u32 s{sT+1}, s{sT+1}, s{sKH}          ; kb
    s_add_u32 s{sT}, s{sT}, s{sT+1}
    s_lshl_b32 s{sHB}, s{sT}, 10
    s_lshl_b32 s{sT}, s{sTQ}, 4
    s_add_u32 s{sT}, s{sT}, s{sT+1}
    s_lshl_b32 s{sT}, s{sT}, 2
    s_add_u32 s{sUB}, s{sT}, s{sFL}
    s_lshl_b32 s{sT+1}, s{sW}, 5
    s_add_u32 s{sD}, s{sT+1}, s{sFL}""")
    for a in aW + aX:
        c.pre_hi(a)
    for r in (t, u, q):
        va.put(r)
    wf = va.get(128)
    acc = [va.get(4), va.get(4)]
    cs = [va.get(4), va.get(4)]
    ones = va.get(4)
    for i in range(4):
        k(f"v_mov_b32 v{ones+i}, s{sONE}")
    c.stamp(0)
    stat_publish(c, g)
    touch(c, g, 1)
    c.stamp(51)
    NB = 3
    fb = [va.get(4) for _ in range(NB)]
    pipe = Pipe()
    mq = digits(o.get("mq", 43333333))
    g.vwarm = None
    for s in range(8):
        c.stamp(16 + s)
        k.waitvm(f"a{s}")
        bar(c)
        for ks in range(2):
            i = 2 * s + ks
            for a in range(2):
                for uu in range(2):
                    c.dsr("ds_read_b64_tr_b16", wf + 8 * i + 4 * a + 2 * uu, 2, aW[a], U(UA[s][1]) + (32 * ks + 4 * uu) * 128)
            c.dsr("ds_read_b128", fb[i % NB], 4, aX[ks], U(UA[s][0]))

            def mf(i=i):
                for a in range(2):
                    mf16(k, acc[a], wf + 8 * i + 4 * a, fb[i % NB], i == 0)
                for a in range(2):
                    mf16(k, cs[a], wf + 8 * i + 4 * a, ones, i == 0)
            pipe.push(mf)
            n = (mq[s] + 1 - ks) // 2
            Q.pop(s, (n + 1) // 2)
            pipe.drain(1)
            Q.pop(s, n // 2)
        if s == o.get("sis", 3):
            stat_issue(c, g)
        if s == o.get("xqs", 7):
            xq_load(c, g)
        if s == 6:
            stat_consume(c, g)
    pipe.drain()
    Q.flush()
    for a in aW:
        c.free_base(a)
    va.put(ones, 4); va.put(vX0); va.put(vX1); va.put(vW1)
    c.stamp(1)
    mode_read(c, g)

    def epi(half):
        k = c.k
        ab = va.get(2)
        t = va.get()
        k(f"ds_read_b64 {vr(ab,2)}, v{vst} offset:{half*512}")
        for a in range(2):
            for r in range(4):
                k(f"""v_mul_f32 v{t}, v{ab+1}, v{cs[a]+r}
                v_fma_f32 v{acc[a]+r}, v{ab}, v{acc[a]+r}, -v{t}""")
        va.put(t); va.put(ab, 2)
        gelu_many(c, [acc[a] + r for a in range(2) for r in range(4)])
        P = va.get(4)
        for a in range(2):
            for i in range(2):
                k(f"v_cvt_pk_bf16_f32 v{P+2*a+i}, v{acc[a]+2*i}, v{acc[a]+2*i+1}")
        if half:
            k(f"s_add_u32 s{sHB}, s{sHB}, 65536")
        c.store(f"buffer_store_dwordx4 {vr(P,4)}, v{g.vL16}, s[{sWS}:{sWS+3}], s{sHB} offen", o.get("phx"), tag=f"hp{half}")
        va.put(P, 4)
    epi(0)
    c.stamp(2)
    aG = [va.get() for _ in range(4)]
    vx1, vex = va.get(), va.get()
    held = [va.get() for _ in range(8)]

    def prep():
        k = c.k
        t, u, q = held[:3]
        k(f"""v_lshrrev_b32 v{q}, 4, v1
        v_bfe_u32 v{t}, v1, 2, 2
        v_lshl_add_u32 v{u}, v{q}, 2, v{t}          ; 4q+r'
        v_lshlrev_b32 v{aG[0]}, 7, v{u}
        v_lshrrev_b32 v{t}, 1, v{t}
        v_lshlrev_b32 v{t}, 2, v{t}
        v_and_b32 v{u}, 1, v{q}
        v_lshl_add_u32 v{t}, v{u}, 1, v{t}          ; swz
        v_bfe_u32 v{u}, v1, 1, 1
        s_lshl_b32 s{sT}, s{sKH}, 2
        v_add_u32 v{u}, s{sT}, v{u}
        v_xor_b32 v{u}, v{u}, v{t}
        v_lshl_add_u32 v{aG[0]}, v{u}, 4, v{aG[0]}
        v_and_b32 v{u}, 1, v1
        v_lshl_add_u32 v{aG[0]}, v{u}, 3, v{aG[0]}
        s_lshl_b32 s{sT}, s{sKH}, 15
        s_add_u32 s{sT}, s{sT}, {U(6)}
        v_add_u32 v{aG[0]}, s{sT}, v{aG[0]}""")
        for a in range(1, 4):
            k(f"v_xor_b32 v{aG[a]}, {a*32}, v{aG[0]}")
        k(f"""v_and_b32 v{t}, 15, v1
        v_and_b32 v{u}, 1, v{q}
        v_lshl_add_u32 v{t}, v{u}, 5, v{t}
        v_lshlrev_b32 v{t}, 4, v{t}
        v_lshrrev_b32 v{u}, 1, v{q}
        v_lshl_add_u32 v{vx1}, v{u}, 10, v{t}
        s_lshl_b32 s{sT}, s{sW}, 11
        s_add_u32 s{sT}, s{sT}, {U(4)}
        v_add_u32 v{vex}, s{sT}, v{g.vL16}
        s_lshr_b32 s{sT}, s{sT0}, 5
        s_lshr_b32 s{sT+1}, s{sW}, 2
        s_add_u32 s{sT}, s{sT}, s{sT+1}             ; t32
        s_lshl_b32 s{sT+2}, s{sC}, 1
        s_add_u32 s{sT+2}, s{sT+2}, s{sKH}          ; slice
        s_and_b32 s{sT+3}, s{sTQ}, 1
        s_lshl_b32 s{sT}, s{sT}, 4
        s_add_u32 s{sT}, s{sT}, s{sT+2}             ; t32*16+slice
        s_lshl_b32 s{sT}, s{sT}, 1
        s_add_u32 s{sT}, s{sT}, s{sT+3}
        s_lshl_b32 s{sB}, s{sT}, 7
        s_lshl_b32 s{sT+1}, s{sT+1}, 5
        s_lshl_b32 s{sT+3}, s{sT+3}, 4
        s_add_u32 s{sT+1}, s{sT+1}, s{sT+3}
        s_add_u32 s{sT+1}, s{sT+1}, s{sT+2}
        s_lshl_b32 s{sT+1}, s{sT+1}, 2
        s_add_u32 s{sT+1}, s{sT+1}, s{sFL}
        s_add_u32 s{sA}, s{sT+1}, 1024""")
        xn_prep(c, g, 0)
        xn_prep(c, g, 1)
    for r in held[3:]:
        va.put(r)
    fill = capture(c, prep)
    blk = [va.get() for _ in range(5)]

    def g1b():
        k = c.k
        pipe = Pipe()
        k.waitvm("b4")
        bar(c)
        for s in range(8):
            if s == 5:
                k.waitvm("b7")
                bar(c)
            for ks in range(2):
                i = 2 * s + ks
                c.dsr("ds_read_b128", fb[i % NB], 4, aX[ks], U(UB[s]))

                def mf(i=i):
                    for a in range(2):
                        mf16(k, acc[a], wf + 8 * i + 4 * a, fb[i % NB], i == 0)
                pipe.push(mf)
                pipe.drain(2)
            if s in (0, 1):
                w3d(c, g, 0, 6 + s)
            if s in (5, 6):
                w3d(c, g, 0, s - 5)
            if s == o.get("f0a", 2):
                k.waitvm("hp0")
                c.flag(g, sUB)
            if s == o.get("p0a", 6) and stop >= 2:
                g.p0 = c.poll_issue(g, sD, 8)
        pipe.drain()
    main = capture(c, g1b)
    splice(k, main, fill, o.get("per1", 4))
    for r in held[:3] + blk:
        va.put(r)
    for a in aX:
        c.free_base(a)
    for f in fb:
        va.put(f, 4)
    c.stamp(3)
    hp = va.get(32)

    def hp_loads(half):
        k(f"""s_lshl_b32 s{sT}, s{sT0}, 10
        s_lshl_b32 s{sT+1}, s{sW}, 13
        s_add_u32 s{sT}, s{sT}, s{sT+1}
        s_add_u32 s{sT}, s{sT}, {65536*half}
        s_add_u32 s{sT+1}, s{sT}, 4096""")
        for i in range(8):
            k(f"buffer_load_dwordx4 {vr(hp+4*i,4)}, v{g.vL16}, s[{sWS}:{sWS+3}], s{sT+(i>>2)} offen offset:{(i&3)*1024} sc1")
    if stop >= 2:
        c.poll_check(g, g.p0)
        hp_loads(0)
    c.stamp(4)
    epi(1)
    va.put(vst)
    for a in range(2):
        va.put(acc[a], 4); va.put(cs[a], 4)
    warm_done(c, g)
    k(f"s_add_u32 s{sUB}, s{sUB}, 256\ns_add_u32 s{sD}, s{sD}, 256")
    if stop < 2:
        k.waitvm("hp1")
        c.flag(g, sUB)
        return
    k(f"""s_lshl_b32 s{sT}, s{sB}, 3
    s_and_b32 s{sT}, s{sT}, 0xfffff800
    s_and_b32 s{sT+1}, s{sB}, 128
    s_lshl_b32 s{sT+1}, s{sT+1}, 1
    s_add_u32 s{sT}, s{sT}, s{sT+1}
    s_add_u32 s{sHB}, s{sT}, {WS_X1}
    s_add_u32 s{sB}, s{sB}, {WS_PS}""")
    k.waitvm("w2_7")
    bar(c)
    c.stamp(5)
    acc = [va.get(4) for _ in range(4)]
    pipe = Pipe()

    def mfg(i):
        for a in (2, 3, 0, 1):
            mf16(k, acc[a], wf + 16 * i + 4 * a, hp + 4 * i, i == 0)
    for i in range(8):
        for a in range(4):
            for uu in range(2):
                k(f"ds_read_b64_tr_b16 {vr(wf+16*i+4*a+2*uu,2)}, v{aG[a]} offset:{(i>>1)*8192 + (32*(i&1)+16*uu)*128}")
        pipe.push(lambda i=i: mfg(i))
        pipe.drain(2)
        if i in (1, 2, 3):
            w3d(c, g, 0, i + 1)
        if i == o.get("f0b", 4):
            k.waitvm("hp1")
            c.flag(g, sUB)
        if i == o.get("p0b", 7):
            g.p0 = c.poll_issue(g, sD, 8)
    pipe.drain()
    for a in aG:
        va.put(a)

    def xwrite():
        for i in range(2):
            k(f"ds_write_b128 v{vex}, {vr(acc[2+i],4)} offset:{1024*i}")
        k(f"v_xor_b32 v{vex}, 2048, v{vex}")

    def x1_epi(half):
        for i in range(2):
            k(f"ds_read_b128 {vr(acc[2+i],4)}, v{vex} offset:{1024*i}")
        lo, hi = va.get(), va.get()
        x1 = va.get(4)
        for i in range(4):
            a = acc[i >> 1] + 2 * (i & 1)
            b = acc[2 + (i >> 1)] + 2 * (i & 1)
            k(f"""v_lshlrev_b32 v{lo}, 16, v{g.xq+4*half+i}
            v_and_b32 v{hi}, 0xffff0000, v{g.xq+4*half+i}
            v_add_f32 v{a}, v{a}, v{b}
            v_add_f32 v{a+1}, v{a+1}, v{b+1}
            v_add_f32 v{lo}, v{lo}, v{a}
            v_add_f32 v{hi}, v{hi}, v{a+1}
            v_cvt_pk_bf16_f32 v{x1+i}, v{lo}, v{hi}""")
        c.store(f"buffer_store_dwordx4 {vr(x1,4)}, v{vx1}, s[{sWS}:{sWS+3}], s{sHB} offen", o.get("phx"))
        s12 = va.get(2)
        S1, S2 = s12, s12 + 1
        k(f"v_mov_b32 v{S1}, 0\nv_mov_b32 v{S2}, 0")
        for i in range(4):
            k(f"v_dot2c_f32_bf16 v{S1}, s{sONE}, v{x1+i}\nv_dot2c_f32_bf16 v{S2}, v{x1+i}, v{x1+i}")
        k(f"""v_permlane32_swap_b32 v{S1}, v{S2}
        v_add_f32 v{S1}, v{S1}, v{S2}
        v_mov_b32 v{S2}, v{S1}
        v_permlane16_swap_b32 v{S1}, v{S2}
        v_add_f32 v{S1}, v{S1}, v{S2}
        v_mov_b32 v{S2}, v{S1}
        v_permlane32_swap_b32 v{S1}, v{S2}
        v_lshlrev_b32 v{lo}, 3, v1
        s_mov_b64 exec, 0xffff""")
        c.store(f"buffer_store_dwordx2 {vr(s12,2)}, v{lo}, s[{sWS}:{sWS+3}], s{sB} offen", o.get("phx"), tag=f"x1st{half}")
        k("s_mov_b64 exec, -1")
        va.put(s12, 2); va.put(x1, 4); va.put(lo); va.put(hi)
    xwrite()
    bar(c)
    c.stamp(6)
    c.poll_check(g, g.p0)
    hp_loads(1)
    c.stamp(7)
    x1_epi(0)
    k(f"s_add_u32 s{sHB}, s{sHB}, 65536\ns_add_u32 s{sB}, s{sB}, 8192")
    c.stamp(8)
    for i in range(8):
        if stop >= 4:
            w3d(c, g, 1, i)
        mfg(i)
        if i == o.get("f1a", 5):
            k.waitvm("x1st0")
            c.flag(g, sA)
    va.put(wf, 128); va.put(hp, 32)
    xwrite()
    bar(c)
    c.stamp(53)
    x1_epi(1)
    for a in acc:
        va.put(a, 4)
    va.put(g.xq, 8); va.put(vx1); va.put(vex)
    k(f"s_add_u32 s{sA}, s{sA}, 256")
    c.stamp(54)

    def f1():
        c.k.waitvm("x1st1")
        c.flag(g, sA)
        if stop >= 4:
            f1_issue(c, g)
    return f1


def p1_S(c, g, full, sc):
    k, va, o = c.k, c.va, c.opts
    stop = o.get("stop", 99)
    SL = [(9, 10, 11, 12), (13, 14, 15, 16), (17, 18, 0, 1), (2, 3, 4, 5)]
    vX0, vX1 = va.get(), va.get()
    srd(k, sWA, P_BRE, 512 * 1024)
    srd(k, sWB, P_BIM, 512 * 1024)
    k(f"""s_lshl_b32 s{sT}, s{sT0}, 10
    v_add_u32 v{vX0}, s{sT}, v{g.vR1k}
    v_add_u32 v{vX1}, 0x10000, v{vX0}""")

    def issue(s):
        sl = SL[s % 4]
        return [lambda: c.dma(vX0, sX, 0, U(sl[0]), inst=s * 128),
                lambda: c.dma(vX1, sX, 0, U(sl[1]), inst=s * 128),
                lambda: c.dma(g.vR1k, sWA, f"s{sCrow}", U(sl[2]), inst=s * 128),
                lambda: c.dma(g.vR1k, sWB, f"s{sCrow}", U(sl[3]), inst=s * 128, tag=f"a{s}")]
    n0 = o.get("n0s", 2)
    for s in range(n0):
        for f in issue(s):
            f()
        if s + 1 == o.get("tchs", 1):
            touch(c, g, 0)
    Q = Queue()
    for s in range(n0, 8):
        for f in issue(s):
            Q.add(max(0, s - 3), f)
    i32, hf, t, u = va.get(), va.get(), va.get(), va.get()
    lre, lim, ldt = va.get(), va.get(), va.get()
    k(f"""v_and_b32 v{i32}, 31, v1
    v_lshrrev_b32 v{hf}, 5, v1
    s_lshl_b32 s{sT}, s{sKH}, 6
    s_add_u32 s{sT}, s{sT}, s{sC128}
    v_lshlrev_b32 v{t}, 1, v{i32}""")
    for p, d in ((P_LRE, lre), (P_LIM, lim), (P_LDT, ldt)):
        srd(k, sMI, p, 1024)
        k(f"buffer_load_ushort v{d}, v{t}, s[{sMI}:{sMI+3}], s{sT} offen")
    late_consts(c, g)
    kn_voff(c, g, full)
    late = stop >= (4 if full else 5)
    if full:
        srd(k, sWD, P_W3, 512 * 3584)
        if late:
            for ph, i, ms in [(1, 0, 0), (1, 1, 0), (1, 2, 0), (1, 3, 5), (1, 4, 5), (1, 5, 5), (1, 6, 5), (1, 7, 6),
                              (0, 0, 6), (0, 1, 6), (0, 2, 6), (0, 3, 7), (0, 4, 7), (0, 5, 7), (0, 6, 8), (0, 7, 8)]:
                Q.add(ms, lambda ph=ph, i=i: w3d(c, g, ph, i))
    else:
        srd(k, sWC, P_CRE, 512 * 1024)
        srd(k, sWD, P_CIM, 512 * 1024)
        if late:
            Q.add(0, lambda: srd(c.k, sWB, P_W4, 1792 * 1024))
            for us, ms in [((6, 7, 8), 0), ((9, 10, 11, 12), 5), ((13, 14, 15, 16), 6), ((17, 0, 1), 7), ((2, 3), 8)]:
                sc.release(us)
                for f in sc.next():
                    Q.add(ms, f)
    for r in (g.r8, g.pos, g.row):
        va.put(r)
    aA = [va.get() for _ in range(4)]
    aB = [va.get() for _ in range(4)]
    k(f"""v_lshrrev_b32 v{t}, 2, v{i32}
    v_and_b32 v{t}, 1, v{t}
    v_lshlrev_b32 v{t}, 4, v{t}
    v_lshrrev_b32 v{u}, 3, v{i32}
    v_lshl_add_u32 v{t}, v{u}, 2, v{t}
    v_and_b32 v{u}, 3, v{i32}
    v_add_u32 v{t}, v{t}, v{u}               ; tau
    v_bfe_u32 v{u}, v{t}, 1, 3
    v_xor_b32 v{u}, v{u}, v{hf}
    v_lshlrev_b32 v{u}, 4, v{u}
    v_lshl_add_u32 v{aA[0]}, v{t}, 7, v{u}
    s_lshl_b32 s{sT}, s{sTQ}, 12
    v_add_u32 v{aA[0]}, s{sT}, v{aA[0]}
    v_bfe_u32 v{u}, v{i32}, 1, 3
    v_xor_b32 v{u}, v{u}, v{hf}
    v_lshlrev_b32 v{u}, 4, v{u}
    v_lshl_add_u32 v{aB[0]}, v{i32}, 7, v{u}
    s_lshl_b32 s{sT}, s{sKH}, 12
    v_add_u32 v{aB[0]}, s{sT}, v{aB[0]}
    s_lshl_b32 s{sT}, s{sTQ}, 5
    v_xor_b32 v{aA[0]}, s{sT}, v{aA[0]}
    v_xor_b32 v{aB[0]}, s{sT}, v{aB[0]}""")
    for i in range(1, 4):
        k(f"v_xor_b32 v{aA[i]}, {i*32}, v{aA[0]}\nv_xor_b32 v{aB[i]}, {i*32}, v{aB[0]}")
    for a in aA:
        c.pre_hi(a, (1, 2))
    for a in aB:
        c.pre_hi(a, (1, 2))
    s4 = sel_make(c)
    c.stamp(0)
    stat_publish(c, g)
    touch(c, g, 1)
    c.stamp(51)
    accr, acci = va.get(16), va.get(16)
    csr, csi = va.get(4), va.get(4)
    NB = 3
    fa = [va.get(4) for _ in range(NB)]
    fr = [va.get(4) for _ in range(NB)]
    fi = [va.get(4) for _ in range(NB)]
    lr, li, kr, ki = [va.get() for _ in range(4)]
    pw = [va.get(2), va.get(2)]
    l16, l128, fs, fe = [va.get(2) for _ in range(4)]
    dt, e, x2 = va.get(), va.get(), va.get()
    l256 = va.get(2)

    def params():
        k = c.k
        k(f"""v_lshlrev_b32 v{lre}, 16, v{lre}
        v_lshlrev_b32 v{lim}, 16, v{lim}
        v_lshlrev_b32 v{ldt}, 16, v{ldt}
        v_mul_f32 v{dt}, {fhex(LOG2E)}, v{ldt}
        v_exp_f32 v{dt}, v{dt}""")
        c.bf16r(dt, dt)
        k(f"""v_mul_f32 v{e}, v{dt}, v{lre}
        v_mul_f32 v{e}, {fhex(LOG2E)}, v{e}
        v_exp_f32 v{e}, v{e}
        v_mul_f32 v{x2}, v{dt}, v{lim}
        v_mul_f32 v{x2}, {fhex(0.15915494309189535)}, v{x2}
        v_cos_f32 v{lr}, v{x2}
        v_sin_f32 v{li}, v{x2}
        v_mul_f32 v{lr}, v{lr}, v{e}
        v_mul_f32 v{li}, v{li}, v{e}
        v_mul_f32 v{e}, v{lre}, v{lre}
        v_fma_f32 v{e}, v{lim}, v{lim}, v{e}
        v_rcp_f32 v{e}, v{e}
        v_add_f32 v{x2}, -1.0, v{lr}
        v_mul_f32 v{kr}, v{x2}, v{lre}
        v_fma_f32 v{kr}, v{li}, v{lim}, v{kr}
        v_mul_f32 v{ki}, v{li}, v{lre}
        v_fma_f32 v{ki}, -v{x2}, v{lim}, v{ki}
        v_add_f32 v{e}, v{e}, v{e}
        v_mul_f32 v{kr}, v{kr}, v{e}
        v_mul_f32 v{ki}, v{ki}, v{e}""")
        csq(k, pw[0], pw[0] + 1, lr, li)
        csq(k, pw[1], pw[1] + 1, pw[0], pw[0] + 1)
        csq(k, pw[0], pw[0] + 1, pw[1], pw[1] + 1)
        csq(k, l16, l16 + 1, pw[0], pw[0] + 1)

        def factor(dst, base):
            k(f"""v_cndmask_b32 v{dst}, 1.0, v{base}, s[4:5]
            v_cndmask_b32 v{dst+1}, 0, v{base+1}, s[4:5]""")
            cur = base
            for b in range(2):
                nx = pw[b]
                csq(k, nx, nx + 1, cur, cur + 1)
                cmul(k, e, x2, dst, dst + 1, nx, nx + 1)
                k(f"""v_cndmask_b32 v{dst}, v{dst}, v{e}, s[{6+2*b}:{7+2*b}]
                v_cndmask_b32 v{dst+1}, v{dst+1}, v{x2}, s[{6+2*b}:{7+2*b}]""")
                cur = nx
            return cur
        p4 = factor(fs, l16)
        csq(k, l128, l128 + 1, p4, p4 + 1)
        csq(k, l256, l256 + 1, l128, l128 + 1)
        factor(fe, l256)
    k(f"""s_mov_b32 s4, 0
    s_mov_b32 s5, -1
    s_bitcmp1_b32 s{sTQ}, 0
    s_cselect_b64 s[6:7], -1, 0
    s_bitcmp1_b32 s{sTQ}, 1
    s_cselect_b64 s[8:9], -1, 0""")
    fill = capture(c, params)
    sq = digits(o.get("sq", 65444444))
    g.vwarm = None

    def steps():
        k = c.k
        pipe = Pipe()
        for s in range(8):
            c.stamp(16 + s)
            k.waitvm(f"a{s}")
            bar(c)
            sl = SL[s % 4]
            assert sl[1] == sl[0] + 1
            for i in range(4):
                n = 4 * s + i
                b = n % NB
                c.dsr("ds_read_b128", fa[b], 4, aA[i], U(sl[0]))
                c.dsr("ds_read_b128", fr[b], 4, aB[i], U(sl[2]))
                c.dsr("ds_read_b128", fi[b], 4, aB[i], U(sl[3]))

                def mf(n=n, b=b, i=i):
                    mf32(k, accr, fa[b], fr[b], n == 0)
                    mf32(k, acci, fa[b], fi[b], n == 0)
                    if i == 0:
                        mf16(k, csr, fr[b], s4, n == 0)
                        mf16(k, csi, fi[b], s4, n == 0)
                pipe.push(mf)
                pipe.drain(1)
                Q.pop(s, (sq[s] + 3 - i) // 4)
            if s == o.get("sis", 3):
                stat_issue(c, g)
            if s == o.get("wmss", 5):
                warm_mall(c, g)
            if s == 6:
                stat_consume(c, g)
        pipe.drain()
    main = capture(c, steps)
    splice(k, main, fill, o.get("pers", 3))
    for r in (lre, lim, ldt, dt, e, x2):
        va.put(r)
    va.put(l256, 2); va.put(pw[0], 2); va.put(pw[1], 2)
    for a in aA + aB:
        c.free_base(a)
    for f in fa + fr + fi:
        va.put(f, 4)
    va.put(vX0); va.put(vX1); va.put(s4, 4)
    Q.pop(7, 99)
    c.stamp(1)
    k(f"""v_lshrrev_b32 v{t}, 4, v1
    v_and_b32 v{u}, 1, v1
    v_lshl_add_u32 v{t}, v{u}, 2, v{t}
    s_lshl_b32 s{sT}, s{sKH}, 10
    s_add_u32 s{sT}, s{sT}, {CSB}
    s_lshl_b32 s{sT+1}, s{sTQ}, 3
    s_add_u32 s{sT+1}, s{sT+1}, s{sT}
    v_lshl_add_u32 v{u}, v{t}, 7, s{sT+1}
    v_lshl_add_u32 v{t}, v{i32}, 5, s{sT}""")
    exec_sel(k)
    for r in range(4):
        k(f"ds_write2_b32 v{u}, v{csr+r}, v{csi+r} offset0:{8*r} offset1:{8*r+1}")
    k("s_mov_b64 exec, -1")
    st = va.get(32)
    k(f"""s_lshl_b32 s{sT}, s{sTQ}, 8
    s_add_u32 s{sT}, s{sT}, {ST_A + 16}
    v_lshl_add_u32 v{u}, v{hf}, 7, s{sT}""")
    for i in range(8):
        k(f"ds_read_b128 {vr(st+4*i,4)}, v{u} offset:{16*i}")
    mode_read(c, g)
    warm_done(c, g)
    t1, t2 = va.get(), va.get()
    for r in range(16):
        k(f"""v_mul_f32 v{t1}, v{kr}, v{accr+r}
        v_mul_f32 v{t2}, v{kr}, v{acci+r}
        v_fma_f32 v{t1}, -v{ki}, v{acci+r}, v{t1}
        v_fma_f32 v{acci+r}, v{ki}, v{accr+r}, v{t2}
        v_mul_f32 v{accr+r}, v{st+2*r}, v{t1}
        v_mul_f32 v{acci+r}, v{st+2*r}, v{acci+r}""")
    bar(c)
    Q.flush()
    cs = va.get(8)
    k(f"""ds_read_b128 {vr(cs,4)}, v{t}
    ds_read_b128 {vr(cs+4,4)}, v{t} offset:16
    v_add_f32 v{csr}, v{cs}, v{cs+2}
    v_add_f32 v{csi}, v{cs+1}, v{cs+3}
    v_add_f32 v{cs+4}, v{cs+4}, v{cs+6}
    v_add_f32 v{cs+5}, v{cs+5}, v{cs+7}
    v_add_f32 v{csr}, v{csr}, v{cs+4}
    v_add_f32 v{csi}, v{csi}, v{cs+5}""")
    cmul(k, cs, cs + 1, kr, ki, csr, csi)
    for r in range(16):
        k(f"""v_fma_f32 v{accr+r}, -v{st+2*r+1}, v{cs}, v{accr+r}
        v_fma_f32 v{acci+r}, -v{st+2*r+1}, v{cs+1}, v{acci+r}""")
    va.put(cs, 8); va.put(st, 32); va.put(csr, 4); va.put(csi, 4)
    for r in (t1, t2, kr, ki):
        va.put(r)
    h = [va.get(2), va.get(2)]
    cur = (accr, acci)
    for r in range(1, 16):
        d = h[r & 1]
        cmad(k, d, d + 1, lr, li, cur[0], cur[1], accr + r, acci + r)
        cur = (d, d + 1)
    SEG = U(18)
    k(f"""s_lshl_b32 s{sT}, s{sKH}, 8
    s_add_u32 s{sT}, s{sT}, {SEG}
    v_lshl_add_u32 v{t}, v{i32}, 3, s{sT}       ; SEG + p*8
    v_lshl_add_u32 v{u}, v{hf}, 9, v{t}
    s_lshl_b32 s{sT}, s{sTQ}, 10
    v_add_u32 v{u}, s{sT}, v{u}
    ds_write_b64 v{u}, {vr(cur[0],2)}""")
    g.eg = va.get(8)
    g.veb = va.get(2)
    k(f"""s_lshl_b32 s{sT}, s{sTQ}, 2
    s_sub_u32 s{sT}, s{sG}, s{sT}
    s_sub_u32 s{sT}, s{sT}, 1
    s_lshl_b32 s{sT}, s{sT}, 13
    s_lshl_b32 s{sT+1}, s{sC}, 10
    s_add_u32 s{sT}, s{sT}, s{sT+1}
    s_lshl_b32 s{sT+1}, s{sKH}, 9
    s_add_u32 s{sT}, s{sT}, s{sT+1}
    v_lshl_add_u32 v{g.veb}, v{i32}, 4, s{sT}
    v_lshlrev_b32 v{g.veb+1}, 14, v{hf}
    v_sub_u32 v{g.veb}, v{g.veb}, v{g.veb+1}
    v_subrev_u32 v{g.veb+1}, 8192, v{g.veb}""")
    bar(c)
    c.stamp(2)
    es = va.get(16)
    for s in range(8):
        k(f"ds_read_b64 {vr(es+2*s,2)}, v{t} offset:{512*s}")
    pre = va.get(2)
    k(f"""s_lshl_b32 s{sT}, s{sTQ}, 1
    v_add_u32 v{u}, s{sT}, v{hf}
    v_mov_b32 v{pre}, 0
    v_mov_b32 v{pre+1}, 0""")
    cur = (es, es + 1)
    for s in range(1, 8):
        d = h[s & 1]
        k(f"""v_cmp_eq_u32 vcc, {s}, v{u}
        v_cndmask_b32 v{pre}, v{pre}, v{cur[0]}, vcc
        v_cndmask_b32 v{pre+1}, v{pre+1}, v{cur[1]}, vcc""")
        cmad(k, d, d + 1, l16, l16 + 1, cur[0], cur[1], es + 2 * s, es + 2 * s + 1)
        cur = (d, d + 1)
    g4 = es
    lab = k.label("L_es")
    k(f"s_cmp_lg_u32 s{sTQ}, 0\ns_cbranch_scc1 {lab}")
    k.region_begin()
    k(f"""v_mov_b32 v{g4}, v{cur[0]}
    v_mov_b32 v{g4+1}, s{sNON}
    v_mov_b32 v{g4+2}, v{cur[1]}
    v_mov_b32 v{g4+3}, s{sNON}
    s_lshl_b32 s{sT}, s{sG}, 13
    s_lshl_b32 s{sT+1}, s{sC}, 10
    s_add_u32 s{sT}, s{sT}, s{sT+1}
    s_lshl_b32 s{sT+1}, s{sKH}, 9
    s_add_u32 s{sT}, s{sT}, s{sT+1}
    s_add_u32 s{sT}, s{sT}, {WS_E}
    s_mov_b64 exec, 0xffffffff
    buffer_store_dwordx4 {vr(g4,4)}, v{g.vL16}, s[{sWS}:{sWS+3}], s{sT} offen sc1
    s_mov_b64 exec, -1""")
    k.region_end()
    k(f"{lab}:")
    va.put(es, 16); va.put(h[0], 2); va.put(h[1], 2); va.put(l16, 2); va.put(t); va.put(u)
    c.stamp(3)
    g.scan = dict(accr=accr, acci=acci, lr=lr, li=li, l128=l128, fs=fs, fe=fe, pre=pre, i32=i32, hf=hf)


def e_loads(c, g):
    k = c.k
    k(f"""s_add_u32 s{sMI}, s{P_WS}, {WS_E}
    s_addc_u32 s{sMI+1}, s{P_WS+1}, 0
    s_mov_b32 s{sMI+2}, 131072
    s_mov_b32 s{sMI+3}, 0x00020000""")
    for ii in range(2):
        k(f"buffer_load_dwordx4 {vr(g.eg+4*ii,4)}, v{g.veb+ii}, s[{sMI}:{sMI+3}], 0 offen sc1")


def scan2a(c, g):
    k, va = c.k, c.va
    S = g.scan
    eg = g.eg
    loop, done = k.label("L_el"), k.label("L_ed")
    bad, e_, x_, y_ = [va.get() for _ in range(4)]
    k(f"""v_mov_b32 v{bad}, v{eg+7}
    s_mov_b32 s{sT+1}, {SPIN}
    {loop}:
    v_mov_b32 v{bad}, 0""")
    for ii in range(2):
        k(f"""v_cmp_le_i32 vcc, 0, v{g.veb+ii}
        v_cndmask_b32 v{e_}, 0, v{g.vNON}, vcc
        v_xor_b32 v{x_}, v{e_}, v{eg+4*ii+1}
        v_xor_b32 v{y_}, v{e_}, v{eg+4*ii+3}
        v_or3_b32 v{bad}, v{bad}, v{x_}, v{y_}""")
    k(f"""v_cmp_ne_u32 vcc, 0, v{bad}
    s_cbranch_vccz {done}""")
    k.region_begin()
    e_loads(c, g)
    k(f"""s_waitcnt vmcnt(0)
    s_sub_u32 s{sT+1}, s{sT+1}, 1
    s_cmp_lg_u32 s{sT+1}, 0
    s_cbranch_scc1 {loop}""")
    k.region_end()
    k(f"{done}:")
    d = va.get(2)
    cmad(k, x_, y_, S["l128"], S["l128"] + 1, eg + 4, eg + 6, eg, eg + 2)
    cmul(k, d, d + 1, S["fe"], S["fe"] + 1, x_, y_)
    k(f"""v_mov_b32 v{x_}, v{d}
    v_mov_b32 v{y_}, v{d+1}
    v_permlane32_swap_b32 v{d}, v{x_}
    v_permlane32_swap_b32 v{d+1}, v{y_}
    v_add_f32 v{d}, v{d}, v{x_}
    v_add_f32 v{d+1}, v{d+1}, v{y_}
    s_lshl_b32 s{sT}, s{sKH}, 8
    s_add_u32 s{sT}, s{sT}, {CSB}
    v_lshl_add_u32 v{e_}, v{S['i32']}, 3, s{sT}
    s_lshl_b32 s{sT}, s{sTQ}, 9
    v_add_u32 v{bad}, s{sT}, v{e_}
    ds_write_b64 v{bad}, {vr(d,2)}""")
    g.vep = e_
    for r in (bad, x_, y_):
        va.put(r)
    va.put(d, 2); va.put(eg, 8); va.put(g.veb, 2); va.put(S["l128"], 2); va.put(S["fe"], 2)


def scan2b(c, g, hooks):
    k, va = c.k, c.va
    S = g.scan
    ep = va.get(8)
    for i in range(4):
        k(f"ds_read_b64 {vr(ep+2*i,2)}, v{g.vep} offset:{512*i}")
    va.put(g.vep)
    wr, rd, vho, t = [va.get() for _ in range(4)]
    k(f"""s_xor_b32 s{sT}, s{sW}, 1
    s_lshl_b32 s{sT}, s{sT}, 11
    s_add_u32 s{sT}, s{sT}, {U(4)}
    v_lshl_add_u32 v{wr}, v{S['i32']}, 5, s{sT}
    v_lshl_add_u32 v{wr}, v{S['hf']}, 4, v{wr}
    v_lshl_add_u32 v{rd}, v{S['hf']}, 10, s{sT}
    v_bfe_u32 v{t}, v1, 4, 1
    v_lshl_add_u32 v{rd}, v{t}, 8, v{rd}
    v_lshlrev_b32 v{vho}, 10, v{t}
    v_and_b32 v{t}, 15, v1
    v_lshl_add_u32 v{rd}, v{t}, 3, v{rd}        ; r'*32 + c4*8
    v_lshl_add_u32 v{vho}, v{S['hf']}, 9, v{vho}
    v_bfe_u32 v{t}, v1, 3, 1
    v_lshl_add_u32 v{vho}, v{t}, 8, v{vho}
    v_and_b32 v{t}, 7, v1
    v_lshl_add_u32 v{vho}, v{t}, 4, v{vho}
    s_lshr_b32 s{sT}, s{sT0}, 5
    s_add_u32 s{sT}, s{sT}, s{sTQ}
    s_lshl_b32 s{sT}, s{sT}, 16
    s_lshl_b32 s{sT+1}, s{sC}, 13
    s_add_u32 s{sT}, s{sT}, s{sT+1}
    s_lshl_b32 s{sT+1}, s{sKH}, 12
    s_add_u32 s{sT}, s{sT}, s{sT+1}
    s_add_u32 s{sHB}, s{sT}, {WS_H}
    s_lshl_b32 s{sT}, s{sW}, 3
    s_add_u32 s{sT}, s{sT}, s{sC}
    s_lshl_b32 s{sT}, s{sT}, 2
    s_add_u32 s{sT}, s{sT}, s{sFL}
    s_add_u32 s{sUB}, s{sT}, 2048
    v_add_f32 v{ep}, v{ep}, v{ep+2}
    v_add_f32 v{ep+1}, v{ep+1}, v{ep+3}
    v_add_f32 v{ep+4}, v{ep+4}, v{ep+6}
    v_add_f32 v{ep+5}, v{ep+5}, v{ep+7}
    v_add_f32 v{ep}, v{ep}, v{ep+4}
    v_add_f32 v{ep+1}, v{ep+1}, v{ep+5}""")
    cin = ep + 2
    cmad(k, cin, cin + 1, S["fs"], S["fs"] + 1, ep, ep + 1, S["pre"], S["pre"] + 1)
    pk = [va.get(4), va.get(4)]
    ob = [va.get(4) for _ in range(4)]
    cur = (cin, cin + 1)
    for r in range(16):
        hr, hi_ = S["accr"] + r, S["acci"] + r
        cmad(k, hr, hi_, S["lr"], S["li"], cur[0], cur[1], hr, hi_)
        cur = (hr, hi_)
        if r & 1:
            j = (r >> 1) & 3
            k(f"""v_cvt_pk_bf16_f32 v{pk[0]+j}, v{hr-1}, v{hr}
            v_cvt_pk_bf16_f32 v{pk[1]+j}, -v{hi_-1}, -v{hi_}""")
        if r & 7 == 7:
            rho = r >> 3
            k(f"""ds_write_b128 v{wr}, {vr(pk[0],4)}
            ds_write_b128 v{wr}, {vr(pk[1],4)} offset:1024""")
            for kk in range(2):
                for uu in range(2):
                    k(f"ds_read_b64_tr_b16 {vr(ob[2*rho+kk]+2*uu,2)}, v{rd} offset:{512*kk+128*uu}")
        if r == 11 or r == 15:
            rho = (r >> 2) & 1
            for kk in range(2):
                k(f"buffer_store_dwordx4 {vr(ob[2*rho+kk],4)}, v{vho}, s[{sWS}:{sWS+3}], s{sHB} offen offset:{2048*kk+128*rho} sc1",
                  tag="hst")
        if r in hooks:
            hooks[r]()
    for r in (wr, rd, vho, t):
        va.put(r)
    for f in pk + ob:
        va.put(f, 4)
    va.put(ep, 8)
    va.put(S["accr"], 16); va.put(S["acci"], 16)
    for n_ in ("lr", "li", "i32", "hf"):
        va.put(S[n_])
    va.put(S["fs"], 2); va.put(S["pre"], 2)


def tr32_lane(c, dst, tile_sgpr):
    k, va = c.k, c.va
    t, u, h = va.get(), va.get(), va.get()
    k(f"""v_lshrrev_b32 v{h}, 5, v1
    v_bfe_u32 v{t}, v1, 2, 2
    v_lshl_add_u32 v{u}, v{h}, 2, v{t}
    v_lshlrev_b32 v{dst}, 7, v{u}
    v_lshrrev_b32 v{t}, 1, v{t}
    v_lshlrev_b32 v{t}, 2, v{t}
    v_lshl_add_u32 v{t}, v{h}, 1, v{t}          ; swz
    v_bfe_u32 v{u}, v1, 4, 1
    v_bfe_u32 v{h}, v1, 1, 1
    v_lshl_add_u32 v{u}, v{u}, 1, v{h}""")
    if tile_sgpr is not None:
        k(f"s_lshl_b32 s{sT}, s{tile_sgpr}, 2\nv_add_u32 v{u}, s{sT}, v{u}")
    k(f"""v_xor_b32 v{u}, v{u}, v{t}
    v_lshl_add_u32 v{dst}, v{u}, 4, v{dst}
    v_and_b32 v{u}, 1, v1
    v_lshl_add_u32 v{dst}, v{u}, 3, v{dst}""")
    for r in (t, u, h):
        va.put(r)


def g46_scalars(c):
    c.k(f"""s_lshr_b32 s{sT}, s{sT0}, 5
    s_lshl_b32 s{sT+1}, s{sRH}, 1
    s_add_u32 s{sT+1}, s{sT+1}, s{sKH}          ; tb'
    s_add_u32 s{sT}, s{sT}, s{sT+1}             ; t32
    s_lshl_b32 s{sT+2}, s{sT}, 16
    s_lshl_b32 s{sT+3}, s{sTQ}, 11
    s_add_u32 s{sT+2}, s{sT+2}, s{sT+3}
    s_add_u32 s{sHB}, s{sT+2}, {WS_H}
    s_lshl_b32 s{sT+1}, s{sT+1}, 1
    s_lshr_b32 s{sT+3}, s{sW}, 2
    s_add_u32 s{sT+1}, s{sT+1}, s{sT+3}
    s_lshl_b32 s{sT+3}, s{sT+1}, 5
    s_add_u32 s{sT+3}, s{sT+3}, s{sFL}
    s_add_u32 s{sA}, s{sT+3}, 2048
    s_lshl_b32 s{sT+3}, s{sT+1}, 6
    s_add_u32 s{sT+3}, s{sT+3}, s{sFL}
    s_add_u32 s{sB}, s{sT+3}, 3072""")


def h_load(c, g, dst, n):
    r, b = n >> 1, n & 1
    c.k(f"""s_add_u32 s{sT+7}, s{sHB}, {r*8192}
    buffer_load_dwordx4 {vr(dst,4)}, v{g.vL16}, s[{sWS}:{sWS+3}], s{sT+7} offen offset:{b*1024} sc1""")


def f1_issue(c, g):
    c.k(f"""s_lshl_b32 s{sT}, s{sTQ}, 7
    s_add_u32 s{sT}, s{sT}, s{sFL}
    s_add_u32 s{sA}, s{sT}, 1024""")
    g.p1 = c.poll_issue(g, sA, 32)


def g3(c, g, sc, pre_poll, f2flag):
    k, va, o = c.k, c.va, c.opts
    stop = o.get("stop", 99)
    xf = va.get(64)
    ps = va.get(8)
    a3 = [[va.get() for j in range(4)] for a in range(2)]
    vps = va.get()
    tr32_lane(c, a3[0][0], sKH)
    fx = lambda x: ((x >> 1) << 12) | ((x & 1) << 10)
    k(f"""s_lshr_b32 s{sT}, s{sTQ}, 1
    s_lshl_b32 s{sT}, s{sT}, 12
    s_and_b32 s{sT+1}, s{sTQ}, 1
    s_lshl_b32 s{sT+1}, s{sT+1}, 10
    s_or_b32 s{sT}, s{sT}, s{sT+1}
    s_mov_b32 s{sB}, {U(10)}
    s_cmp_eq_u32 s{sKH}, 0
    s_cselect_b32 s{sT+1}, {U(14)}, {U(0)}
    s_cselect_b32 s{sB}, {(U(6) - U(14)) & 0xffffffff}, s{sB}
    s_add_u32 s{sT}, s{sT}, s{sT+1}
    v_add_u32 v{a3[0][0]}, s{sT}, v{a3[0][0]}
    v_xor_b32 v{a3[1][0]}, 64, v{a3[0][0]}
    v_and_b32 v{vps}, 31, v1
    v_lshrrev_b32 v{ps}, 5, v1
    v_lshlrev_b32 v{ps}, 10, v{ps}
    v_lshl_add_u32 v{vps}, v{vps}, 3, v{ps}
    s_lshr_b32 s{sT}, s{sT0}, 5
    s_add_u32 s{sT}, s{sT}, s{sTQ}              ; t32
    s_mul_i32 s{sUB}, s{sT}, {112*1024}
    s_lshl_b32 s{sT+1}, s{sJ3B}, 5
    s_add_u32 s{sUB}, s{sUB}, s{sT+1}
    s_lshl_b32 s{sT+1}, s{sKH}, 11
    s_add_u32 s{sUB}, s{sUB}, s{sT+1}
    s_add_u32 s{sUB}, s{sUB}, {WS_U}
    s_lshl_b32 s{sT}, s{sT}, 1
    s_add_u32 s{sT}, s{sT}, s{sKH}
    s_lshl_b32 s{sT+1}, s{sT}, 11
    s_add_u32 s{sT+4}, s{sT+1}, {WS_PS}
    s_lshl_b32 s{sT}, s{sT}, 14
    s_add_u32 s{sD}, s{sT}, {WS_X1}""")
    for a in range(2):
        for j in range(1, 4):
            k(f"v_xor_b32 v{a3[a][j]}, {fx(j)}, v{a3[a][0]}")
    late_srds(c)
    s4 = sel_make(c)
    t, u = va.get(), va.get()
    vxw, vsx, vcp = va.get(), va.get(), va.get()
    k(f"""v_lshrrev_b32 v{t}, 4, v1
    v_and_b32 v{u}, 1, v1
    v_lshl_add_u32 v{t}, v{u}, 2, v{t}
    s_lshl_b32 s{sT}, s{sW}, 2
    s_lshl_b32 s{sT+1}, s{sKH}, 10
    s_add_u32 s{sT}, s{sT}, s{sT+1}
    s_add_u32 s{sT}, s{sT}, {CSP}
    v_lshl_add_u32 v{vcp}, v{t}, 7, s{sT}
    v_and_b32 v{u}, 31, v1
    s_lshl_b32 s{sT}, s{sW}, 8
    s_add_u32 s{sT}, s{sT}, {ST_A}
    v_lshl_add_u32 v{vsx}, v{u}, 3, s{sT}""")
    sel(k, sT, sTQ, [U(x) for x in XR])
    k(f"""s_lshl_b32 s{sT+1}, s{sKH}, 12
    s_add_u32 s{sT}, s{sT}, s{sT+1}
    v_add_u32 v{vxw}, s{sT}, v{g.vL16}""")
    va.put(t); va.put(u)
    if pre_poll:
        pre_poll()
    if f2flag:
        f2flag()
    c.stamp(9)
    c.poll_check(g, g.p1)
    c.stamp(10)

    def x_load(i):
        c.k(f"""s_xor_b32 s{sT+7}, s{sTQ}, {i}
        s_lshl_b32 s{sT+7}, s{sT+7}, 10
        s_add_u32 s{sT+7}, s{sT+7}, s{sD}
        buffer_load_dwordx4 {vr(xf+4*i,4)}, v{g.vL16}, s[{sWS}:{sWS+3}], s{sT+7} offen sc1""")
    D = o.get("d3", 5)
    for i in range(D):
        x_load(i)
    for i in range(4):
        k(f"buffer_load_dwordx2 {vr(ps+2*i,2)}, v{vps}, s[{sWS}:{sWS+3}], s{sT+4} offen offset:{256*i} sc1")
    va.put(vps)
    k.waitvm("w3_1_7")
    k.waitvm("w3_0_7")
    bar(c)
    c.stamp(11)
    acc = [[va.get(16), va.get(16)] for ph in range(2)]
    cs = [va.get(4), va.get(4)]
    NB = 3
    fa = [va.get(8) for _ in range(NB)]
    pipe = Pipe()

    def reads(i):
        for a in (1, 0):
            for uu in range(2):
                c.k(f"ds_read_b64_tr_b16 {vr(fa[i%NB]+4*a+2*uu,2)}, v{a3[a][i&3]} offset:{(i>>2)*8192 + 2048*uu}")

    def mfs(ph, i):
        for a in (1, 0):
            mf32(c.k, acc[ph][a], fa[i % NB] + 4 * a, xf + 4 * i, i == 0)
        if (i & 3) == 0:
            for a in range(2):
                mf16(c.k, cs[a], fa[i % NB] + 4 * a, s4, i == 0)

    def cs_write():
        k = c.k
        t = va.get()
        k(f"""s_lshl_b32 s{sT}, s{sKH}, 11
        s_sub_u32 s{sT}, 1024, s{sT}
        v_add_u32 v{t}, s{sT}, v{vcp}""")
        exec_sel(k)
        for a, r_ in ((0, vcp), (1, t)):
            for r in (0, 2):
                k(f"ds_write2_b32 v{r_}, v{cs[a]+r}, v{cs[a]+r+1} offset0:{8*r} offset1:{8*r+8}")
        k("s_mov_b64 exec, -1")
        va.put(t)

    for i in range(16):
        reads(i)
        if i + D < 16:
            x_load(i + D)
        pipe.push(lambda i=i: mfs(0, i))
        pipe.drain(2)
    pipe.drain()
    k(f"""v_add_f32 v{ps}, v{ps}, v{ps+2}
    v_add_f32 v{ps+1}, v{ps+1}, v{ps+3}
    v_add_f32 v{ps+4}, v{ps+4}, v{ps+6}
    v_add_f32 v{ps+5}, v{ps+5}, v{ps+7}
    v_add_f32 v{ps}, v{ps}, v{ps+4}
    v_add_f32 v{ps+1}, v{ps+1}, v{ps+5}
    v_mov_b32 v{ps+2}, v{ps}
    v_mov_b32 v{ps+3}, v{ps+1}
    v_permlane32_swap_b32 v{ps}, v{ps+2}
    v_permlane32_swap_b32 v{ps+1}, v{ps+3}
    v_add_f32 v{ps}, v{ps}, v{ps+2}
    v_add_f32 v{ps+1}, v{ps+1}, v{ps+3}
    ds_write_b64 v{vsx}, {vr(ps,2)}
    v_xor_b32 v{vsx}, 256, v{vsx}""")
    for a in range(2):
        for j in range(4):
            k(f"v_add_u32 v{a3[a][j]}, s{sB}, v{a3[a][j]}")
    k(f"""s_lshl_b32 s{sT}, s{sW}, 6
    s_lshr_b32 s{sT+1}, s{sJ3B}, 6
    s_add_u32 s{sT}, s{sT}, s{sT+1}
    s_add_u32 s{sT}, s{sT}, s{sFL}
    s_add_u32 s{sD}, s{sT}, 3072""")
    g46_scalars(c)
    if stop >= 5:
        g.p2 = c.poll_issue(g, sA, 8)
    cs_write()
    k(f"v_add_u32 v{vcp}, 2048, v{vcp}")
    c.stamp(12)
    bar(c)
    for i in range(4):
        k(f"ds_write_b128 v{vxw}, {vr(acc[0][1]+4*i,4)} offset:{1024*i}")
    sc.release([14, 15, 16, 0, 1, 2, 3])
    todoA = sc.next() if stop >= 5 else []
    ab = va.get(2)
    vcs = va.get()

    def epilogue(ph):
        k = c.k
        A, X = acc[ph][0], acc[ph][1]
        xr = va.get()
        k(f"v_xor_b32 v{xr}, 4096, v{vxw}")
        for i in range(4):
            k(f"ds_read_b128 {vr(X+4*i,4)}, v{xr} offset:{1024*i}")
        x = va.get(4)
        p8 = va.get(8)
        tt = xr
        if ph == 0:
            k(f"ds_read_b64 {vr(ps+2,2)}, v{vsx}")
        k(f"""v_lshlrev_b32 v{tt}, 5, v1
        v_add_u32 v{tt}, {CSP + 2048*ph}, v{tt}
        ds_read_b128 {vr(p8,4)}, v{tt}
        ds_read_b128 {vr(p8+4,4)}, v{tt} offset:16
        v_add_u32 v{tt}, {CS3 + 256*ph}, v{g.vL4}
        v_add_f32 v{p8}, v{p8}, v{p8+1}
        v_add_f32 v{p8+2}, v{p8+2}, v{p8+3}
        v_add_f32 v{p8+4}, v{p8+4}, v{p8+5}
        v_add_f32 v{p8+6}, v{p8+6}, v{p8+7}
        v_add_f32 v{p8}, v{p8}, v{p8+2}
        v_add_f32 v{p8+4}, v{p8+4}, v{p8+6}
        v_add_f32 v{p8}, v{p8}, v{p8+4}
        ds_write_b32 v{tt}, v{p8}""")
        if ph == 0:
            k(f"""v_lshrrev_b32 v{vcs}, 5, v1
            s_lshl_b32 s{sT}, s{sKH}, 7
            s_add_u32 s{sT}, s{sT}, {CS3}
            v_lshl_add_u32 v{vcs}, v{vcs}, 4, s{sT}
            v_add_f32 v{ps}, v{ps}, v{ps+2}
            v_add_f32 v{ps+1}, v{ps+1}, v{ps+3}
            v_mul_f32 v{x}, {fhex(1/512)}, v{ps}
            v_mul_f32 v{x+1}, v{x}, v{x}
            v_fma_f32 v{x+1}, v{ps+1}, s{sI512}, -v{x+1}
            v_max_f32 v{x+1}, 0, v{x+1}""")
            c.bf16r(x, x)
            c.bf16r(x + 1, x + 1)
            k(f"v_add_f32 v{x+1}, {fhex(EPS)}, v{x+1}")
            c.bf16r(x + 1, x + 1)
            k(f"v_sqrt_f32 v{x+1}, v{x+1}")
            c.bf16r(x + 1, x + 1)
            k(f"""v_rcp_f32 v{ab}, v{x+1}
            v_mul_f32 v{ab+1}, v{x}, v{ab}""")
        for r in range(16):
            k(f"v_add_f32 v{A+r}, v{A+r}, v{X+r}")
        for i in range(4):
            k(f"ds_read_b128 {vr(X+4*i,4)}, v{vcs} offset:{256*ph+32*i}")
        for r in range(16):
            k(f"""v_mul_f32 v{X+r}, v{ab+1}, v{X+r}
            v_fma_f32 v{A+r}, v{ab}, v{A+r}, -v{X+r}""")
        kk = X + 8
        k(f"v_mov_b32 v{kk}, {fhex(-K1)}")
        for e in range(2):
            xs = [A + 8 * e + r for r in range(8)]
            ts = [X + r for r in range(8)]
            for op in ("v_mul_f32 v{t}, v{x}, v{x}", "v_fma_f32 v{t}, v{t}, s%d, v%d" % (sK3, kk), "v_mul_f32 v{t}, v{t}, v{x}",
                       "v_exp_f32 v{t}, v{t}", "v_add_f32 v{t}, 1.0, v{t}", "v_rcp_f32 v{t}, v{t}", "v_mul_f32 v{x}, v{x}, v{t}"):
                for x_, t_ in zip(xs, ts):
                    k(op.format(t=t_, x=x_))
            P = X + 12 if e == 0 else p8
            for i in range(4):
                k(f"v_cvt_pk_bf16_f32 v{P+i}, v{xs[2*i]}, v{xs[2*i+1]}")
            k(f"s_add_u32 s{sT+4}, s{sUB}, {4096*ph}")
            k(f"buffer_store_dwordx4 {vr(P,4)}, v{g.vL16}, s[{sWS}:{sWS+3}], s{sT+4} offen offset:{1024*e} sc1", tag=f"ust{ph}")
        return [(x, 4), (p8, 8), (xr, 1)]

    held = []
    fill = capture(c, lambda: held.extend(epilogue(0)))

    def pass2():
        k = c.k
        pipe = Pipe()
        for i in range(16):
            reads(i)
            if todoA:
                todoA.pop(0)()
            if i == 1:
                bar(c)
            if i == 2 and stop >= 5:
                c.poll_check(g, g.p2)
            if i == o.get("c3", 9):
                bar(c)

            def mf(i=i):
                mfs(1, i)
                if stop >= 5:
                    h_load(c, g, xf + 4 * i, i)
            pipe.push(mf)
            pipe.drain(2)
        pipe.drain()
    main = capture(c, pass2)
    splice(k, main, fill, o.get("per3", 7), start=0)
    for b, n in held:
        va.put(b, n)
    c.stamp(13)
    for f in fa:
        va.put(f, 8)
    for a in range(2):
        for j in range(4):
            va.put(a3[a][j])
        va.put(acc[0][a], 16)
    for i in range(4):
        k(f"ds_write_b128 v{vxw}, {vr(acc[1][1]+4*i,4)} offset:{1024*i}")
    cs_write()
    va.put(cs[0], 4); va.put(cs[1], 4); va.put(s4, 4); va.put(vcp); va.put(vsx); va.put(ps, 8)
    k.waitvm("ust0")
    c.flag(g, sD)
    k(f"s_add_u32 s{sD}, s{sD}, 512")
    held = []
    fill = capture(c, lambda: held.extend(epilogue(1)))
    held += [(ab, 2), (vcs, 1), (vxw, 1), (acc[1][0], 16), (acc[1][1], 16)]

    def f3b():
        c.k.waitvm("ust1")
        c.flag(g, sD)
    return xf, f3b, fill, held


def g64(c, g, sc, xf, f3b, fill, held):
    k, va, o = c.k, c.va, c.opts
    aC = [va.get(), va.get()]
    aW = [va.get(), va.get()]
    t, u = va.get(), va.get()
    k(f"""v_and_b32 v{t}, 31, v1
    v_bfe_u32 v{u}, v1, 1, 3
    s_lshl_b32 s{sT}, s{sTQ}, 1
    v_xor_b32 v{u}, s{sT}, v{u}
    v_lshlrev_b32 v{u}, 4, v{u}
    v_lshl_add_u32 v{aC[0]}, v{t}, 7, v{u}
    v_lshrrev_b32 v{u}, 5, v1
    v_lshl_add_u32 v{aC[0]}, v{u}, 13, v{aC[0]}
    v_xor_b32 v{aC[1]}, 16, v{aC[0]}""")
    tr32_lane(c, aW[0], None)
    k(f"""s_lshl_b32 s{sT}, s{sTQ}, 11
    v_add_u32 v{aW[0]}, s{sT}, v{aW[0]}
    v_xor_b32 v{aW[1]}, 64, v{aW[0]}
    s_lshr_b32 s{sT}, s{sT0}, 5
    s_lshl_b32 s{sT+1}, s{sRH}, 1
    s_add_u32 s{sT+1}, s{sT+1}, s{sKH}
    s_add_u32 s{sT}, s{sT}, s{sT+1}             ; t32
    s_mul_i32 s{sHB}, s{sT}, {112*1024}
    s_add_u32 s{sHB}, s{sHB}, {WS_U}
    s_lshl_b32 s{sT+1}, s{sTQ}, 10
    s_add_u32 s{sHB}, s{sHB}, s{sT+1}""")
    va.put(t); va.put(u)
    for a in aC + aW:
        c.pre_hi(a)
    acc6 = [va.get(16), va.get(16)]
    acc4 = []
    NB = 3
    fa = [va.get(8) for _ in range(NB)]
    pool = [va.get(4) for _ in range(o.get("pool", 4))]
    ufr = {}
    steps = [[("C", r)] for r in range(8)] + [[("W", 2 * i), ("W", 2 * i + 1)] for i in range(14)]
    pipe = Pipe()
    rel = {0: list(range(6, 14)), 1: list(XR)} if fill is not None else {0: [4, 5, 18]}
    S = dict(prev=[], nblk=0, ul=0, dump6=None, red6=None)
    fin = {}
    S0 = fill is None
    us = [o.get("us0", 1), o.get("us1", 9)] if not S0 else [o.get("zs0", 7), o.get("zs1", 9)]
    P3I = {max(us[0] - 1, 0): 0, us[1] - 1: 1}

    def u_load(n):
        ph, j3 = n // 14, n % 14
        r = pool.pop(0)
        ufr[n] = r
        c.k(f"""s_add_u32 s{sT+7}, s{sHB}, {(8*j3+4*ph)*1024}
        buffer_load_dwordx4 {vr(r,4)}, v{g.vL16}, s[{sWS}:{sWS+3}], s{sT+7} offen sc1""")

    def step(n):
        k = c.k
        st = steps[n]
        c.stamp(24 + n)
        for it in st:
            k.waitvm(f"{it[0]}{it[1]}")
        bar(c)
        sc.release(S["prev"] + rel.get(n, []))
        S["prev"] = [u_ for it in st for u_ in sc.units(it)]
        todo = sc.next()
        if n == o.get("f3bs", 7) and f3b:
            f3b()
        if n in P3I:
            ph = P3I[n]
            k(f"s_add_u32 s{sA}, s{sB}, {512*ph}")
            g.p3 = c.poll_issue(g, sA, 14)
        for ph in range(2):
            if n == us[ph]:
                c.poll_check(g, g.p3)
        nu = o.get("uper", 3)
        for b in range(2):
            buf = fa[S["nblk"] % NB]
            S["nblk"] += 1
            if n < 8:
                for a in range(2):
                    c.dsr("ds_read_b128", buf + 4 * a, 4, aC[b], U(sc.unit[st[0]]) + 4096 * a)
                fr_ = xf + 4 * (2 * n + b)
                A = acc6
                z = n == 0 and b == 0
            else:
                for a in range(2):
                    for uu in range(2):
                        c.dsr("ds_read_b64_tr_b16", buf + 4 * a + 2 * uu, 2, aW[a], U(sc.unit[st[b]]) + 1024 * uu)
                fr_ = ufr[st[b][1]]
                A = acc4
                z = n == 8 and b == 0
            for _ in range((len(todo) + 1 - b) // (2 - b) if b == 0 else len(todo)):
                todo.pop(0)()

            def mf(buf=buf, fr_=fr_, A=A, z=z):
                for a in range(2):
                    mf32(c.k, A[a], buf + 4 * a, fr_, z)
                pool.append(fr_)
            pipe.push(mf)
            pipe.drain(1)
            cnt = (nu + 1) // 2 if b == 0 else nu // 2
            while cnt > 0 and S["ul"] < 28 and pool and n >= us[S["ul"] // 14]:
                u_load(S["ul"])
                S["ul"] += 1
                cnt -= 1
        if n >= 7:
            assert S["ul"] >= min(28, 2 * (n - 7) + 2 * (1 if S0 else o.get("umin", 3))), (n, S["ul"])
        if n == o.get("fls", 14):
            final_loads(c, g, fin)
        if S["dump6"] is not None and S["red6"] is None and n > S["dump6"][1]:
            S["red6"] = reduce_read(c, g, fin, S["dump6"][0])
            final_s(c, g, fin, S["red6"])
            fin["rel"] = n
        if S["dump6"] is None and n >= 9 and "x" in fin and all(it in sc.unit for it in sc.items) and len(sc.free) >= 8:
            us_ = sorted(sc.free)[:8]
            sc.free -= set(us_)
            reduce_write(c, g, fin, acc6, us_)
            S["dump6"] = (us_, n)
    if fill is not None:
        step(0) if o.get("st0") else None
        main = capture(c, lambda: [step(n) for n in range(1 if o.get("st0") else 0, 8)])
        splice(k, main, fill, o.get("per4", 12))
        for b, n in held:
            va.put(b, n)
    else:
        for n in range(8):
            step(n)
    acc4 += [va.get(16), va.get(16)]
    for n in range(8, 22):
        step(n)
    pipe.drain()
    c.stamp(46)
    assert S["red6"] is not None
    if fin["rel"] < len(steps) - 1:
        sc.release(S["dump6"][0])
    us_ = sorted(sc.free)[:8]
    assert len(us_) == 8
    reduce_write(c, g, fin, acc4, us_)
    bar(c)
    c.stamp(47)
    z = reduce_read(c, g, fin, us_)
    final_out(c, g, fin, S["red6"], z)


def final_loads(c, g, fin):
    k, va = c.k, c.va
    x, x1, dk = va.get(4), va.get(4), va.get(4)
    ma = va.get(2)
    t, u, cq = va.get(), va.get(), va.get()
    vo = va.get()
    srd(k, sMI, P_DSK, 1024)
    k(f"""v_lshrrev_b32 v{t}, 3, v1                   ; row8
    v_and_b32 v{cq}, 7, v1
    v_lshlrev_b32 v{u}, 3, v{cq}
    buffer_load_dwordx2 {vr(dk,2)}, v{u}, s[{sMI}:{sMI+3}], s{sC128} offen
    buffer_load_dwordx2 {vr(dk+2,2)}, v{u}, s[{sMI}:{sMI+3}], s{sC128} offen offset:64
    v_lshl_add_u32 v{vo}, v{t}, 10, v{u}
    s_lshl_b32 s{sT}, s{sRH}, 6
    s_lshl_b32 s{sT+1}, s{sKH}, 5
    s_add_u32 s{sT}, s{sT}, s{sT+1}
    s_lshl_b32 s{sT+1}, s{sTQ}, 3
    s_add_u32 s{sT}, s{sT}, s{sT+1}
    s_add_u32 s{sT+1}, s{sT}, s{sT0}
    s_lshl_b32 s{sT+1}, s{sT+1}, 10
    s_add_u32 s{sUB}, s{sT+1}, s{sC128}
    buffer_load_dwordx2 {vr(x,2)}, v{vo}, s[{sX}:{sX+3}], s{sUB} offen
    buffer_load_dwordx2 {vr(x+2,2)}, v{vo}, s[{sX}:{sX+3}], s{sUB} offen offset:64
    s_lshl_b32 s{sT}, s{sT}, 3
    s_add_u32 s{sT}, s{sT}, {ST_C + 16}
    v_lshl_add_u32 v{u}, v{t}, 3, s{sT}
    ds_read_b64 {vr(ma,2)}, v{u}
    v_lshlrev_b32 v{t}, 4, v{t}
    v_and_b32 v{u}, 1, v{cq}
    v_lshl_add_u32 v{t}, v{u}, 9, v{t}
    v_bfe_u32 v{u}, v{cq}, 1, 1
    v_lshl_add_u32 v{t}, v{u}, 10, v{t}
    v_lshrrev_b32 v{u}, 2, v{cq}
    v_lshl_add_u32 v{t}, v{u}, 3, v{t}
    s_lshr_b32 s{sT}, s{sT0}, 5
    s_lshl_b32 s{sT+1}, s{sRH}, 1
    s_add_u32 s{sT}, s{sT}, s{sT+1}
    s_add_u32 s{sT}, s{sT}, s{sKH}
    s_lshl_b32 s{sT}, s{sT}, 15
    s_lshl_b32 s{sT+1}, s{sC}, 12
    s_add_u32 s{sT}, s{sT}, s{sT+1}
    s_lshl_b32 s{sT+1}, s{sTQ}, 7
    s_add_u32 s{sT}, s{sT}, s{sT+1}
    s_add_u32 s{sT}, s{sT}, {WS_X1}
    buffer_load_dwordx2 {vr(x1,2)}, v{t}, s[{sWS}:{sWS+3}], s{sT} offen sc1
    buffer_load_dwordx2 {vr(x1+2,2)}, v{t}, s[{sWS}:{sWS+3}], s{sT} offen offset:2048 sc1
    v_lshlrev_b32 v{vo}, 1, v{vo}
    s_lshl_b32 s{sUB}, s{sUB}, 1""")
    vw, vr0, vr1 = va.get(), va.get(), va.get()
    k(f"""v_and_b32 v{t}, 7, v1
    v_bfe_u32 v{u}, v1, 1, 1
    v_lshl_add_u32 v{t}, v{u}, 3, v{t}          ; swz(t)
    v_lshrrev_b32 v{u}, 5, v1
    v_xor_b32 v{t}, v{t}, v{u}
    v_lshlrev_b32 v{t}, 4, v{t}
    v_and_b32 v{u}, 31, v1
    v_lshl_add_u32 v{vw}, v{u}, 8, v{t}
    v_lshrrev_b32 v{t}, 3, v1                   ; row8
    v_bfe_u32 v{u}, v1, 4, 1
    v_lshl_add_u32 v{u}, v{u}, 3, v{t}          ; swz(row)
    v_xor_b32 v{u}, v{u}, v{cq}
    v_lshlrev_b32 v{u}, 4, v{u}
    v_lshl_add_u32 v{vr0}, v{t}, 8, v{u}
    s_lshl_b32 s{sT}, s{sTQ}, 11
    v_add_u32 v{vr0}, s{sT}, v{vr0}
    v_xor_b32 v{vr1}, 128, v{vr0}""")
    for r in (t, u, cq):
        va.put(r)
    fin.update(x=x, x1=x1, dk=dk, ma=ma, vo=vo, vw=vw, vr=(vr0, vr1))


def reduce_write(c, g, fin, acc, us):
    k, va = c.k, c.va
    b, t = va.get(), [va.get(), va.get()]
    sel(k, sT, sW, [U(x) for x in us])
    k(f"v_add_u32 v{b}, s{sT}, v{fin['vw']}")
    n = 0
    for a in range(2):
        for i in range(4):
            ad = b
            if a or i:
                ad = t[n & 1]
                k(f"v_xor_b32 v{ad}, {(8*a+2*i)*16}, v{b}")
            k(f"ds_write_b128 v{ad}, {vr(acc[a]+4*i,4)}")
            n += 1
    va.put(b); va.put(t[0]); va.put(t[1])
    fin["accfree"] = acc


def reduce_read(c, g, fin, us):
    k, va = c.k, c.va
    acc = fin["accfree"]
    t = [va.get(), va.get()]
    for kg in range(4):
        k(f"s_mov_b32 s{sT}, {U(us[2*kg+1])}\ns_cmp_eq_u32 s{sKH}, 0\ns_cselect_b32 s{sT}, {U(us[2*kg])}, s{sT}")
        for e in range(2):
            k(f"""v_add_u32 v{t[e]}, s{sT}, v{fin['vr'][e]}
            ds_read_b128 {vr(acc[e]+4*kg,4)}, v{t[e]}""")
    for e in range(2):
        for r in range(4):
            k(f"""v_add_f32 v{acc[e]+r}, v{acc[e]+r}, v{acc[e]+4+r}
            v_add_f32 v{acc[e]+8+r}, v{acc[e]+8+r}, v{acc[e]+12+r}""")
        for r in range(4):
            k(f"v_add_f32 v{acc[e]+r}, v{acc[e]+r}, v{acc[e]+8+r}")
    va.put(t[0]); va.put(t[1])
    return acc


def final_s(c, g, fin, s_):
    k, va = c.k, c.va
    xn = s_[0] + 4
    norm_pairs(c, xn, fin["x"], 4, fin["ma"])
    lo, hi, d0, d1 = s_[0] + 8, s_[0] + 9, s_[0] + 10, s_[0] + 11
    for i in range(4):
        s0 = s_[i >> 1] + 2 * (i & 1)
        k(f"""v_lshlrev_b32 v{lo}, 16, v{xn+i}
        v_and_b32 v{hi}, 0xffff0000, v{xn+i}
        v_lshlrev_b32 v{d0}, 16, v{fin['dk']+i}
        v_and_b32 v{d1}, 0xffff0000, v{fin['dk']+i}
        v_mul_f32 v{lo}, v{lo}, v{d0}
        v_mul_f32 v{hi}, v{hi}, v{d1}
        v_cvt_pk_bf16_f32 v{d0}, v{lo}, v{hi}
        v_lshlrev_b32 v{lo}, 16, v{d0}
        v_and_b32 v{hi}, 0xffff0000, v{d0}
        v_add_f32 v{s0}, v{s0}, v{lo}
        v_add_f32 v{s0+1}, v{s0+1}, v{hi}""")
    xs = [s_[i >> 2] + 4 + (i & 3) for i in range(8)]
    x1s = [s_[i >> 2] + 8 + (i & 3) for i in range(8)]
    for i in range(4):
        k(f"""v_lshlrev_b32 v{xs[2*i]}, 16, v{fin['x']+i}
        v_and_b32 v{xs[2*i+1]}, 0xffff0000, v{fin['x']+i}
        v_lshlrev_b32 v{x1s[2*i]}, 16, v{fin['x1']+i}
        v_and_b32 v{x1s[2*i+1]}, 0xffff0000, v{fin['x1']+i}""")
    fin.update(xs=xs, x1s=x1s)
    srd(k, sMI, P_OUT, 2048 * 2048)


def final_out(c, g, fin, s_, z_):
    k = c.k
    for e in range(2):
        z = [z_[e] + r for r in range(4)]
        ex = [z_[e] + 4 + r for r in range(4)]
        for r in range(4):
            k(f"v_add_f32 v{z[r]}, v{z[r]}, v{fin['x1s'][4*e+r]}")
        for r in range(4):
            k(f"v_mul_f32 v{ex[r]}, {fhex(-LOG2E)}, v{z[r]}")
        for r in range(4):
            k(f"v_exp_f32 v{ex[r]}, v{ex[r]}")
        for r in range(4):
            k(f"v_mul_f32 v{z[r]}, v{z[r]}, v{s_[e]+r}")
        for r in range(4):
            k(f"v_add_f32 v{ex[r]}, 1.0, v{ex[r]}")
        for r in range(4):
            k(f"v_rcp_f32 v{ex[r]}, v{ex[r]}")
        for r in range(4):
            k(f"v_fma_f32 v{ex[r]}, v{z[r]}, v{ex[r]}, v{fin['xs'][4*e+r]}")
        k(f"buffer_store_dwordx4 {vr(ex[0],4)}, v{fin['vo']}, s[{sMI}:{sMI+3}], s{sUB} offen offset:{128*e}")


def path(c, g, kind):
    k, va, o = c.k, c.va, c.opts
    stop = o.get("stop", 99)
    sc = Sched(c, g)
    f1 = f2 = None
    if kind == "M":
        f1 = m_path(c, g)
        if stop < 2:
            return
    else:
        p1_S(c, g, kind == "S3", sc)
        if stop < 3:
            return
        e_loads(c, g)
        scan2a(c, g)
        bar(c)
        c.stamp(8)
        hooks = {}
        if kind == "S3" and stop >= 4:
            hooks[o.get("f1i", 9)] = lambda: f1_issue(c, g)
        scan2b(c, g, hooks)
        k(f"s_mov_b32 s{sHB}, s{sUB}")

        def f2():
            c.k.waitvm("hst")
            c.flag(g, sHB)
    if stop < 4:
        if f1:
            f1()
        if f2:
            f2()
        return
    if kind != "S0":
        xf, f3b, fill, held = g3(c, g, sc, f1, f2)
    else:
        f2()
        f3b = fill = held = None
        if stop < 5:
            return
        g46_scalars(c)
        g.p2 = c.poll_issue(g, sA, 8)
        xf = va.get(64)
        c.poll_check(g, g.p2)
        for i in range(16):
            h_load(c, g, xf + 4 * i, i)
    if stop < 5:
        bar(c)
        k.items.extend(fill)
        f3b()
        return
    g64(c, g, sc, xf, f3b, fill, held)
    if kind == "S3":
        lab = k.label("L_nn")
        k(f"""s_cmp_lg_u32 s2, 143
        s_cbranch_scc1 {lab}
        s_cmp_lg_u32 s{sW}, 0
        s_cbranch_scc1 {lab}""")
        k.region_begin()
        k(f"""s_mov_b32 s{sT}, {WS_NONCE}
        s_mov_b64 exec, 1
        buffer_store_dword v{g.vNON}, off, s[{sWS}:{sWS+3}], s{sT} sc1""")
        k.region_end()
        k(f"{lab}:")
    c.stamp(48)
```

```python
import sys, struct
sys.path.insert(0, "dev"); sys.path.insert(0, "lock1")
from ag import Prog, Ins

NAME = "recurrent_scan__ssm_conv_s5__mixer_s_mlp__prompt"
WS_HP = 0x000000
WS_X1 = 0x200000
WS_H = 0x400000
WS_U = 0x800000
WS_E = 0x1000000
WS_PS = 0x1040000
WS_RS = 0x10C0000
WS_FL = 0x1100000
WS_NONCE = 0x1200000
WS_STAMP = 0x1300000
LDS_BYTES = 163840
NU = 19
MISC = 155648
ST_A = MISC
ST_B = MISC + 1056
ST_C = MISC + 2112
CSB = MISC + 3168
CSP = CSB
MODE = MISC + 7264
CS3 = MISC + 7296
K1 = 2.0 * 0.7978845608028654 * 1.4426950408889634
K3 = K1 * 0.044715
EPS = 1e-5
SPIN = 200000
ROT = 15
LOG2E = 1.4426950408889634

P_X, P_LRE, P_LIM, P_BRE, P_BIM, P_CRE, P_CIM, P_LDT = 4, 6, 8, 10, 12, 14, 16, 18
P_DSK, P_W1, P_W2, P_W3, P_W4, P_OUT, P_DBG, P_WS = 20, 24, 26, 28, 30, 32, 34, 36
sX, sWS, sWA, sWB, sWC, sWD, sMI = 40, 44, 48, 52, 56, 60, 64
(sG, sJ, sW, sT0, sNON, sRH, sC, sW1K, sI512, sK3, sONE, sC128, sMODE, sFL, sXCC, sTQ, sKH,
 sJ3B, sCrow, sHB, sUB, sA, sB, sD) = range(68, 92)
sT = 92
sR128, sKHP, sJ3Bp, sJ3Bm, sC128p, sC128m = 22, 23, 34, 35, 0, 1
sRC, sRW, sRU = 22, 0, 1


def U(i):
    return i * 8192


def fhex(x):
    return "0x%08x" % struct.unpack("<I", struct.pack("<f", x))[0]


def srd(k, s, p, nbytes):
    k(f"""s_mov_b32 s{s}, s{p}
    s_mov_b32 s{s+1}, s{p+1}
    s_mov_b32 s{s+2}, {nbytes}
    s_mov_b32 s{s+3}, 0x00020000""")


class VA:
    def __init__(self, lo=2, hi=256):
        self.free = list(range(lo, hi))
        self.peak = 0
        self.n0 = hi - lo
    def clone(self):
        v = VA(0, 0)
        v.free = list(self.free)
        v.n0 = self.n0
        return v
    def get(self, n=1, align=1):
        if n > 1 and align == 1:
            align = 4 if n >= 4 else 2
        fs = set(self.free)
        cand = self.free if n > 1 else self.free[::-1]
        for b in cand:
            if b % align == 0 and all((b + i) in fs for i in range(n)):
                for i in range(n):
                    self.free.remove(b + i)
                self.peak = max(self.peak, self.n0 - len(self.free))
                return b
        raise RuntimeError(f"out of VGPRs (n={n}, free={len(self.free)})")
    def put(self, b, n=1):
        for i in range(n):
            assert (b + i) not in self.free, b + i
            self.free.append(b + i)
        self.free.sort()


def vr(b, n):
    return f"v[{b}:{b+n-1}]" if n > 1 else f"v{b}"


class Pipe:
    def __init__(self):
        self.q = []
    def push(self, fn):
        self.q.append(fn)
    def drain(self, keep=0):
        while len(self.q) > keep:
            self.q.pop(0)()


class Ctx:
    def __init__(self, role, opts, va):
        self.k = Prog(role)
        self.role = role
        self.va = va
        self.hi = {}
        self.opts = opts
        self.nd = 0

    def ds(self, base, absoff):
        h = absoff >> 16
        imm = absoff & 0xFFFF
        if h == 0:
            r = base
        else:
            if (base, h) not in self.hi:
                r = self.va.get()
                self.k(f"v_add_u32 v{r}, {h << 16}, v{base}")
                self.hi[(base, h)] = r
            r = self.hi[(base, h)]
        return f"v{r}", (f" offset:{imm}" if imm else "")

    def pre_hi(self, base, hs=(1, 2)):
        for h in hs:
            self.ds(base, h << 16)

    def free_base(self, base):
        for key in [x for x in self.hi if x[0] == base]:
            self.va.put(self.hi.pop(key))
        self.va.put(base)

    def dsr(self, mn, dst, n, base, absoff, tag=None):
        r, o = self.ds(base, absoff)
        return self.k(f"{mn} {vr(dst, n)}, {r}{o}", tag=tag)

    def dsw(self, mn, base, absoff, src, n):
        r, o = self.ds(base, absoff)
        return self.k(f"{mn} {r}, {vr(src, n)}{o}")

    def dma(self, voff, srd_, soff, lds, inst=0, tag=None, sadd=None, pre=None):
        k = self.k
        if pre is not None:
            assert inst == 0 and sadd is None
            k(pre)
            soff = f"s{sT+8}"
        if lds < inst:
            assert sadd is None
            if soff == 0:
                k(f"s_mov_b32 s{sT+8}, {inst}")
            else:
                k(f"s_add_u32 s{sT+8}, {soff}, {inst}")
            soff = f"s{sT+8}"
            inst = 0
        imm = lds - inst
        k(f"s_add_u32 m0, s{sW1K}, {imm}")
        if sadd is not None:
            if sadd[1] == 0:
                soff = f"s{sadd[0]}"
            else:
                k(f"s_add_u32 s{sT+8}, s{sadd[0]}, {sadd[1]}")
                soff = f"s{sT+8}"
        o = f" offset:{inst}" if inst else ""
        k(f"buffer_load_dwordx4 v{voff}, s[{srd_}:{srd_+3}], {soff} offen{o} lds", tag=tag)

    def bf16r(self, d, s):
        self.k(f"v_cvt_pk_bf16_f32 v{d}, v{s}, v{s}\nv_and_b32 v{d}, 0xffff0000, v{d}")

    def store(self, text, dual, tag=None):
        if dual:
            ins = self.k(text, tag=tag)
            self.nd += 1
            ins.dual = (sMODE, f"L_du_{self.role}_{self.nd}")
        else:
            self.k(text + " sc1", tag=tag)

    def flag(self, g, soff):
        self.k("s_mov_b64 exec, 1")
        self.store(f"buffer_store_dword v{g.vNON}, off, s[{sWS}:{sWS+3}], s{soff}", not self.opts.get("nofast"))
        self.k("s_mov_b64 exec, -1")

    def poll_issue(self, g, soff, n):
        t = self.va.get()
        self.k(f"""s_mov_b64 exec, {hex((1 << n) - 1)}
        buffer_load_dword v{t}, v{g.vL4}, s[{sWS}:{sWS+3}], s{soff} offen sc1
        s_mov_b64 exec, -1""")
        return (t, soff, n)

    def poll_check(self, g, h):
        t, soff, n = h
        k = self.k
        loop, done = k.label("L_pl"), k.label("L_pd")
        k(f"""v_mov_b32 v{t}, v{t}
        s_mov_b32 s{sT+9}, {SPIN}
        s_mov_b64 exec, {hex((1 << n) - 1)}
        {loop}:
        v_cmp_ne_u32 vcc, s{sNON}, v{t}
        s_cbranch_vccz {done}""")
        k.region_begin()
        k(f"""buffer_load_dword v{t}, v{g.vL4}, s[{sWS}:{sWS+3}], s{soff} offen sc1
        s_waitcnt vmcnt(0)
        s_sub_u32 s{sT+9}, s{sT+9}, 1
        s_cmp_lg_u32 s{sT+9}, 0
        s_cbranch_scc1 {loop}""")
        k.region_end()
        k(f"""{done}:
        s_mov_b64 exec, -1""")
        self.va.put(t)

    def stamp(self, idx):
        if not self.opts.get("stamps"):
            return
        self.k(f"""s_memtime s[38:39]
        s_waitcnt lgkmcnt(0)
        v_writelane_b32 v255, s38, {idx}""")

    def stamp_flush(self):
        if not self.opts.get("stamps"):
            return
        t = self.va.get()
        self.k(f"""s_mov_b64 exec, -1
        s_memrealtime s[38:39]
        s_waitcnt lgkmcnt(0)
        v_writelane_b32 v255, s38, 62
        s_lshl_b32 s38, s2, 3
        s_add_u32 s38, s38, s{sW}
        s_lshl_b32 s38, s38, 8
        s_add_u32 s38, s38, {WS_STAMP}
        v_lshlrev_b32 v{t}, 2, v1
        buffer_store_dword v255, v{t}, s[{sWS}:{sWS+3}], s38 offen""")
        self.va.put(t)


class G:
    pass


def splice(k, main, fill, per, start=0):
    fi = 0
    n = 0
    for it in main:
        k.items.append(it)
        if isinstance(it, Ins) and it.cls == "mfma":
            n += 1
            if n > start:
                cnt = 0
                while fi < len(fill) and cnt < per:
                    f = fill[fi]
                    k.items.append(f)
                    fi += 1
                    if isinstance(f, Ins):
                        cnt += 2 if f.cls == "trans" else 1
    k.items.extend(fill[fi:])


def capture(c, fn):
    old = c.k
    tmp = Prog(old.name)
    tmp._lab = old._lab + 1000
    tmp._rid = old._rid + 1000
    c.k = tmp
    fn()
    c.k = old
    old._lab = tmp._lab
    old._rid = tmp._rid
    return tmp.items


def prologue(c, g):
    k, va = c.k, c.va
    st = c.opts.get("stamps")
    k(f"""
    s_cmp_ge_u32 s2, 256
    s_cbranch_scc1 L_exit
    s_load_dwordx16 s[4:19], s[0:1], 0
    s_load_dwordx16 s[20:35], s[0:1], 64
    s_load_dwordx2 s[36:37], s[0:1], 128
    {"s_memrealtime s[98:99]" if st else ""}
    {"s_memtime s[100:101]" if st else ""}
    v_lshrrev_b32 v2, 6, v0
    v_and_b32 v1, 63, v0
    v_readfirstlane_b32 s{sW}, v2
    s_and_b32 s{sG}, s2, 7
    s_lshl_b32 s{sG}, s{sG}, 1
    s_lshr_b32 s{sT}, s2, 7
    s_add_u32 s{sG}, s{sG}, s{sT}
    s_lshr_b32 s{sJ}, s2, 3
    s_and_b32 s{sJ}, s{sJ}, 15
    s_lshl_b32 s{sT0}, s{sG}, 7
    s_and_b32 s{sRH}, s{sJ}, 1
    """)
    g.vcw = None
    cw = c.opts.get("cw", 1)
    if cw:
        g.vcw = va.get()
        t = va.get()
        if cw == 1:
            k(f"""s_lshl_b32 s{sT}, s{sRH}, 3
            s_add_u32 s{sT}, s{sT}, s{sW}
            s_cmp_lg_u32 s{sT}, 15
            s_cbranch_scc1 L_cw
            s_lshr_b32 s{sT}, s2, 4""")
        else:
            k(f"""s_lshr_b32 s{sT}, s2, 3
            s_and_b32 s{sT+1}, s{sT}, 0xfffffffd
            s_cmp_lg_u32 s{sT+1}, 1
            s_cbranch_scc1 L_cw
            s_lshl_b32 s{sT}, s{sT}, 2
            s_and_b32 s{sT}, s{sT}, 8
            s_add_u32 s{sT}, s{sT}, s{sW}""")
        k.region_begin()
        k(f"""s_getpc_b64 s[{sMI}:{sMI+1}]
        L_pc:
        s_mov_b32 s{sMI+2}, L_exit-L_pc
        s_mov_b32 s{sMI+3}, 0x00020000
        s_lshl_b32 s{sT}, s{sT}, 13
        v_lshlrev_b32 v{t}, 7, v1
        buffer_load_dword v{g.vcw}, v{t}, s[{sMI}:{sMI+3}], s{sT} offen""")
        k.region_end()
        k("L_cw:")
        va.put(t)
    k(f"""
    s_lshr_b32 s{sC}, s{sJ}, 1
    s_xor_b32 s{sC}, s{sC}, {c.opts.get("cx", 0)}
    s_lshl_b32 s{sW1K}, s{sW}, 10
    s_lshr_b32 s{sTQ}, s{sW}, 1
    s_and_b32 s{sKH}, s{sW}, 1
    s_lshl_b32 s{sC128}, s{sC}, 7
    s_lshl_b32 s{sCrow}, s{sC}, 16
    """)
    g.vR1k, g.vK1k = va.get(), va.get()
    g.vnon = va.get()
    g.srow = va.get(4)
    g.r8, g.pos, g.row = va.get(), va.get(), va.get()
    t, u, f = [va.get() for _ in range(3)]
    k(f"""v_lshrrev_b32 v{g.r8}, 3, v1
    v_and_b32 v{g.pos}, 7, v1
    s_lshl_b32 s{sT+1}, s{sKH}, 2
    v_lshrrev_b32 v{u}, 1, v{g.r8}
    v_or_b32 v{f}, s{sT+1}, v{u}
    v_xor_b32 v{f}, v{f}, v{g.pos}
    v_lshlrev_b32 v{f}, 4, v{f}
    s_lshl_b32 s{sT+2}, s{sW}, 3
    v_add_u32 v{g.row}, s{sT+2}, v{g.r8}        ; 8w+r8
    v_lshl_add_u32 v{g.vR1k}, v{g.row}, 10, v{f}
    s_lshl_b32 s{sT}, s{sJ}, 3
    s_add_u32 s{sT}, s{sT}, s{sT0}
    s_add_u32 s{sA}, s{sT}, s{sW}
    s_lshl_b32 s{sT}, s{sA}, 10
    v_lshlrev_b32 v{t}, 4, v1
    s_mov_b32 s{sT+1}, {WS_NONCE}
    s_waitcnt lgkmcnt(0)
    """)
    c.stamp(55)
    srd(k, sX, P_X, 2048 * 1024)
    rot = c.opts.get("rot", ROT)
    if rot & 1:
        k(f"""s_lshr_b32 s{sKHP}, s2, 5
        s_and_b32 s{sKHP}, s{sKHP}, 4
        s_add_u32 s{sR128}, s{sC}, s{sKHP}
        s_lshl_b32 s{sR128}, s{sR128}, 7""")
    else:
        k(f"s_mov_b32 s{sR128}, 0")
    k(f"buffer_load_dwordx4 {vr(g.srow,4)}, v{t}, s[{sX}:{sX+3}], s{sT} offen")
    srd(k, sWS, P_WS, 0x10000000)
    k(f"buffer_load_dword v{g.vnon}, off, s[{sWS}:{sWS+3}], s{sT+1} sc1")
    if st:
        k("v_writelane_b32 v255, s98, 63\nv_writelane_b32 v255, s100, 61")
    for r in (t, u, f):
        va.put(r)
    k(f"""
    s_cmp_eq_u32 s{sRH}, 0
    s_cbranch_scc1 L_pathM
    """)


def late_consts(c, g):
    k, va = c.k, c.va
    u, f = va.get(), va.get()
    g.vL4, g.vL16, g.vNON = va.get(), va.get(), va.get()
    k(f"""s_mov_b32 s{sI512}, {fhex(1/512)}
    s_mov_b32 s{sK3}, {fhex(-K3)}
    s_mov_b32 s{sONE}, 0x3f803f80
    s_lshl_b32 s{sFL}, s{sG}, 12
    s_add_u32 s{sFL}, s{sFL}, {WS_FL}
    s_getreg_b32 s{sXCC}, hwreg(HW_REG_XCC_ID)
    s_and_b32 s{sXCC}, s{sXCC}, 7
    s_min_u32 s{sJ3B}, s{sJ}, 13
    s_lshl_b32 s{sJ3B}, s{sJ3B}, 8
    v_lshlrev_b32 v{g.vL4}, 2, v1
    v_lshlrev_b32 v{g.vL16}, 4, v1""")
    if c.opts.get("rot", ROT) & 2:
        k(f"s_lshr_b32 s{sT}, s2, 7")
    else:
        k(f"s_mov_b32 s{sT}, 0")
    k(f"""s_xor_b32 s{sKHP}, s{sKH}, s{sT}
    s_mul_i32 s{sT+1}, s{sT}, {4*64*3584}
    s_add_u32 s{sJ3Bp}, s{sJ3B}, s{sT+1}
    s_sub_u32 s{sJ3Bm}, s{sJ3B}, s{sT+1}
    s_lshl_b32 s{sT+1}, s{sT}, 18
    s_add_u32 s{sC128p}, s{sC128}, s{sT+1}
    s_sub_u32 s{sC128m}, s{sC128}, s{sT+1}""")
    va.put(u); va.put(f)


def kn_voff(c, g, want35):
    k, va = c.k, c.va
    u, f = va.get(), va.get()
    k(f"""v_bfe_u32 v{u}, v{g.r8}, 1, 1
    v_lshlrev_b32 v{u}, 2, v{u}
    v_bfe_u32 v{f}, v{g.r8}, 2, 1
    v_lshl_add_u32 v{u}, v{f}, 1, v{u}
    v_xor_b32 v{u}, v{u}, v{g.pos}
    v_lshlrev_b32 v{u}, 4, v{u}
    v_lshl_add_u32 v{g.vK1k}, v{g.row}, 10, v{u}""")
    if want35:
        g.vK35 = va.get()
        k(f"""v_mul_u32_u24 v{f}, 3584, v{g.row}
        v_add_u32 v{g.vK35}, v{f}, v{u}""")
    va.put(u); va.put(f)


def seg_load(c, n_sgpr, segs, dst, xoff=None):
    k, va = c.k, c.va
    t = va.get()
    k(f"""s_mov_b32 s{sMI}, s{segs[0][0]}
    s_mov_b32 s{sMI+1}, s{segs[0][0]+1}
    s_mov_b32 s{sMI+2}, {segs[0][2]}
    s_mov_b32 s{sT+2}, {"0" if xoff is None else f"s{xoff}"}""")
    base = segs[0][1]
    for p_, n, nb in segs[1:]:
        k(f"""s_cmp_ge_u32 s{n_sgpr}, {base}
        s_cselect_b32 s{sMI}, s{p_}, s{sMI}
        s_cselect_b32 s{sMI+1}, s{p_+1}, s{sMI+1}
        s_cselect_b32 s{sMI+2}, {nb}, s{sMI+2}
        s_cselect_b32 s{sT+2}, {base}, s{sT+2}""")
        base += n
    k(f"""s_mov_b32 s{sMI+3}, 0x00020000
    s_sub_u32 s{sT+2}, s{n_sgpr}, s{sT+2}
    s_lshl_b32 s{sT+2}, s{sT+2}, 13
    v_lshlrev_b32 v{t}, 7, v1
    buffer_load_dword v{dst}, v{t}, s[{sMI}:{sMI+3}], s{sT+2} offen{" sc1" if c.opts.get("tsc") else ""}""")
    va.put(t)


def warm_mall(c, g):
    wm = c.opts.get("warm", 1)
    if not wm:
        g.vwarm = None
        return
    k, va = c.k, c.va
    g.vwarm = va.get()
    lab = k.label("L_wm")
    segs = [(P_W4, 224, 224 * 8192), (P_CRE, 64, 64 * 8192), (P_CIM, 64, 64 * 8192)]
    k(f"""s_lshl_b32 s{sT}, s{sW}, 7
    s_lshl_b32 s{sT+1}, s{sG}, 3
    s_add_u32 s{sT}, s{sT}, s{sT+1}
    s_add_u32 s{sT}, s{sT}, s{sC}
    s_cmp_ge_u32 s{sT}, 352
    s_cbranch_scc1 {lab}""")
    k.region_begin()
    seg_load(c, sT, segs, g.vwarm)
    k.region_end()
    k(f"{lab}:")


def touch(c, g, which):
    o = c.opts
    if not (o.get("l2t", 0) >> which) & 1:
        return
    k, va = c.k, c.va
    d = va.get()
    g.tdst = getattr(g, "tdst", []) + [d]
    k(f"""s_lshr_b32 s{sT}, s2, 3
    s_lshl_b32 s{sT}, s{sT}, 3
    s_add_u32 s{sT}, s{sT}, s{sW}""")
    if which == 0:
        k(f"""s_and_b32 s{sT+1}, s2, 7
        s_lshl_b32 s{sT+1}, s{sT+1}, 5
        s_sub_u32 s{sT+1}, 0, s{sT+1}""")
        seg_load(c, sT, [(P_X, 32, 2048 * 1024), (P_W1, 64, 512 * 1024), (P_BRE, 64, 512 * 1024), (P_BIM, 64, 512 * 1024),
                         (P_W2, 32, 512 * 1024)], d, xoff=sT + 1)
    else:
        k(f"s_add_u32 s{sT}, s{sT}, 32")
        seg_load(c, sT, [(P_W2, 64, 512 * 1024), (P_W3, 224, 512 * 3584)], d)


def touch2(c, g, n_sgpr, segs):
    k, va = c.k, c.va
    d = va.get()
    g.tdst = getattr(g, "tdst", []) + [d]
    t, u = va.get(), va.get()
    def vals(sg, base):
        p_, n, nb, m1, ex = sg
        if m1 > 0:
            return p_, nb, 32 * m1, m1, 128, ex, base
        return p_, nb, -64 * m1, -2 * m1, -m1, ex, base
    base = 0
    regs = [sMI, sMI + 1, sMI + 2, sT + 2, sT + 3, sT + 4, sT + 5, sT + 6]
    for i, sg in enumerate(segs):
        p_, nb, span, A, B, ex, bs = vals(sg, base)
        new = [f"s{p_}", f"s{p_+1}", nb, span, A, B, ex, bs]
        if i == 0:
            for r, v in zip(regs, new):
                k(f"s_mov_b32 s{r}, {v}")
        else:
            k(f"s_cmp_ge_u32 s{n_sgpr}, {base}")
            for r, v, o_ in zip(regs, new, old):
                if v != o_:
                    k(f"s_cselect_b32 s{r}, {v}, s{r}")
        old = new if i == 0 else [None] * 8
        base += sg[1]
    k(f"""s_cmp_ge_u32 s{n_sgpr}, {base}
    s_cselect_b32 s{sMI+2}, 0, s{sMI+2}
    s_mov_b32 s{sMI+3}, 0x00020000
    s_sub_u32 s{sT+6}, s{n_sgpr}, s{sT+6}
    s_mul_i32 s{sT+6}, s{sT+6}, s{sT+2}
    s_add_u32 s{sT+6}, s{sT+6}, s{sT+5}
    v_lshrrev_b32 v{t}, 1, v1
    v_mul_u32_u24 v{t}, s{sT+3}, v{t}
    v_and_b32 v{u}, 1, v1
    v_mad_u32_u24 v{t}, v{u}, s{sT+4}, v{t}
    buffer_load_dword v{d}, v{t}, s[{sMI}:{sMI+3}], s{sT+6} offen""")
    va.put(t); va.put(u)


def s0_index(c, dst, rnd):
    c.k(f"""s_lshr_b32 s{dst}, s2, 7
    s_lshl_b32 s{dst}, s{dst}, 1
    s_bfe_u32 s{sT+1}, s{sJ}, 0x10001
    s_add_u32 s{dst}, s{dst}, s{sT+1}
    s_lshl_b32 s{dst}, s{dst}, 3
    s_add_u32 s{dst}, s{dst}, s{sW}
    s_add_u32 s{dst}, s{dst}, {32*rnd}""")


def touch_done(c, g):
    for d in getattr(g, "tdst", []):
        c.k(f"v_mov_b32 v{d}, 0")
        c.va.put(d)
    g.tdst = []


def warm_done(c, g):
    touch_done(c, g)
    if g.vcw is not None:
        c.k(f"v_mov_b32 v{g.vcw}, 0")
        c.va.put(g.vcw)
        g.vcw = None
    if g.vwarm is not None:
        c.k(f"v_mov_b32 v{g.vwarm}, 0")
        c.va.put(g.vwarm)
        g.vwarm = None


def wave_sum(c, S, x):
    k = c.k
    for m in ("quad_perm:[1,0,3,2]", "quad_perm:[2,3,0,1]", "row_half_mirror", "row_mirror"):
        for s in S:
            k(f"v_add_f32_dpp v{s}, v{s}, v{s} {m} row_mask:0xf bank_mask:0xf")
    for sw in ("v_permlane16_swap_b32", "v_permlane32_swap_b32"):
        for s, xx in zip(S, x):
            k(f"v_mov_b32 v{xx}, v{s}")
        for s, xx in zip(S, x):
            k(f"{sw} v{s}, v{xx}")
        for s, xx in zip(S, x):
            k(f"v_add_f32 v{s}, v{s}, v{xx}")


def stat_publish(c, g):
    k, va = c.k, c.va
    S1, S2 = va.get(), va.get()
    t = va.get(8)
    mean, var, m1, d1, a1, m2, d2, x = range(t, t + 8)
    o = va.get(4)
    k(f"v_mov_b32 v{S1}, 0\nv_mov_b32 v{S2}, 0")
    for i in range(4):
        k(f"v_dot2c_f32_bf16 v{S1}, s{sONE}, v{g.srow+i}\nv_dot2c_f32_bf16 v{S2}, v{g.srow+i}, v{g.srow+i}")
    c.stamp(50)
    wave_sum(c, [S1, S2], [mean, var])
    k(f"""v_mul_f32 v{mean}, {fhex(1/512)}, v{S1}
    v_mul_f32 v{x}, v{mean}, v{mean}
    v_fma_f32 v{var}, v{S2}, s{sI512}, -v{x}
    v_max_f32 v{var}, 0, v{var}""")
    c.bf16r(m1, mean)
    c.bf16r(x, var)
    k(f"v_add_f32 v{x}, {fhex(EPS)}, v{x}")
    c.bf16r(x, x)
    k(f"v_sqrt_f32 v{x}, v{x}")
    c.bf16r(d1, x)
    k(f"""v_rcp_f32 v{a1}, v{d1}
    v_sub_f32 v{x}, v{mean}, v{m1}
    v_mul_f32 v{m2}, v{x}, v{a1}
    v_mul_f32 v{x}, v{var}, v{a1}
    v_mul_f32 v{x}, v{x}, v{a1}""")
    c.bf16r(x, x)
    k(f"v_add_f32 v{x}, {fhex(EPS)}, v{x}")
    c.bf16r(x, x)
    k(f"""v_sqrt_f32 v{d2}, v{x}
    v_cvt_pk_bf16_f32 v{o}, v{m1}, v{d1}
    v_cvt_pk_bf16_f32 v{o+2}, v{m2}, v{d2}
    v_readfirstlane_b32 s{sNON}, v{g.vnon}
    s_add_u32 s{sNON}, s{sNON}, 1
    s_lshl_b32 s{sT}, s{sXCC}, 29
    s_xor_b32 s{sT}, s{sT}, s{sNON}
    v_mov_b32 v{o+1}, s{sNON}
    v_mov_b32 v{o+3}, s{sT}
    v_mov_b32 v{g.vNON}, s{sNON}
    s_lshl_b32 s{sT}, s{sA}, 4
    s_add_u32 s{sT}, s{sT}, {WS_RS}
    s_mov_b64 exec, 1
    buffer_store_dwordx4 {vr(o,4)}, off, s[{sWS}:{sWS+3}], s{sT} sc1
    s_mov_b64 exec, -1""")
    va.put(S1); va.put(S2); va.put(t, 8); va.put(o, 4)
    va.put(g.srow, 4); va.put(g.vnon)


def stat_issue(c, g):
    k, va = c.k, c.va
    g.rs = va.get(4)
    g.vrs, g.vrho = va.get(), va.get()
    lab = k.label("L_si")
    k(f"v_mov_b32 v{g.vrs}, 0\ns_cmp_lt_u32 s{sW}, 5\ns_cbranch_scc1 {lab}")
    k.region_begin("SC")
    t = va.get()
    k(f"""s_sub_u32 s{sT}, s{sW}, 5
    s_lshl_b32 s{sT}, s{sT}, 6
    v_add_u32 v{g.vrho}, s{sT}, v1
    v_min_u32 v{g.vrho}, 131, v{g.vrho}
    s_sub_u32 s{sT}, s{sT0}, 2
    v_add_u32 v{t}, s{sT}, v{g.vrho}
    v_max_i32 v{t}, 0, v{t}
    v_min_i32 v{t}, 2047, v{t}
    v_lshlrev_b32 v{g.vrs}, 4, v{t}
    s_mov_b32 s{sT}, {WS_RS}
    buffer_load_dwordx4 {vr(g.rs,4)}, v{g.vrs}, s[{sWS}:{sWS+3}], s{sT} offen sc1""")
    va.put(t)
    k.region_end()
    k(f"{lab}:")


def stat_consume(c, g):
    k, va = c.k, c.va
    rs = g.rs
    lab = k.label("L_sc")
    loop, done = k.label("L_sl"), k.label("L_sd")
    k(f"s_cmp_lt_u32 s{sW}, 5\ns_cbranch_scc1 {lab}")
    k.region_begin("SC")
    t = va.get(8)
    m1, d1, m2, d2, a1, a2, x, y = range(t, t + 8)
    vok = va.get()
    k(f"""v_mov_b32 v{x}, v{rs+1}
    s_mov_b32 s{sT+1}, {SPIN}
    s_mov_b32 s{sT}, {WS_RS}
    {loop}:
    v_xor_b32 v{x}, s{sNON}, v{rs+1}
    v_xor_b32 v{y}, s{sNON}, v{rs+3}
    v_lshlrev_b32 v{a1}, 3, v{y}
    v_or_b32 v{x}, v{x}, v{a1}
    v_cmp_ne_u32 vcc, 0, v{x}
    s_cbranch_vccz {done}""")
    k.region_begin("SC2")
    k(f"""buffer_load_dwordx4 {vr(rs,4)}, v{g.vrs}, s[{sWS}:{sWS+3}], s{sT} offen sc1
    s_waitcnt vmcnt(0)
    s_sub_u32 s{sT+1}, s{sT+1}, 1
    s_cmp_lg_u32 s{sT+1}, 0
    s_cbranch_scc1 {loop}""")
    k.region_begin("SC")
    o = [va.get(2) for _ in range(3)]
    k(f"""{done}:
    v_lshrrev_b32 v{y}, 29, v{y}
    v_subrev_u32 v{x}, 2, v{g.vrho}
    v_cmp_gt_u32 vcc, 128, v{x}
    v_cmp_ne_u32 s[{sT+2}:{sT+3}], s{sXCC}, v{y}
    s_and_b64 vcc, vcc, s[{sT+2}:{sT+3}]
    s_cselect_b32 s{sT+2}, 1, 0
    s_lshl_b32 s{sT+3}, s{sW}, 2
    s_add_u32 s{sT+3}, s{sT+3}, {MODE - 20}
    v_mov_b32 v{x}, s{sT+2}
    v_mov_b32 v{y}, s{sT+3}
    ds_write_b32 v{y}, v{x}
    s_sub_u32 s{sT}, s{sT0}, 2
    v_add_u32 v{x}, s{sT}, v{g.vrho}
    v_cmp_gt_u32 vcc, 2048, v{x}
    v_cndmask_b32 v{vok}, 0, 1.0, vcc
    v_lshlrev_b32 v{m1}, 16, v{rs}
    v_and_b32 v{d1}, 0xffff0000, v{rs}
    v_lshlrev_b32 v{m2}, 16, v{rs+2}
    v_and_b32 v{d2}, 0xffff0000, v{rs+2}
    v_rcp_f32 v{a1}, v{d1}
    v_rcp_f32 v{a2}, v{d2}
    v_mul_f32 v{m1}, v{m1}, v{vok}
    v_mul_f32 v{m2}, v{m2}, v{vok}
    v_mov_b32 v{o[0]}, v{a1}
    v_mul_f32 v{o[0]+1}, v{m1}, v{a1}
    v_mul_f32 v{o[1]}, v{a1}, v{a2}
    v_fma_f32 v{x}, v{m2}, v{d1}, v{m1}
    v_mul_f32 v{o[1]+1}, v{x}, v{o[1]}
    v_mov_b32 v{o[2]}, v{m1}
    v_mov_b32 v{o[2]+1}, v{a1}
    v_lshlrev_b32 v{y}, 3, v{g.vrho}
    v_add_u32 v{y}, {MISC}, v{y}""")
    for oo, st in zip(o, (ST_A, ST_B, ST_C)):
        k(f"ds_write_b64 v{y}, {vr(oo,2)} offset:{st - MISC}")
        va.put(oo, 2)
    va.put(t, 8); va.put(vok)
    k.region_end()
    k(f"{lab}:")
    va.put(rs, 4); va.put(g.vrs); va.put(g.vrho)


def mode_read(c, g):
    k, va = c.k, c.va
    t = va.get(4)
    a = va.get()
    k(f"""v_mov_b32 v{a}, {MODE}
    ds_read_b96 {vr(t,3)}, v{a}
    v_or3_b32 v{t}, v{t}, v{t+1}, v{t+2}
    v_readfirstlane_b32 s{sMODE}, v{t}""")
    va.put(t, 4); va.put(a)


def gelu_many(c, xs):
    k, va = c.k, c.va
    ts = [va.get() for _ in xs]
    kk = va.get()
    k(f"v_mov_b32 v{kk}, {fhex(-K1)}")
    for x, t in zip(xs, ts):
        k(f"v_mul_f32 v{t}, v{x}, v{x}")
    for x, t in zip(xs, ts):
        k(f"v_fma_f32 v{t}, v{t}, s{sK3}, v{kk}")
    for x, t in zip(xs, ts):
        k(f"v_mul_f32 v{t}, v{t}, v{x}")
    for x, t in zip(xs, ts):
        k(f"v_exp_f32 v{t}, v{t}")
    for x, t in zip(xs, ts):
        k(f"v_add_f32 v{t}, 1.0, v{t}")
    for x, t in zip(xs, ts):
        k(f"v_rcp_f32 v{t}, v{t}")
    for x, t in zip(xs, ts):
        k(f"v_mul_f32 v{x}, v{x}, v{t}")
    for t in ts:
        va.put(t)
    va.put(kk)


def cmad(k, dr, di, ar, ai, br, bi, cr, ci):
    assert dr not in (br, bi) and di not in (br, bi)
    k(f"""v_fma_f32 v{dr}, v{ar}, v{br}, v{cr}
    v_fma_f32 v{di}, v{ar}, v{bi}, v{ci}
    v_fma_f32 v{dr}, -v{ai}, v{bi}, v{dr}
    v_fma_f32 v{di}, v{ai}, v{br}, v{di}""")


def cmul(k, dr, di, ar, ai, br, bi):
    assert dr not in (ar, ai, br, bi) and di not in (ar, ai, br, bi)
    k(f"""v_mul_f32 v{dr}, v{ar}, v{br}
    v_mul_f32 v{di}, v{ar}, v{bi}
    v_fma_f32 v{dr}, -v{ai}, v{bi}, v{dr}
    v_fma_f32 v{di}, v{ai}, v{br}, v{di}""")


def csq(k, dr, di, r, i):
    k(f"""v_mul_f32 v{dr}, v{i}, v{i}
    v_mul_f32 v{di}, v{r}, v{i}
    v_fma_f32 v{dr}, v{r}, v{r}, -v{dr}
    v_add_f32 v{di}, v{di}, v{di}""")


def mf16(k, d, a, b, z):
    k(f"v_mfma_f32_16x16x32_bf16 {vr(d,4)}, {vr(a,4)}, {vr(b,4)}, {'0' if z else vr(d,4)}")


def mf32(k, d, a, b, z):
    k(f"v_mfma_f32_32x32x16_bf16 {vr(d,16)}, {vr(a,4)}, {vr(b,4)}, {'0' if z else vr(d,16)}")


def bar(c, lg=True):
    if lg:
        c.k("s_waitcnt lgkmcnt(0)")
    c.k("s_barrier")


def w2_dma(c, g, i):
    c.dma(g.vK1k, sWB, None, U(6 + i), sadd=(sC128p if i < 4 else sC128m, i * 65536), tag=f"w2_{i}")


W3H0 = [14, 15, 16, 17, 0, 1, 2, 3]


def w3_dma(c, g, ph, i):
    u = W3H0[i] if ph == 0 else 6 + i
    c.dma(g.vK35, sWA, None, U(u), sadd=(sJ3B, i * 64 * 3584 + 128 * ph), tag=f"w3_{ph}_{i}")


def xq_load(c, g):
    k, va = c.k, c.va
    g.xq = va.get(8)
    t, u = va.get(), va.get()
    k(f"""v_and_b32 v{t}, 15, v1
    v_lshrrev_b32 v{u}, 4, v1
    v_lshlrev_b32 v{u}, 3, v{u}
    v_lshl_add_u32 v{t}, v{t}, 10, v{u}
    s_lshl_b32 s{sT+1}, s{sTQ}, 4
    s_add_u32 s{sT}, s{sT0}, s{sT+1}
    s_lshl_b32 s{sT}, s{sT}, 10
    s_add_u32 s{sT}, s{sT}, s{sC128}
    s_lshl_b32 s{sT+1}, s{sKH}, 6
    s_add_u32 s{sT}, s{sT}, s{sT+1}
    s_add_u32 s{sT+1}, s{sT}, 65536
    buffer_load_dwordx2 {vr(g.xq,2)}, v{t}, s[{sX}:{sX+3}], s{sT} offen
    buffer_load_dwordx2 {vr(g.xq+2,2)}, v{t}, s[{sX}:{sX+3}], s{sT} offen offset:32
    buffer_load_dwordx2 {vr(g.xq+4,2)}, v{t}, s[{sX}:{sX+3}], s{sT+1} offen
    buffer_load_dwordx2 {vr(g.xq+6,2)}, v{t}, s[{sX}:{sX+3}], s{sT+1} offen offset:32""")
    va.put(t); va.put(u)


def norm_pairs(c, dst, src, n, ma):
    k, va = c.k, c.va
    lo, hi = va.get(), va.get()
    for i in range(n):
        k(f"""v_lshlrev_b32 v{lo}, 16, v{src+i}
        v_and_b32 v{hi}, 0xffff0000, v{src+i}
        v_sub_f32 v{lo}, v{lo}, v{ma}
        v_sub_f32 v{hi}, v{hi}, v{ma}
        v_cvt_pk_bf16_f32 v{dst+i}, v{lo}, v{hi}
        v_lshlrev_b32 v{lo}, 16, v{dst+i}
        v_and_b32 v{hi}, 0xffff0000, v{dst+i}
        v_mul_f32 v{lo}, v{lo}, v{ma+1}
        v_mul_f32 v{hi}, v{hi}, v{ma+1}
        v_cvt_pk_bf16_f32 v{dst+i}, v{lo}, v{hi}""")
    va.put(lo); va.put(hi)


def xn_prep(c, g, half):
    k, va = c.k, c.va
    ma = va.get(2)
    t = va.get()
    k(f"""s_lshl_b32 s{sT}, s{sTQ}, 7
    s_add_u32 s{sT}, s{sT}, {ST_C + 16 + 512*half}
    v_and_b32 v{t}, 15, v1
    v_lshl_add_u32 v{t}, v{t}, 3, s{sT}
    ds_read_b64 {vr(ma,2)}, v{t}""")
    norm_pairs(c, g.xq + 4*half, g.xq + 4*half, 4, ma)
    va.put(ma, 2); va.put(t)


def sel_make(c):
    k, va = c.k, c.va
    s4 = va.get(4)
    t = va.get()
    k(f"""v_lshrrev_b32 v{t}, 4, v1
    v_xor_b32 v{t}, v{t}, v1
    v_and_b32 v{t}, 1, v{t}
    v_cmp_eq_u32 vcc, 0, v{t}
    v_mov_b32 v{t}, s{sONE}""")
    for i in range(4):
        k(f"v_cndmask_b32 v{s4+i}, 0, v{t}, vcc")
    va.put(t)
    return s4


SELMASK = "0x3000300030003"


def build(opts):
    import mk4b
    import copy
    g0 = G()
    P = Ctx("pro", opts, VA(2, 255))
    prologue(P, g0)
    body = P.k.finalize()
    gs = copy.copy(g0)
    PS = Ctx("ps", opts, P.va.clone())
    mk4b.s_start(PS, gs)
    body += PS.k.finalize(init_vm=P.k.final_vm)
    for kind, lab in (("M", "L_pathM"), ("S3", "L_pathS3"), ("S0", "L_pathS0")):
        src, gsrc = (P, g0) if kind == "M" else (PS, gs)
        g = copy.copy(gsrc)
        C = Ctx(kind, opts, src.va.clone())
        mk4b.path(C, g, kind)
        C.stamp_flush()
        C.k("s_waitcnt vmcnt(0) lgkmcnt(0)\ns_endpgm")
        body += lab + ":\n"
        body += C.k.finalize(init_vm=src.k.final_vm)
        print(kind, "peak vgpr", C.va.peak + 2, file=sys.stderr)
    body += "L_exit:\n  s_endpgm\n"
    n = NAME + "_kernel"
    hdr = f"""; fused S5-SSM + shift-MLP kernel (generated by dev/mk4.py)
; @launch grid=(256,1,1) block=(512,1,1) lds={LDS_BYTES}
.amdgcn_target "amdgcn-amd-amdhsa--gfx950"
.text
.globl {n}
.p2align 8
.type {n},@function
{n}:
"""
    tail = f""".section .rodata,"a"
.p2align 6
.amdhsa_kernel {n}
  .amdhsa_next_free_vgpr 256
  .amdhsa_next_free_sgpr 102
  .amdhsa_accum_offset 256
  .amdhsa_group_segment_fixed_size 0
  .amdhsa_kernarg_size 136
  .amdhsa_user_sgpr_count 2
  .amdhsa_user_sgpr_kernarg_segment_ptr 1
  .amdhsa_system_sgpr_workgroup_id_x 1
.end_amdhsa_kernel
"""
    return hdr + body + tail


def rotk(s_, sh=0, add=None, sr=None):
    sr = sR128 if sr is None else sr
    t = f"s_add_u32 s{sT+8}, s{sr}, {s_*128}\ns_and_b32 s{sT+8}, s{sT+8}, 0x380\n"
    if sh:
        t += f"s_lshl_b32 s{sT+8}, s{sT+8}, {sh}\n"
    if add is not None:
        t += f"s_add_u32 s{sT+8}, s{sT+8}, s{add}\n"
    return t


if __name__ == "__main__":
    import argparse
    ap = argparse.ArgumentParser()
    ap.add_argument("-o", default="v4.s")
    ap.add_argument("--stop", type=int, default=99)
    ap.add_argument("--stamps", action="store_true")
    ap.add_argument("--opt", action="append", default=[])
    a = ap.parse_args()
    opts = dict(stop=a.stop, stamps=a.stamps)
    for o in a.opt:
        kk, _, vv = o.partition("=")
        opts[kk] = int(vv) if vv else 1
    txt = build(opts)
    open(a.o, "w").write(txt)
    print("wrote", a.o, len(txt), "bytes", txt.count("\n"), "lines")
```
